```python
import torch

def _softmax(x, axis=-1):
    return torch.softmax(x, dim=axis)

def _gelu(x):
    return torch.nn.functional.gelu(x, approximate='tanh')

def _silu(x):
    return torch.nn.functional.silu(x)

def _sigmoid(x):
    return torch.sigmoid(x)

def _layernorm(x, axis=-1, eps=1e-05):
    m = x.mean(dim=axis, keepdim=True)
    v = x.var(dim=axis, keepdim=True, unbiased=False)
    return (x - m) / torch.sqrt(v + eps)

def _scatter_add(tgt, idx, src, axis=0):
    return tgt.clone().index_add_(axis, idx, src)

def _segment_sum(src, seg, n):
    out = torch.zeros((n,) + src.shape[1:], dtype=src.dtype)
    return out.index_add_(0, seg, src)

def _pad(x, pw):
    flat = tuple((v for pair in reversed(pw) for v in pair))
    return torch.nn.functional.pad(x, flat)
kernel_name = 'gated_mix__mha_block__mixer_gmlp__prompt'

def setup_inputs():

    _w = lambda a: (lambda t: t.to(torch.bfloat16) if t.is_floating_point() else t)(torch.as_tensor(a))

    def _A_setup():
        B, S, D, H = (1, 2048, 576, 32)
        return {'x': _w((lambda *s: torch.randn(*s, dtype=torch.bfloat16) * 0.05)(B, S, D)), 'wqkv': _w((lambda *s: torch.randn(*s, dtype=torch.bfloat16) * 1.6)(D, 3 * D)), 'wo': _w((lambda *s: torch.randn(*s, dtype=torch.bfloat16) * 0.1)(D, D))}
    _A_in = _A_setup()

    def _B_setup():
        B, S, D, F = (1, 2048, 576, 4608)
        Fh = F // 2
        return {'x': _w((lambda *s: torch.randn(*s, dtype=torch.bfloat16) * 0.05)(B, S, D)), 'w_in': _w((lambda *s: torch.randn(*s, dtype=torch.bfloat16) * 1.6)(D, 2 * Fh)), 'w_sp': _w(0.01 * (lambda *s: torch.randn(*s, dtype=torch.bfloat16) * 1.6)(S, S)), 'b_sp': _w(1.0 + 0.01 * (lambda *s: torch.randn(*s, dtype=torch.bfloat16) * 0.05)(S)), 'w_out': _w((lambda *s: torch.randn(*s, dtype=torch.bfloat16) * 0.05)(Fh, D))}
    _B_in = _B_setup()
    return {'A_x': _A_in['x'], 'A_wqkv': _A_in['wqkv'], 'A_wo': _A_in['wo'], 'B_x': _B_in['x'], 'B_w_in': _B_in['w_in'], 'B_w_sp': _B_in['w_sp'], 'B_b_sp': _B_in['b_sp'], 'B_w_out': _B_in['w_out'], 'gate_w': _w((lambda *s: torch.randn(*s, dtype=torch.bfloat16) * 0.05)(576) * 16.0)}

def reference(A_x, A_wqkv, A_wo, B_x, B_w_in, B_w_sp, B_b_sp, B_w_out, gate_w):

    def _A_ref(x, wqkv, wo):
        B, S, D = x.shape
        H = 32
        Dh = D // H
        qkv = (lambda x, *d: x.permute(*d))((x @ wqkv).reshape(B, S, 3, H, Dh), 2, 0, 3, 1, 4)
        q, k, v = (qkv[0], qkv[1], qkv[2])
        scores = torch.einsum('bhqd,bhkd->bhqk', q, k) * Dh ** (-0.5)
        p = _softmax(scores, axis=-1)
        o = torch.einsum('bhqk,bhkd->bhqd', p, v)
        return (lambda x, *d: x.permute(*d))(o, 0, 2, 1, 3).reshape(B, S, D) @ wo

    def _B_ref(x, w_in, w_sp, b_sp, w_out):
        B, S, D = x.shape
        F = w_in.shape[-1]
        Fh = F // 2
        z = _gelu(torch.einsum('bsd,df->bsf', x, w_in))
        z1 = z[..., :Fh].clone()
        z2 = _layernorm(z[..., Fh:], axis=-1)
        g = torch.einsum('ts,bsf->btf', w_sp, z2) + b_sp[None, :, None]
        return torch.einsum('bsf,fd->bsd', z1 * g, w_out)
    x = A_x
    g = _sigmoid((x * gate_w).sum(-1, keepdims=True))
    a = _A_ref(x, A_wqkv, A_wo)
    b = _B_ref(x, B_w_in, B_w_sp, B_b_sp, B_w_out)
    return g * a + (1 - g) * b
```

```python
import re, copy

_RE_RANGE = re.compile(r'^([vsa])\[(\d+):(\d+)\]$')
_RE_ONE = re.compile(r'^([vsa])(\d+)$')

def regs_of(op):
    op = op.strip()
    neg = op.lstrip('-')
    if neg.startswith('abs(') and neg.endswith(')'): neg = neg[4:-1]
    if neg.startswith('|') and neg.endswith('|'): neg = neg[1:-1]
    m = _RE_RANGE.match(neg)
    if m: return [(m.group(1), i) for i in range(int(m.group(2)), int(m.group(3)) + 1)]
    m = _RE_ONE.match(neg)
    if m: return [(m.group(1), int(m.group(2)))]
    if neg == 'vcc': return [('s', 'vcc_lo'), ('s', 'vcc_hi')]
    if neg in ('vcc_lo', 'vcc_hi'): return [('s', neg)]
    if neg == 'exec': return [('s', 'exec_lo'), ('s', 'exec_hi')]
    if neg in ('exec_lo', 'exec_hi'): return [('s', neg)]
    if neg == 'm0': return [('s', 'm0')]
    return []

def split_ops(s):
    out, depth, cur = [], 0, ''
    for ch in s:
        if ch in '[(': depth += 1
        if ch in '])': depth -= 1
        if ch == ',' and depth == 0:
            out.append(cur.strip()); cur = ''
        else: cur += ch
    if cur.strip(): out.append(cur.strip())
    return out

TRANS = ('v_exp_f32', 'v_log_f32', 'v_rcp_f32', 'v_rsq_f32', 'v_sqrt_f32', 'v_sin_f32', 'v_cos_f32', 'v_rcp_iflag_f32')

class Ins:
    __slots__ = ('text', 'mn', 'kind', 'rd', 'wr', 'tag', 'passes', 'srcc', 'wide', 'dpp', 'ldsdma', 'pseudo', 'arg')
    def __init__(self, text=None, tag=None, pseudo=None, arg=None):
        self.text = text; self.tag = tag; self.pseudo = pseudo; self.arg = arg
        self.rd = []; self.wr = []; self.passes = 0; self.srcc = []; self.wide = False; self.dpp = False; self.ldsdma = False
        self.kind = 'pseudo'; self.mn = ''
        if text is not None: self.parse()
    def parse(self):
        t = self.text.split(';')[0].strip()
        sp = t.split(None, 1)
        mn = sp[0]; rest = sp[1] if len(sp) > 1 else ''
        self.mn = mn
        ops = split_ops(rest)
        mods = ''
        if ops:
            parts = ops[-1].split()
            ops[-1] = parts[0]; mods = ' '.join(parts[1:])
        R = [regs_of(o) for o in ops]
        flat = lambda l: [r for x in l for r in x]
        base = re.sub(r'_(e32|e64|dpp|sdwa)$', '', mn)
        if mn.startswith('v_mfma'):
            self.kind = 'mfma'; self.wr = R[0]; self.rd = flat(R[1:]); self.srcc = R[3]
            self.passes = 8 if '32x32' in mn else 4
        elif mn.startswith('v_'):
            self.kind = 'trans' if base in TRANS else 'valu'
            if 'row_' in mods or 'quad_perm' in mods or 'wave_' in mods or mn.endswith('_dpp') or 'row_' in rest: self.dpp = True
            if base.startswith('v_cmp'):
                self.wr = R[0]; self.rd = flat(R[1:])
                if base.startswith('v_cmpx'): self.wr = self.wr + regs_of('exec')
            elif base.startswith('v_permlane') and 'swap' in base:
                self.wr = flat(R[:2]); self.rd = flat(R[:2])
            elif base in ('v_add_co_u32', 'v_sub_co_u32', 'v_subrev_co_u32', 'v_addc_co_u32', 'v_subb_co_u32', 'v_mad_u64_u32'):
                self.wr = flat(R[:2]); self.rd = flat(R[2:])
            elif base in ('v_fmac_f32', 'v_dot2c_f32_bf16', 'v_pk_fmac_f16', 'v_writelane_b32') or self.dpp:
                self.wr = R[0]; self.rd = flat(R)
            elif base == 'v_nop':
                pass
            else:
                self.wr = R[0]; self.rd = flat(R[1:])
                if base == 'v_cndmask_b32' and len(ops) == 3: self.rd += regs_of('vcc')
        elif mn.startswith('ds_'):
            self.kind = 'ds'
            if mn.startswith(('ds_read', 'ds_bpermute', 'ds_permute', 'ds_swizzle')) or '_rtn' in mn:
                self.wr = R[0]; self.rd = flat(R[1:])
            else:
                self.rd = flat(R)
        elif mn.startswith(('buffer_', 'global_')):
            self.kind = 'vm'
            allmods = ' ' + mods + ' '
            if ' lds ' in allmods or '_lds_' in mn:
                self.ldsdma = True; self.rd = flat(R) + regs_of('m0')
            elif '_load' in mn:
                self.wr = R[0]; self.rd = flat(R[1:])
            elif '_atomic' in mn:
                self.rd = flat(R)
                if ' sc0 ' in allmods: self.wr = R[0]
            elif mn.startswith(('buffer_inv', 'buffer_wbl2')):
                pass
            else:
                self.rd = flat(R)
                if mn.endswith(('x3', 'x4')):
                    self.wide = True
                    self.arg = R[0] if mn.startswith('buffer_') else R[1]
        elif mn.startswith(('s_load', 's_buffer_load', 's_memtime', 's_memrealtime')):
            self.kind = 'smem'; self.wr = R[0]; self.rd = flat(R[1:])
        elif mn.startswith('s_'):
            self.kind = 'salu'
            if mn.startswith(('s_cmp', 's_cbranch', 's_branch', 's_waitcnt', 's_barrier', 's_nop', 's_setprio', 's_endpgm', 's_sleep', 's_bitcmp', 's_setreg', 's_sendmsg')):
                self.rd = flat(R)
            elif 'saveexec' in mn:
                self.wr = R[0] + regs_of('exec'); self.rd = flat(R[1:]) + regs_of('exec')
            elif mn in ('s_addk_i32', 's_mulk_i32'):
                self.wr = R[0]; self.rd = R[0]
            else:
                self.wr = R[0]; self.rd = flat(R[1:])
        else:
            raise ValueError('unknown instruction ' + self.text)

def I(text, tag=None): return Ins(text, tag)
def WAITVM(tag, strict=0):
    x = Ins(pseudo='waitvm', arg=tag); x.passes = strict; return x
def WAITDS(tag=None): return Ins(pseudo='waitds', arg=tag)
def NOWR(ins):
    ins.wr = []; return ins
def RAW(text): return Ins(pseudo='raw', arg=text)

class State:
    def __init__(self):
        self.vmq = []
        self.dsq = []
        self.pos = 0
        self.lastw = {}
        self.srcc = []
        self.wide = []
    def clone(self): return copy.deepcopy(self)
    def sig(self):
        return ([(tuple(sorted(map(str, r))), t) for r, t in self.vmq], [(tuple(sorted(map(str, r))), t, s) for r, t, s in self.dsq])

MF_VALU = {4: 8, 8: 12}; MF_AB = {4: 8, 8: 12}; MF_COV = {4: 6, 8: 10}; MF_WAR = {4: 3, 8: 7}

def needed_nops(ins, st):
    need = 0
    def req(pos, n):
        nonlocal need
        need = max(need, n - (st.pos - pos - 1))
    isv = ins.kind in ('valu', 'trans')
    for r in ins.rd:
        lw = st.lastw.get(r)
        if not lw: continue
        k, p, pos, d = lw
        if k == 'mfma':
            if ins.kind == 'mfma':
                if r in ins.srcc:
                    if tuple(ins.srcc) == d and ins.passes == p: pass
                    else: req(pos, MF_COV[p])
                    ab = [x for x in ins.rd[:len(ins.rd) - len(ins.srcc)]]
                    if r in ab: req(pos, MF_AB[p])
                else: req(pos, MF_AB[p])
            else: req(pos, MF_VALU[p])
        elif k in ('valu', 'trans'):
            if r[0] in 'va':
                if ins.kind == 'mfma': req(pos, 2)
                if isv and ins.mn.startswith('v_permlane'): req(pos, 2)
                if isv and ins.dpp: req(pos, 2)
                if isv and ins.mn.startswith(('v_readlane', 'v_readfirstlane')): req(pos, 1)
                if k == 'trans' and isv: req(pos, 1)
                if k == 'trans' and ins.kind in ('vm', 'ds'): req(pos, 1)
            else:
                if ins.kind == 'vm': req(pos, 5)
                elif isv: req(pos, 4 if ins.mn.startswith(('v_readlane', 'v_writelane', 'v_div_fmas')) else 2)
                elif ins.kind in ('salu', 'smem'): req(pos, 1)
        elif k == 'salu':
            if r == ('s', 'm0') and (ins.ldsdma or ins.kind == 'ds'): req(pos, 1)
    for r in ins.wr:
        lw = st.lastw.get(r)
        if lw and lw[0] == 'mfma' and ins.kind != 'mfma': req(lw[2], MF_VALU[lw[1]])
        if lw and lw[0] == 'mfma' and ins.kind == 'mfma' and not (tuple(ins.wr) == lw[3] and ins.passes == lw[1]):
            req(lw[2], MF_COV[lw[1]])
        if ins.kind != 'mfma':
            for regs, p, pos in st.srcc:
                if r in regs: req(pos, MF_WAR[p])
            for regs, pos in st.wide:
                if r in regs: req(pos, 2)
    return need

def finalize(items, st=None, verify=False):
    if st is None: st = State()
    out = []
    def emit_wait(vm=None, ds=None, why=''):
        parts = []
        if vm is not None:
            n = min(vm, 63); parts.append(f'vmcnt({n})'); del st.vmq[:max(0, len(st.vmq) - n)]
        if ds is not None:
            n = min(ds, 15); parts.append(f'lgkmcnt({n})'); del st.dsq[:max(0, len(st.dsq) - n)]
        if verify: raise AssertionError('missing wait ' + ' '.join(parts) + ' for ' + why)
        out.append(Ins('s_waitcnt ' + ' '.join(parts))); st.pos += 1
    for ins in items:
        if ins.pseudo == 'raw':
            out.append(ins); continue
        if ins.pseudo == 'waitvm':
            idx = [i for i, (r, t) in enumerate(st.vmq) if ins.arg is None or t == ins.arg or (isinstance(ins.arg, (list, tuple, set)) and t in ins.arg)]
            if idx: emit_wait(vm=max(0, len(st.vmq) - 1 - idx[-1] - ins.passes), why=f'tag {ins.arg}')
            out.append(ins) if False else None
            continue
        if ins.pseudo == 'waitds':
            idx = [i for i, (r, t, s) in enumerate(st.dsq) if ins.arg is None or t == ins.arg or (isinstance(ins.arg, (list, tuple, set)) and t in ins.arg)]
            if idx:
                n = 0 if any(s for _, _, s in st.dsq) else len(st.dsq) - 1 - idx[-1]
                emit_wait(ds=n, why=f'tag {ins.arg}')
            continue
        if ins.mn == 's_waitcnt':
            m = re.search(r'vmcnt\((\d+)\)', ins.text)
            if m: del st.vmq[:max(0, len(st.vmq) - int(m.group(1)))]
            m = re.search(r'lgkmcnt\((\d+)\)', ins.text)
            if m:
                n = int(m.group(1))
                if n == 0 or not any(s for _, _, s in st.dsq): del st.dsq[:max(0, len(st.dsq) - n)]
            out.append(ins); st.pos += 1; continue
        touched = set(ins.rd) | set(ins.wr)
        vm = ds = None
        idx = [i for i, (r, t) in enumerate(st.vmq) if r & touched]
        if idx: vm = len(st.vmq) - 1 - idx[-1]
        idx = [i for i, (r, t, s) in enumerate(st.dsq) if r & touched]
        if idx:
            ds = 0 if any(s for _, _, s in st.dsq) else len(st.dsq) - 1 - idx[-1]
        if vm is not None or ds is not None: emit_wait(vm, ds, ins.text)
        n = needed_nops(ins, st)
        if n > 0:
            if verify: raise AssertionError(f'missing {n} wait states before {ins.text}')
            while n > 0:
                k = min(n, 16); out.append(Ins(f's_nop {k-1}')); st.pos += k; n -= k
        out.append(ins)
        if ins.mn == 's_nop':
            st.pos += int(ins.text.split()[1], 0) + 1; continue
        for r in ins.wr: st.lastw[r] = (ins.kind, ins.passes, st.pos, tuple(ins.wr))
        if ins.kind == 'mfma':
            st.srcc = [x for x in st.srcc if st.pos - x[2] < 10] + [(set(ins.srcc), ins.passes, st.pos)]
        if ins.wide: st.wide = [x for x in st.wide if st.pos - x[1] < 4] + [(set(ins.arg), st.pos)]
        if ins.kind == 'vm': st.vmq.append((set(ins.wr), ins.tag))
        if ins.kind == 'ds': st.dsq.append((set(ins.wr), ins.tag, False))
        if ins.kind == 'smem': st.dsq.append((set(ins.wr), ins.tag, True))
        st.pos += 1
    return out, st

def text_of(items):
    lines = []
    for x in items:
        if x.pseudo == 'raw': lines.append(x.arg)
        elif x.pseudo: continue
        else: lines.append('    ' + x.text)
    return '\n'.join(lines)

def finalize_loop(body, st):
    cur = list(body)
    for _ in range(6):
        a, s1 = finalize_keep(cur, st.clone())
        b, s2 = finalize_keep(a, s1.clone())
        c, s3 = finalize_keep(b, s2.clone())
        if len(c) == len(cur):
            return c, s3
        cur = c
    raise AssertionError('loop waits did not converge')

def finalize_keep(items, st):
    out = []
    for ins in items:
        o, st = finalize([ins], st)
        out += o
        if ins.pseudo in ('waitvm', 'waitds'): out.append(ins)
    return out, st

def merge(primary, secondary, start=0, end=None):
    if end is None: end = len(primary)
    n = end - start; m = len(secondary); out = list(primary[:start]); j = 0
    for i in range(n):
        out.append(primary[start + i])
        tgt = (i + 1) * m // n
        out += secondary[j:tgt]; j = tgt
    out += secondary[j:]
    out += primary[end:]
    return out

def zipmerge(*lists):
    out = []; n = max(len(l) for l in lists)
    for i in range(n):
        for l in lists:
            if i < len(l): out.append(l[i])
    return out
```

```python
from asmlib import *
import struct, math, os

NAME = "gated_mix__mha_block__mixer_gmlp__prompt"
WS_QKV = 0
QKV_BYTES = 96 * 81920
WS_Z = 8 << 20
Z_BYTES = 144 * 65536
WS_Z2N = 28 << 20
Z2N_BYTES = 144 * 65536
WS_ACT = 40 << 20
ACT_BYTES = 128 * 90 * 1024
WS_WF = 52 << 20
WF_BYTES = 8 * 90 * 5 * 1024
WS_G = 56 << 20
G_BYTES = 8192
WS_CNT = (56 << 20) + 65536
WS_USED = 57 << 20

def f32(x): return "0x%08x" % struct.unpack("<I", struct.pack("<f", x))[0]
LOG2E = 1.4426950408889634
QSCALE = LOG2E / math.sqrt(18.0)
GELU_C1 = -2.0 * math.sqrt(2.0 / math.pi) * LOG2E
GELU_C2 = GELU_C1 * 0.044715

def srd(d, lo, hi, size, off=0):
    o = []
    if size == WS_USED: off += int(os.environ.get("WSOFF", "0")) << 20
    if off:
        o += [I(f"s_add_u32 s{d}, s{lo}, {off}"), I(f"s_addc_u32 s{d+1}, s{hi}, 0")]
    else:
        o += [I(f"s_mov_b32 s{d}, s{lo}"), I(f"s_mov_b32 s{d+1}, s{hi}")]
    o += [I(f"s_mov_b32 s{d+2}, {size}"), I(f"s_mov_b32 s{d+3}, 0x00020000")]
    return o

def kernel_text(name, body, vgpr, sgpr=96, accum=None):
    if accum is None: accum = (min(vgpr, 256) + 3) // 4 * 4
    return f""".text
.globl {name}
.p2align 8
.type {name},@function
{name}:
{body}
    s_endpgm
{name}_end:
.section .rodata,"a"
.p2align 6
.amdhsa_kernel {name}
  .amdhsa_next_free_vgpr {vgpr}
  .amdhsa_next_free_sgpr {sgpr}
  .amdhsa_accum_offset {accum}
  .amdhsa_group_segment_fixed_size 0
  .amdhsa_kernarg_size 96
  .amdhsa_user_sgpr_count 2
  .amdhsa_user_sgpr_kernarg_segment_ptr 1
  .amdhsa_system_sgpr_workgroup_id_x 1
.end_amdhsa_kernel
"""

import os
STAMPS = bool(int(os.environ.get("STAMPS", "0")))
WS_STAMP = 60 << 20
SB = 64
def stamp(i):
    if not STAMPS: return []
    return [I(f"s_memtime s[{SB+2*i}:{SB+2*i+1}]")]
def stamp_rt(i):
    if not STAMPS: return []
    return [I(f"s_memrealtime s[{SB+2*i}:{SB+2*i+1}]")]
def stamp_entry():
    if not STAMPS: return ""
    return (f"    s_memrealtime s[{SB}:{SB+1}]\n    s_memtime s[{SB+2}:{SB+3}]\n    v_readfirstlane_b32 s63, v0\n"
            f"    s_mov_b32 s62, s2\n    s_mov_b32 s60, s0\n    s_mov_b32 s61, s1\n" +
            "".join(f"    s_mov_b32 s{SB+i}, 0\n" for i in range(4, 32)))
def stamp_exit(kidx, name):
    if not STAMPS: return ""
    t = f"{name}_stampexit:\n    s_mov_b64 exec, -1\n    s_waitcnt vmcnt(0) lgkmcnt(0)\n    s_memtime s[{SB+28}:{SB+29}]\n    s_memrealtime s[{SB+30}:{SB+31}]\n"
    t += "    s_load_dwordx2 s[4:5], s[60:61], 88\n    s_waitcnt lgkmcnt(0)\n"
    t += f"    s_add_u32 s4, s4, {WS_STAMP + kidx*(1<<20)}\n    s_addc_u32 s5, s5, 0\n    s_mov_b32 s6, 0x100000\n    s_mov_b32 s7, 0x00020000\n"
    t += "    v_mov_b32 v1, 0\n"
    for i in range(16):
        t += f"    v_writelane_b32 v1, s{SB+2*i}, {i}\n"
    t += "    s_lshr_b32 s63, s63, 6\n    s_lshl_b32 s62, s62, 3\n    s_add_u32 s62, s62, s63\n    s_lshl_b32 s62, s62, 8\n"
    t += "    v_mbcnt_lo_u32_b32 v2, -1, 0\n    v_mbcnt_hi_u32_b32 v2, -1, v2\n    v_lshlrev_b32 v2, 2, v2\n"
    t += "    buffer_store_dword v1, v2, s[4:7], s62 offen\n    s_endpgm\n"
    return t
_kt = kernel_text
def kernel_text(name, body, vgpr, sgpr=96, accum=None, kidx=0):
    if STAMPS:
        body = stamp_entry() + body.replace("s_endpgm", f"s_branch {name}_stampexit") + f"\n    s_branch {name}_stampexit\n" + stamp_exit(kidx, name)
    return _kt(name, body, vgpr, sgpr, accum)

def code_prefetch(label, nbytes_per_wave, swave, vlane, vt, sp):
    lanes = nbytes_per_wave // 128
    mask = (1 << lanes) - 1
    t = (f"    s_getpc_b64 s[{sp}:{sp+1}]\n"
         f"    s_add_u32 s{sp}, s{sp}, {label}-.\n    s_addc_u32 s{sp+1}, s{sp+1}, 0\n"
         f"    s_mul_i32 s{sp+2}, s{swave}, {nbytes_per_wave}\n    v_lshlrev_b32 v{vt}, 7, v{vlane}\n    v_add_u32 v{vt}, s{sp+2}, v{vt}\n"
         f"    s_mov_b32 exec_lo, {hex(mask & 0xffffffff)}\n    s_mov_b32 exec_hi, {hex(mask >> 32)}\n"
         f"    global_load_dword v{vt+1}, v{vt}, s[{sp}:{sp+1}]\n    s_mov_b64 exec, -1\n")
    return t
```

```python
from common import *
EXP = os.environ.get('EXP', '').split(',')

WFR = 112
ACC = [12, 28]
XR = 44; NXR = 7
TMP = 72
PK = 88
VW = 96; VX = 97
VRD = 98
VOUT = 110; VC2 = 111
VOUT2 = 10
PD = 4
SLOT = 24576
ORDER = [0, 1, 4, 5, 2, 3]
def slot_of(S): return ORDER[S % 6]

def dma_x(S):
    step, j = divmod(S, 3)
    g = []
    for bb in range(3):
        o = []
        if bb == 0:
            if S < 18: o.append(I(f"s_add_u32 s37, s35, {step*64*1152 + 384*j}"))
            else: o.append(I(f"s_add_u32 s37, s33, {384*j}"))
        o.append(I(f"s_add_u32 m0, s36, {slot_of(S)*SLOT + bb*(1024-128)}"))
        o.append(I(f"buffer_load_dwordx4 v{VX}, s[8:11], s37 offen offset:{128*bb} lds", tag=f"X{S}"))
        g.append(o)
    return g
def flat(g): return [x for l in g for x in l]

def dma_w(chunk):
    base = [49152, 98304, 49152][chunk]
    g = []
    for p in range(6):
        g.append([I(f"s_add_u32 m0, s40, {base + p*1024}"),
                  I(f"buffer_load_dwordx4 v{VW}, s[12:15], s39 offen lds", tag=f"W{chunk}"),
                  I(f"s_add_u32 s39, s39, s38" if p < 5 else "s_add_u32 s39, s39, s51")])
    return g

def read_w(chunk):
    a = TMP + (1 if chunk == 1 else 0)
    return [I(f"ds_read_b64_tr_b16 v[{WFR+4*(chunk*12+ks)+2*h}:{WFR+4*(chunk*12+ks)+2*h+1}], v{a} offset:{(16*ks+4*h)*256}", tag=f"wr{chunk}")
            for ks in range(12) for h in range(2)]

def x_read(t):
    S, ks = divmod(t, 12)
    bb, kq = divmod(ks, 4)
    sl = slot_of(S)
    r = XR + 4 * (t % NXR)
    return I(f"ds_read_b128 v[{r}:{r+3}], v{VRD + 4*(sl//2) + kq} offset:{(sl % 2)*SLOT + bb*1024}", tag=f"xr{t}")

def mfma(t, cls):
    step, kk = divmod(t, 36)
    a = ACC[step % 2]; r = XR + 4 * (t % NXR)
    c = "0" if kk == 0 else f"v[{a}:{a+15}]"
    x = f"v[{r}:{r+3}]"; w = f"v[{WFR+4*kk}:{WFR+4*kk+3}]"
    if cls == 'N': x, w = w, x
    return I(f"v_mfma_f32_32x32x16_bf16 v[{a}:{a+15}], {x}, {w}, {c}")

def out_soff(step, mul):
    if step < 6: return [I(f"s_add_u32 s45, s42, {2*step}"), I(f"s_mul_i32 s45, s45, {mul}")]
    return [I(f"s_mul_i32 s45, s44, {mul}")]

def epi_gelu(step, cls):
    a = ACC[step % 2]
    o = out_soff(step, 4*36864 if cls == 'G' else 2*92160)
    for g in range(4):
        seqs = []
        for i in range(4):
            u = a + 4*g + i; t = TMP + 8 + (4*g + i) % 8
            seqs.append([I(f"v_mul_f32 v{t}, v{u}, v{u}"), I(f"v_fmaak_f32 v{t}, v{t}, v{VC2}, {f32(GELU_C1)}"), I(f"v_mul_f32 v{t}, v{t}, v{u}"),
                         I(f"v_exp_f32 v{t}, v{t}"), I(f"v_add_f32 v{t}, 1.0, v{t}"), I(f"v_rcp_f32 v{t}, v{t}"), I(f"v_mul_f32 v{t}, v{t}, v{u}")])
        o += zipmerge(*seqs)
        t0 = TMP + 8 + (4*g) % 8
        o.append(I(f"v_cvt_pk_bf16_f32 v{PK+2*g}, v{t0}, v{t0+1}"))
        o.append(I(f"v_cvt_pk_bf16_f32 v{PK+2*g+1}, v{t0+2}, v{t0+3}"))
        if g % 2 == 1:
            c = g // 2
            o.append(I(f"buffer_store_dwordx4 v[{PK+4*c}:{PK+4*c+3}], v{VOUT if c == 0 else VOUT2}, s[20:23], s45 offen"))
    return o

def epi_lin(step, cls):
    a = ACC[step % 2]; t1 = TMP + 8
    o = out_soff(step, 1280)
    for p in range(8):
        o += [I(f"v_mul_f32 v{t1+2*(p%2)}, s43, v{a+2*p}"), I(f"v_mul_f32 v{t1+2*(p%2)+1}, s43, v{a+2*p+1}"),
              I(f"v_cvt_pk_bf16_f32 v{PK+p}, v{t1+2*(p%2)}, v{t1+2*(p%2)+1}")]
        if p % 4 == 3:
            c = p // 4
            o.append(I(f"buffer_store_dwordx4 v[{PK+4*c}:{PK+4*c+3}], v{VOUT}, s[20:23], s45 offen offset:{640*c}"))
    return o

def epi_gate(step, cls):
    a = ACC[step % 2]; t = TMP
    o = out_soff(step, 128)
    for r in range(16): o.append(I(f"v_mul_f32 v{t+r}, {f32(-LOG2E)}, v{a+r}"))
    for r in range(16): o.append(I(f"v_exp_f32 v{t+r}, v{t+r}"))
    for r in range(16): o.append(I(f"v_add_f32 v{t+r}, 1.0, v{t+r}"))
    for r in range(16): o.append(I(f"v_rcp_f32 v{t+r}, v{t+r}"))
    for q in range(4):
        o.append(I(f"buffer_store_dwordx4 v[{t+4*q}:{t+4*q+3}], v{VOUT}, s[20:23], s45 offen offset:{64*(q>>1) + 16*(q&1)}"))
    return o

BPOS = 12 - PD - 1
LAST_T = 7*36 - 1
def step_stream(step, cls, pend, epi):
    o = []
    ne = len(epi); done = 0
    for kk in range(36):
        t = step * 36 + kk
        S, ks = divmod(t, 12)
        o.append(mfma(t, cls))
        if ks == BPOS and S < 18:
            nxt = S + 1
            if nxt in (1, 2):
                o += flat(pend); del pend[:]
                o += [WAITVM([f"W{nxt}", f"X{nxt}"]), I("s_barrier")]
                o += read_w(nxt) if cls != 'T' else []
                o += [WAITDS(f"wr{nxt}"), I("s_barrier")]
                if nxt == 1: pend += dma_x(2) + dma_x(3)
                else: pend += dma_x(4) + dma_x(5) + dma_x(6)
            elif nxt == 18:
                o += flat(pend); del pend[:]
                o += [WAITVM(["X18", "X19", "X20"]), I("s_barrier")]
                for r in list(range(4)) + list(range(8, 12)): o.append(I(f"v_add_u32 v{VRD+r}, s49, v{VRD+r}"))
            else:
                o += [WAITVM(f"X{nxt}"), I("s_barrier")]
                if S + 5 <= 20: pend += dma_x(S + 5)
                if S in (4, 6) and 'nopf' not in EXP: o += prefetch((S - 4)//2)
        elif pend and (ks % 4 == (BPOS + 1) % 4 or len(pend) > 3 or S < 2 or S in (15, 16)):
            o += pend.pop(0)
        if t + PD + 1 <= LAST_T: o.append(x_read(t + PD + 1))
        if kk % 2 == 1 and t + 2 <= LAST_T: o.append(WAITDS(f"xr{t+2}"))
        if kk >= 2:
            tgt = (kk - 1) * ne // 34
            o += epi[done:tgt]; done = tgt
    o += epi[done:]
    return o

def class_code(cls, st, pend):
    epi_ = {'L': epi_lin, 'G': epi_gelu, 'N': epi_gelu, 'T': epi_gate}[cls]
    epi = lambda s: epi_(s, cls)
    o = []
    if cls == 'L':
        o += [I("s_lshl_b32 s47, s46, 5"), I("v_and_b32 v4, 31, v1"), I("v_add_u32 v4, s47, v4"),
              I("v_mul_u32_u24 v5, 3641, v4"), I("v_lshrrev_b32 v5, 16, v5"),
              I("v_lshlrev_b32 v4, 4, v4"), I(f"v_mul_u32_u24 v5, {81920-288}, v5"),
              I("v_mul_u32_u24 v7, 320, v6"), I(f"v_add3_u32 v{VOUT}, v4, v5, v7"),
              I("s_cmp_lt_u32 s46, 18"), I(f"s_cselect_b32 s43, {f32(QSCALE)}, 1.0")]
    elif cls == 'G':
        o += [I("v_mul_u32_u24 v4, 36864, v6"), I("v_and_b32 v5, 31, v1"), I("v_lshl_add_u32 v4, v5, 4, v4"),
              I("s_sub_u32 s47, s46, 72"), I("s_lshl_b32 s47, s47, 9"), I(f"s_add_u32 s47, s47, {WS_Z}"), I(f"v_add_u32 v{VOUT}, s47, v4"),
              I(f"v_add_u32 v{VOUT2}, {2*36864}, v{VOUT}"), I(f"v_mov_b32 v{VC2}, {f32(GELU_C2)}")]
    elif cls == 'N':
        o += [I("v_lshrrev_b32 v4, 4, v11"), I("s_mov_b32 s47, 92160"), I("v_mul_lo_u32 v4, v4, s47"),
              I("v_and_b32 v5, 15, v11"), I("v_lshl_add_u32 v5, v6, 4, v5"), I("v_lshl_add_u32 v4, v5, 4, v4"),
              I("s_lshl_b32 s47, s46, 10"), I(f"s_add_u32 s47, s47, {WS_ACT + 18*1024}"), I(f"v_add_u32 v{VOUT}, s47, v4"),
              I(f"v_add_u32 v{VOUT2}, 512, v{VOUT}"), I(f"v_mov_b32 v{VC2}, {f32(GELU_C2)}")]
    else:
        o += srd(24, 26, 27, 1152)
        o += [I("v_lshlrev_b32 v4, 4, v6")]
        for kk in range(36):
            o.append(I(f"buffer_load_dwordx4 v[{WFR+4*kk}:{WFR+4*kk+3}], v4, s[24:27], 0 offen offset:{32*kk}"))
        o += [I("v_and_b32 v5, 31, v1"), I("s_sub_u32 s47, s46, 54"), I("v_add_u32 v5, s47, v5"),
              I("v_lshlrev_b32 v5, 26, v5"), I("v_lshl_add_u32 v5, v6, 5, v5"), I(f"v_add_u32 v{VOUT}, {WS_G}, v5")]
    o += stamp(2) + [WAITVM(["W0", "X0"])] + stamp(3) + [I("s_barrier")]
    rw = read_w(0) if cls != 'T' else []
    o += rw[:4] + [x_read(t) for t in range(PD + 1)] + rw[4:]
    pend = list(pend)
    o += flat(pend[:3]); pend = pend[3:]
    o += [WAITDS("wr0"), I("s_barrier")]
    pend += dma_w(2)
    for step in range(6):
        o += stamp(4 + step) + step_stream(step, cls, pend, epi(step - 1) if step else [])
    assert not pend
    o += stamp(10)
    if 'nostore' in EXP: o = [x for x in o if not x.mn.startswith('buffer_store')]
    txt = ""
    if 'nocpf' not in EXP:
        txt = code_prefetch(f"K1_{cls}_body", 2048, 32, 1, 2, 16) + f"K1_{cls}_body:\n"
        st.vmq.append((set(), None))
    a, st = finalize(o, st)
    txt += text_of(a) + "\n"
    txt += f"    s_cmp_eq_u32 s48, 0\n    s_cbranch_scc1 K1_{cls}_fin\n"
    st.pos += 2
    st2 = st.clone()
    a, _ = finalize(step_stream(6, cls, [], epi(5)) + epi(6), st)
    txt += text_of(a) + "\n    s_endpgm\n"
    txt += f"K1_{cls}_fin:\n"
    if cls == 'T': o = epi(5)
    else: o = wf_loads() + epi(5) + wf_store()
    a, _ = finalize(o, st2)
    txt += text_of(a) + "\n    s_endpgm\n"
    return txt

def wf_loads():
    b = [I("s_load_dwordx2 s[52:53], s[0:1], 16"), I("s_load_dwordx2 s[54:55], s[0:1], 56"),
         I("s_lshl_b32 s48, s30, 2"), I("s_add_u32 s48, s48, s31"), I("s_lshl_b32 s48, s48, 2"), I("s_and_b32 s50, s32, 3"), I("s_add_u32 s48, s48, s50"),
         I("s_cmp_lt_u32 s31, 4"), I("s_cselect_b32 s48, s48, 1000"),
         I("s_mov_b32 s27, 0x00020000"),
         I("s_mul_i32 s51, s48, 729"), I("s_lshr_b32 s51, s51, 16"),
         I("s_mul_i32 s49, s51, 90"), I("s_sub_u32 s49, s48, s49"),
         I("s_mul_i32 s51, s51, 144"),
         I("s_sub_u32 s41, s49, 18"), I("s_lshl_b32 s41, s41, 5"),
         I("s_mov_b32 s56, 8"), I("s_mov_b32 s57, 2"), I("s_mov_b32 s58, 16"), I("s_mov_b32 s59, 4"),
         I("s_sub_u32 s47, s49, 16"), I("s_mul_i32 s47, s47, 288"), I("s_add_u32 s47, s47, 16"),
         I(f"s_mov_b32 s26, {2304*1152}"), I("s_waitcnt lgkmcnt(0)"),
         I("s_cmp_lt_u32 s49, 18"),
         I("s_cselect_b32 s24, s52, s54"), I("s_cselect_b32 s25, s53, s55"), I(f"s_cselect_b32 s26, {576*1152}, s26"),
         I("s_cselect_b32 s41, s47, s41"), I("s_cselect_b32 s56, 36, s56"), I("s_cselect_b32 s57, 18, s57"),
         I("s_cselect_b32 s58, 144, s58"), I("s_cselect_b32 s59, 72, s59"),
         I("s_mul_i32 s47, s49, 36"),
         I("s_cmp_lt_u32 s49, 16"),
         I("s_cselect_b32 s41, s47, s41"), I("s_cselect_b32 s56, 8, s56"), I("s_cselect_b32 s57, 2, s57"),
         I("s_cselect_b32 s58, 18, s58"), I("s_cselect_b32 s59, 4, s59"),
         I("s_mulk_i32 s41, 1152"), I("s_mulk_i32 s56, 1152"), I("s_mulk_i32 s57, 1152"), I("s_mulk_i32 s58, 1152"), I("s_mulk_i32 s59, 1152"),
         I("s_add_u32 s41, s41, s51"),
         I("v_mul_lo_u32 v4, v6, s57"), I("v_bfe_u32 v5, v1, 4, 1"), I("v_mul_u32_u24 v5, 1152, v5"),
         I("v_and_b32 v7, 15, v1"), I("v_cmp_lt_u32 vcc, 8, v7"), I("v_lshlrev_b32 v7, 4, v7"), I("v_add3_u32 v4, v4, v5, v7"),
         I("v_mov_b32 v5, 0x7f000000"), I("v_cndmask_b32 v11, v4, v5, vcc"),
         I("s_cmp_lt_u32 s48, 720"), I("s_cselect_b32 s26, s26, 0"),
         I("s_mul_i32 s49, s48, 5120"), I(f"s_add_u32 s49, s49, {WS_WF}"), I("s_cmp_lt_u32 s48, 720"), I("s_cselect_b32 s49, s49, 0x7f000000"),
         I("s_lshl_b32 s47, s50, 13"), I("s_add_u32 s47, s47, 49152"), I("s_cmp_lt_u32 s50, 3"), I("s_cselect_b32 s50, s47, 122880")]
    for p in range(8):
        b.append(I(f"s_add_u32 m0, s50, {1024*p}"))
        if p == 0: src = "s41"
        else:
            src = "s47"
            terms = (["s58"] if p & 4 else []) + (["s59"] if p & 2 else []) + (["s56"] if p & 1 else [])
            b.append(I(f"s_add_u32 s47, s41, {terms[0]}"))
            for t in terms[1:]: b.append(I(f"s_add_u32 s47, s47, {t}"))
        b.append(I(f"buffer_load_dwordx4 v11, s[24:27], {src} offen lds", tag="WFD"))
    return b
def wf_store():
    P = XR
    b = [I("v_lshrrev_b32 v4, 4, v1"), I("v_lshlrev_b32 v4, 11, v4"), I("v_bfe_u32 v5, v1, 2, 2"), I("v_lshl_add_u32 v4, v5, 8, v4"),
         I("v_and_b32 v5, 3, v1"), I("v_lshl_add_u32 v4, v5, 3, v4"), I("v_add_u32 v4, s50, v4"), I("v_lshlrev_b32 v5, 4, v1"), WAITVM("WFD")]
    for nt in range(5):
        for h in range(2): b.append(I(f"ds_read_b64_tr_b16 v[{P+4*nt+2*h}:{P+4*nt+2*h+1}], v4 offset:{1024*h + 32*nt}"))
    for nt in range(5):
        if nt == 4: b.append(I("s_add_u32 s49, s49, 4096"))
        b.append(I(f"buffer_store_dwordx4 v[{P+4*nt}:{P+4*nt+3}], v5, s[20:23], s49 offen offset:{1024*(nt%4)}"))
    return b

def prefetch(i):
    if i == 0:
        return [I("s_sub_u32 s47, s41, 1296"), I(f"s_mov_b32 s18, {576*1152}"),
                I("s_cmp_lt_u32 s41, 1296"), I("s_cselect_b32 s16, s54, s52"), I("s_cselect_b32 s17, s55, s53"), I(f"s_cselect_b32 s18, {2304*1152}, s18"),
                I("s_cselect_b32 s47, s41, s47"), I("s_lshl_b32 s47, s47, 11"),
                NOWR(I("buffer_load_dword v9, v8, s[16:19], s47 offen"))]
    return [I("s_mov_b32 s16, s56"), I("s_mov_b32 s17, s57"), I("s_lshl_b32 s47, s41, 12"), I("s_add_u32 s18, s47, 1024"),
            NOWR(I("buffer_load_dword v9, v8, s[16:19], s47 offen"))]

def late_setup():
    o = [I("v_and_b32 v4, 0x13, v1"),
         I("v_lshrrev_b32 v5, 1, v1"), I("v_and_b32 v5, 4, v5"),
         I("v_lshlrev_b32 v7, 1, v1"), I("v_and_b32 v7, 8, v7"),
         I("v_or3_b32 v11, v4, v5, v7"),
         I("v_bfe_u32 v5, v11, 1, 3"),
         I("v_xor_b32 v5, v5, v6"), I("v_lshlrev_b32 v5, 4, v5"),
         I("v_and_b32 v7, 7, v11"), I("v_lshl_add_u32 v5, v7, 7, v5"),
         I("v_lshrrev_b32 v7, 3, v11"), I("v_mul_u32_u24 v7, 3072, v7"),
         I("s_mul_i32 s47, s34, 12288"), I(f"v_add3_u32 v{VRD}, s47, v5, v7")]
    for kq in range(1, 4): o.append(I(f"v_xor_b32 v{VRD+kq}, {32*kq}, v{VRD}"))
    for kq in range(4):
        o += [I(f"v_add_u32 v{VRD+4+kq}, {2*SLOT}, v{VRD+kq}"), I(f"v_add_u32 v{VRD+8+kq}, {4*SLOT}, v{VRD+kq}")]
    o += [I("v_bfe_u32 v4, v1, 2, 2"),
          I("v_lshl_add_u32 v5, v6, 3, v4"), I("v_lshlrev_b32 v5, 8, v5"),
          I("s_and_b32 s47, s32, 3"), I("v_xor_b32 v4, s47, v4"), I("v_lshl_add_u32 v5, v4, 6, v5"),
          I("v_bfe_u32 v4, v1, 4, 1"), I("v_lshl_add_u32 v5, v4, 5, v5"),
          I("v_and_b32 v4, 3, v1"), I("v_lshl_add_u32 v5, v4, 3, v5"),
          I(f"v_add_u32 v{TMP}, 49152, v5"), I(f"v_add_u32 v{TMP+1}, 98304, v5")]
    o += [I("s_lshr_b32 s47, s31, 1"), I("s_add_u32 s47, s47, 30"), I(f"s_mul_i32 s33, s47, {64*1152}"),
          I("s_add_u32 s44, s31, 60"),
          I("s_cmp_lt_u32 s31, 4"), I("s_cselect_b32 s33, s33, 0x7f000000"), I("s_cselect_b32 s48, 1, 0"),
          I("s_cmp_eq_u32 s34, 0"), I("s_cselect_b32 s48, s48, 0"),
          I("s_and_b32 s49, s31, s48"), I("s_mul_i32 s49, s49, 12288"),
          I("s_mul_i32 s42, s31, 12"), I("s_add_u32 s42, s42, s34"),
          I("s_lshl_b32 s41, s2, 3"), I("s_add_u32 s41, s41, s32"), I("v_lshlrev_b32 v8, 7, v1"), I("s_mov_b32 s19, 0x00020000"),
          I("v_mov_b32 v9, 0x7f000000"), I("v_cmp_gt_u32 vcc, 16, v1"), I("v_cndmask_b32 v8, v9, v8, vcc")]
    return o

def build():
    o = [I("s_load_dwordx4 s[4:7], s[0:1], 0"), I("s_load_dwordx2 s[24:25], s[0:1], 32"),
         I("s_load_dwordx2 s[26:27], s[0:1], 64"), I("s_load_dwordx2 s[28:29], s[0:1], 88"),
         I("s_load_dwordx2 s[52:53], s[0:1], 16"), I("s_load_dwordx2 s[54:55], s[0:1], 56"), I("s_load_dwordx2 s[56:57], s[0:1], 40"),
         I("v_and_b32 v1, 63, v0"), I("v_lshrrev_b32 v4, 6, v0"), I("v_lshrrev_b32 v6, 5, v1"),
         I("v_readfirstlane_b32 s32, v4"),
         I("s_and_b32 s47, s2, 7"), I("s_lshr_b32 s46, s2, 3"),
         I("s_mul_i32 s45, s46, 52"), I("s_lshr_b32 s45, s45, 8"),
         I("s_mul_i32 s44, s45, 5"), I("s_sub_u32 s31, s46, s44"),
         I("s_lshl_b32 s30, s45, 3"), I("s_add_u32 s30, s30, s47"),
         RAW("    s_cmp_lt_u32 s2, 240\n    s_cbranch_scc1 K1_map_done\n    s_cmp_ge_u32 s2, 250\n    s_cbranch_scc1 K1_exit"),
         I("s_sub_u32 s31, s2, 240"), I("s_mov_b32 s30, 48"),
         RAW("    s_cmp_lt_u32 s31, 5\n    s_cbranch_scc1 K1_map_done"),
         I("s_sub_u32 s31, s31, 5"), I("s_mov_b32 s30, 49"),
         RAW("K1_map_done:"),
         I("s_and_b32 s33, s32, 3"), I("s_lshr_b32 s34, s32, 2"),
         I("s_mul_i32 s36, s32, 3072"), I("s_mul_i32 s40, s32, 6144"),
         I("s_sub_u32 s47, s30, 13"), I("s_movk_i32 s50, 3456"), I("s_cmp_lt_u32 s47, 36"),
         I("s_cselect_b32 s58, 1, 0"), I("s_cselect_b32 s50, 9216, s50"), I("s_cselect_b32 s45, s47, s30"),
         I("s_cmp_eq_u32 s30, 49"), I("s_cselect_b32 s45, 13, s45"),
         I("s_lshl_b32 s46, s45, 2"), I("s_add_u32 s46, s46, s33"),
         I("s_lshl_b32 s38, s50, 2"), I("s_mul_i32 s51, s50, 172"),
         I("s_mul_i32 s39, s32, 24"), I("s_mul_i32 s39, s39, s50"), I("s_lshl_b32 s47, s45, 8"), I("s_add_u32 s39, s39, s47"),
         I("v_lshrrev_b32 v4, 4, v1"), I("v_mul_lo_u32 v2, v4, s50"),
         I("v_bfe_u32 v5, v1, 2, 2"), I("v_xor_b32 v5, v5, v4"), I("v_lshl_add_u32 v2, v5, 6, v2"),
         I("v_and_b32 v5, 3, v1"), I(f"v_lshl_add_u32 v{VW}, v5, 4, v2"),
         I("s_mul_i32 s14, s50, 576"), I("s_mov_b32 s15, 0x00020000"),
         I("v_lshrrev_b32 v2, 3, v0"), I("v_mul_u32_u24 v2, 1152, v2"),
         I("v_bfe_u32 v4, v0, 4, 3"), I("v_and_b32 v5, 7, v0"), I("v_xor_b32 v4, v4, v5"),
         I(f"v_lshl_add_u32 v{VX}, v4, 4, v2"),
         I(f"s_mul_i32 s35, s31, {6*64*1152}"),
         I(f"s_mov_b32 s10, {2048*1152}"), I("s_mov_b32 s11, 0x00020000"),
         I("s_waitcnt lgkmcnt(0)"),
         I("s_cmp_eq_u32 s58, 1"), I("s_cselect_b32 s12, s24, s6"), I("s_cselect_b32 s13, s25, s7"),
         I("s_mov_b32 s8, s4"), I("s_mov_b32 s9, s5")]
    o += flat(dma_w(0)) + flat(dma_x(0))
    o += srd(20, 28, 29, WS_USED)
    o += late_setup()
    o += [I("s_barrier")]
    nxt = dma_x(1) + dma_w(1)
    o += flat(nxt[:3])
    o += [RAW("    s_cmp_ge_u32 s2, 128\n    s_cbranch_scc1 K1_noconst"),
          I("s_mul_i32 s47, s2, 40960"), I(f"s_add_u32 s47, s47, {WS_QKV + 32*81920 + 288}"),
          I("v_lshrrev_b32 v4, 2, v0"), I("v_mul_u32_u24 v4, 320, v4"), I("v_and_b32 v5, 3, v0"), I("v_lshl_add_u32 v4, v5, 3, v4"),
          I("v_mov_b32 v2, 0x3f803f80"), I("v_mov_b32 v3, 0x3f803f80"),
          RAW("    buffer_store_dwordx2 v[2:3], v4, s[20:23], s47 offen\n    s_branch K1_const_done\nK1_noconst:\n    s_lshl_b32 s47, s2, 12\n"
              f"    s_add_u32 s47, s47, {WS_CNT - 128*4096}\n    s_cmp_lt_u32 s2, 131\n    s_cselect_b32 s47, s47, 0x7f000000\n    v_lshlrev_b32 v4, 3, v0\n    v_mov_b32 v2, 0\n    v_mov_b32 v3, 0\n    buffer_store_dwordx2 v[2:3], v4, s[20:23], s47 offen\nK1_const_done:")]
    a, st = finalize(o)
    st.vmq.append((set(), None)); st.pos += 2
    txt = text_of(a) + ("\n    s_cmp_eq_u32 s58, 0\n    s_cbranch_scc1 K1_LT\n    s_cmp_lt_u32 s46, 72\n    s_cbranch_scc1 K1_N\n")
    st.pos += 2
    txt += class_code('G', st.clone(), nxt[3:])
    txt += "K1_N:\n" + class_code('N', st.clone(), nxt[3:])
    txt += "K1_LT:\n    s_cmp_ge_u32 s46, 54\n    s_cbranch_scc1 K1_T\n" + class_code('L', st.clone(), nxt[3:])
    txt += "K1_T:\n" + class_code('T', st.clone(), nxt[3:])
    txt += "K1_exit:\n"
    return kernel_text("k1_gemm_kernel", txt, 256, kidx=0)

def launch(): return ("k1_gemm_kernel", 256, 512, 147456, build())
```

```python
from common import *
EXP = os.environ.get('EXP', '').split(',')

SLOTB = 20480
L_Q = 61952
L_MISC = 61440
LDS_BYTES = 74240
QF = 16
KF = 32
VF = 48
SS = 64
PP = 128
OO = 144
VKA, VKB, VVA = 4, 5, 6
NKA, NKB, NVA = 7, 8, 9
LKA, LKB, LVA = 10, 11, 12
VD = 13; VD4 = 14
T0 = 176

def S(buf, q): return SS + 32*buf + 16*q
def k_reads(kt, nxt=False):
    b = KF + 8 * (kt % 2)
    a1, a2 = (NKA, NKB) if nxt else (VKA, VKB)
    return [I(f"ds_read_b64_tr_b16 v[{b}:{b+1}], v{a1} offset:{kt*1280}"),
            I(f"ds_read_b64_tr_b16 v[{b+2}:{b+3}], v{a1} offset:{kt*1280+64}"),
            I(f"ds_read_b64_tr_b16 v[{b+4}:{b+5}], v{a2} offset:{kt*1280}")]
def v_reads(kt, nxt=False):
    b = VF + 8 * (kt % 2); a = NVA if nxt else VVA
    return [I(f"ds_read_b128 v[{b+4*kb}:{b+4*kb+3}], v{a} offset:{kt*1280+640*kb}") for kb in range(2)]
def qk(kt, q):
    b = KF + 8 * (kt % 2); s = S(kt % 2, q); qf = QF + 8*q
    return [I(f"v_mfma_f32_32x32x16_bf16 v[{s}:{s+15}], v[{b}:{b+3}], v[{qf}:{qf+3}], 0"),
            I(f"v_mfma_f32_32x32x16_bf16 v[{s}:{s+15}], v[{b+4}:{b+7}], v[{qf+4}:{qf+7}], v[{s}:{s+15}]")]
def pv(kt, q, kb):
    b = VF + 8 * (kt % 2) + 4*kb; o = OO + 16*q; p = PP + 8*q + 4*kb
    return I(f"v_mfma_f32_32x32x16_bf16 v[{o}:{o+15}], v[{b}:{b+3}], v[{p}:{p+3}], v[{o}:{o+15}]")
def softmax_half(kt, q, kb):
    s = S(kt % 2, q) + 8*kb; p = PP + 8*q + 4*kb
    o = []
    for i in range(8): o.append(I(f"v_exp_f32 v{s+i}, v{s+i}"))
    c = [I(f"v_cvt_pk_bf16_f32 v{p+i}, v{s+2*i}, v{s+2*i+1}") for i in range(4)]
    return o[:4] + [c[0]] + o[4:6] + [c[1]] + o[6:8] + [c[2], c[3]]

def dma_chunk():
    o = [I("s_mov_b32 m0, s40")]
    for p in range(4): o.append(I(f"buffer_load_dwordx4 v{VD}, s[8:11], s41 offen offset:{1024*p} lds", tag="KV"))
    o += [I("s_add_u32 m0, s40, 4096"), I(f"buffer_load_dwordx4 v{VD4}, s[8:11], s41 offen lds", tag="KV")]
    return o

def tile_body(kt):
    n1 = kt + 1; n2 = kt + 2
    V = softmax_half(kt, 0, 0) + softmax_half(kt, 0, 1) + softmax_half(kt, 1, 0) + softmax_half(kt, 1, 1)
    qa = qk(n1, 0); qb = qk(n1, 1)
    kr = k_reads(n2 % 8, n2 >= 8); vr = v_reads(n1 % 8, n1 >= 8)
    M = [pv(kt - 1, 1, 1), qa[0], qa[1], pv(kt, 0, 0), qb[0], pv(kt, 0, 1), qb[1], pv(kt, 1, 0)]
    extra = {0: [kr[0]], 1: [kr[1]], 2: [kr[2]], 3: [vr[0]], 4: [vr[1]]}
    o = [I("s_waitcnt lgkmcnt(0)")]
    for i in range(8):
        o += V[6*i:6*i+1]; o.append(M[i]); o += V[6*i+1:6*i+4] + extra.get(i, []) + V[6*i+4:6*i+6]
    return o

def set_m(mreg, q, t):
    q2 = QF + 8*q + 4
    return [I(f"v_and_b32 v{t}, 0xffff0000, v{mreg}"),
            I(f"v_sub_f32 v{t+1}, v{mreg}, v{t}"),
            I(f"v_and_b32 v{t+2}, 0xffff0000, v{t+1}"),
            I(f"v_sub_f32 v{t+1}, v{t+1}, v{t+2}"),
            I(f"v_lshrrev_b32 v{t}, 16, v{t}"),
            I(f"v_or_b32 v{t}, v{t}, v{t+2}"),
            I(f"v_xor_b32 v{t}, 0x80008000, v{t}"),
            I(f"v_lshrrev_b32 v{t+1}, 16, v{t+1}"),
            I(f"v_xor_b32 v{t+1}, 0x8000, v{t+1}"),
            I(f"v_cndmask_b32 v{q2+1}, 0, v{t}, s[44:45]"),
            I(f"v_cndmask_b32 v{q2+2}, 0, v{t+1}, s[44:45]")]

def max16(dst, s, init=False):
    o = []
    if init: o.append(I(f"v_max3_f32 v{dst}, v{s}, v{s+1}, v{s+2}")); rest = list(range(3, 16))
    else: rest = list(range(16))
    while len(rest) >= 2:
        o.append(I(f"v_max3_f32 v{dst}, v{dst}, v{s+rest[0]}, v{s+rest[1]}")); rest = rest[2:]
    if rest: o.append(I(f"v_max_f32 v{dst}, v{dst}, v{s+rest[0]}"))
    return o
def xhalf_max(r, t):
    return [I(f"v_mov_b32 v{t}, v{r}"), I(f"v_permlane32_swap_b32 v{r}, v{t}"), I(f"v_max_f32 v{r}, v{r}, v{t}")]

def dpp_reduce(regs):
    o = []
    for m in ("row_shr:1", "row_shr:2", "row_shr:4", "row_shr:8", "row_bcast:15 row_mask:0xa", "row_bcast:31 row_mask:0xc"):
        for r in regs: o.append(I(f"v_add_f32_dpp v{r}, v{r}, v{r} {m} bound_ctrl:0" if 'shr' in m else f"v_add_f32_dpp v{r}, v{r}, v{r} {m}"))
    return o

def ln_loads():
    R = 64
    o = [I("v_lshrrev_b32 v2, 4, v0"), I("s_mov_b32 s46, 589824"), I("v_mul_lo_u32 v2, v2, s46"),
         I("v_and_b32 v3, 15, v0"), I("v_lshl_add_u32 v15, v3, 4, v2"),
         I("s_lshl_b32 s46, s2, 8"), I(f"s_add_u32 s46, s46, {WS_Z + 144*65536}")]
    for i in range(9):
        o.append(I(f"buffer_load_dwordx4 v[{R+4*i}:{R+4*i+3}], v15, s[8:11], s46 offen"))
        if i < 8: o.append(I("s_add_u32 s46, s46, 65536"))
    return o

def ln_compute():
    R = 64; F = 100; A = 176; B = 184
    o = []
    for i in range(36):
        o += [I(f"v_lshlrev_b32 v{F+2*i}, 16, v{R+i}"), I(f"v_and_b32 v{F+2*i+1}, 0xffff0000, v{R+i}")]
    def cross(slot):
        x = dpp_reduce(range(A, A+8))
        x += [I("s_mov_b32 exec_lo, 0"), I("s_mov_b32 exec_hi, 0x80000000"),
              I(f"ds_write_b128 v3, v[{A}:{A+3}] offset:{L_MISC + slot*128}"), I(f"ds_write_b128 v3, v[{A+4}:{A+7}] offset:{L_MISC + slot*128 + 16}"),
              I("s_mov_b64 exec, -1"), WAITDS(), I("s_barrier")]
        for w in range(4):
            for hf in range(2):
                x.append(I(f"ds_read_b128 v[{B+8*w+4*hf}:{B+8*w+4*hf+3}], v2 offset:{L_MISC + slot*128 + 32*w + 16*hf}"))
        for j in range(8): x.append(I(f"v_add_f32 v{B+j}, v{B+j}, v{B+8+j}"))
        for j in range(8): x.append(I(f"v_add_f32 v{B+16+j}, v{B+16+j}, v{B+24+j}"))
        for j in range(8): x.append(I(f"v_add_f32 v{A+j}, v{B+j}, v{B+16+j}"))
        return x
    o += [I("v_mov_b32 v2, 0"), I("s_lshl_b32 s46, s32, 5"), I("v_mov_b32 v3, s46")]
    for j in range(8): o.append(I(f"v_add_f32 v{A+j}, v{F+j}, v{F+8+j}"))
    for i in range(2, 9):
        for j in range(8): o.append(I(f"v_add_f32 v{A+j}, v{A+j}, v{F+8*i+j}"))
    o += cross(0)
    for j in range(8): o.append(I(f"v_mul_f32 v{A+j}, {f32(1.0/2304)}, v{A+j}"))
    for i in range(9):
        for j in range(8): o.append(I(f"v_sub_f32 v{F+8*i+j}, v{F+8*i+j}, v{A+j}"))
    for j in range(8): o.append(I(f"v_mul_f32 v{A+j}, v{F+j}, v{F+j}"))
    for i in range(1, 9):
        for j in range(8): o.append(I(f"v_fmac_f32 v{A+j}, v{F+8*i+j}, v{F+8*i+j}"))
    o += cross(1)
    o.append(I(f"v_mov_b32 v{B}, {f32(1e-5)}"))
    for j in range(8): o.append(I(f"v_fmamk_f32 v{A+j}, v{A+j}, {f32(1.0/2304)}, v{B}"))
    for j in range(8): o.append(I(f"v_rsq_f32 v{A+j}, v{A+j}"))
    o += [I("s_lshr_b32 s46, s2, 2"), I("s_mul_i32 s46, s46, 9216"), I("s_and_b32 s47, s2, 3"), I("s_lshl_b32 s47, s47, 8"),
          I("s_add_u32 s46, s46, s47"), I(f"s_add_u32 s46, s46, {WS_Z2N}")]
    for i in range(9):
        for j in range(8): o.append(I(f"v_mul_f32 v{F+8*i+j}, v{F+8*i+j}, v{A+j}"))
        for j in range(4): o.append(I(f"v_cvt_pk_bf16_f32 v{R+4*i+j}, v{F+8*i+2*j}, v{F+8*i+2*j+1}"))
        o.append(I(f"buffer_store_dwordx4 v[{R+4*i}:{R+4*i+3}], v15, s[8:11], s46 offen offset:{1024*(i%4)}"))
        if i % 4 == 3: o.append(I("s_add_u32 s46, s46, 4096"))
    return o

def wf_prep():
    L = 216
    pre = [I("s_lshl_b32 s48, s2, 2"), I("s_add_u32 s48, s48, s32"),
           I(f"v_bfe_u32 v{L+16}, v1, 5, 1"), I(f"v_bfe_u32 v{L+17}, v1, 4, 1"),
           I(f"v_and_b32 v{L+18}, 15, v1"), I(f"v_lshlrev_b32 v{L+18}, 1, v{L+18}"), I(f"v_lshlrev_b32 v{L+19}, 4, v1"),
           I("s_mov_b32 s15, 0x00020000"),
           RAW("K2_wf_loop:")]
    b = [I("s_mul_i32 s49, s48, 13108"), I("s_lshr_b32 s49, s49, 16"),
         I("s_mul_i32 s50, s49, 5"), I("s_sub_u32 s50, s48, s50"),
         I("s_mul_i32 s51, s49, 729"), I("s_lshr_b32 s51, s51, 16"),
         I("s_mul_i32 s52, s51, 90"), I("s_sub_u32 s52, s49, s52"),
         I("s_mul_i32 s51, s51, 144"), I("s_lshl_b32 s50, s50, 5"), I("s_add_u32 s50, s50, s51"),
         I("s_sub_u32 s53, s52, 18"), I("s_lshl_b32 s53, s53, 5"),
         I("s_mov_b32 s54, 16"), I("s_mov_b32 s55, 2"), I("s_mov_b32 s56, 8"), I("s_mov_b32 s57, 4"),
         I("s_sub_u32 s58, s52, 16"), I("s_mul_i32 s58, s58, 288"), I("s_add_u32 s58, s58, 16"),
         I("s_cmp_lt_u32 s52, 18"),
         I("s_cselect_b32 s12, s24, s26"), I("s_cselect_b32 s13, s25, s27"),
         I(f"s_mov_b32 s14, {2304*1152}"), I(f"s_cselect_b32 s14, {576*1152}, s14"),
         I("s_cselect_b32 s53, s58, s53"), I("s_cselect_b32 s54, 36, s54"), I("s_cselect_b32 s55, 18, s55"),
         I("s_cselect_b32 s56, 144, s56"), I("s_cselect_b32 s57, 72, s57"),
         I("s_mul_i32 s58, s52, 36"),
         I("s_cmp_lt_u32 s52, 16"),
         I("s_cselect_b32 s53, s58, s53"), I("s_cselect_b32 s54, 8, s54"), I("s_cselect_b32 s55, 2, s55"),
         I("s_cselect_b32 s56, 18, s56"), I("s_cselect_b32 s57, 4, s57"),
         I("s_mulk_i32 s53, 1152"), I("s_mulk_i32 s54, 1152"), I("s_mulk_i32 s55, 1152"), I("s_mulk_i32 s56, 1152"), I("s_mulk_i32 s57, 1152"),
         I("s_add_u32 s53, s53, s50"),
         I(f"v_mul_lo_u32 v{L+20}, v{L+16}, s56"), I(f"v_mul_lo_u32 v{L+21}, v{L+17}, s57"),
         I(f"v_add3_u32 v{L+20}, v{L+20}, v{L+21}, v{L+18}"),
         I("s_add_u32 s55, s53, s55"), I("s_add_u32 s56, s53, s54"), I("s_add_u32 s57, s55, s54")]
    for i, sg in enumerate((53, 55, 56, 57)):
        for e in range(2):
            b.append(I(f"buffer_load_ushort v{L+2*i+e}, v{L+20}, s[12:15], s{sg} offen offset:{1152*e}"))
    b += [I("s_lshl_b32 s49, s48, 10"), I(f"s_add_u32 s49, s49, {WS_WF}")]
    for i in range(4): b.append(I(f"v_lshl_or_b32 v{L+8+i}, v{L+2*i+1}, 16, v{L+2*i}"))
    b += [I(f"buffer_store_dwordx4 v[{L+8}:{L+11}], v{L+19}, s[8:11], s49 offen"),
          I("s_add_u32 s48, s48, 1024"), I("s_cmp_lt_u32 s48, 3600"), I("s_cbranch_scc1 K2_wf_loop")]
    return pre, b

def build():
    o = [RAW("    s_cmp_ge_u32 s2, 256\n    s_cbranch_scc1 K2_exit"),
         I("s_load_dwordx2 s[4:5], s[0:1], 88"), I("s_load_dwordx2 s[24:25], s[0:1], 16"), I("s_load_dwordx2 s[26:27], s[0:1], 56"),
         I("v_and_b32 v1, 63, v0"), I("v_lshrrev_b32 v2, 6, v0"), I("s_nop 0"), I("v_readfirstlane_b32 s32, v2"),
         I("s_and_b32 s30, s2, 7"), I("s_lshl_b32 s30, s30, 2"), I("s_lshr_b32 s46, s2, 6"), I("s_add_u32 s30, s30, s46"),
         I("s_bfe_u32 s31, s2, 0x30003"),
         I(f"v_lshlrev_b32 v{VD}, 4, v1"), I(f"v_add_u32 v{VD4}, 4096, v{VD}"),
         I("s_lshr_b32 s46, s32, 1"), I("s_add_u32 s46, s46, 1"), I("s_lshl_b32 s46, s46, 5"), I("s_add_u32 s46, s46, s30"),
         I("s_mul_i32 s42, s46, 81920"), I("s_and_b32 s46, s32, 1"), I("s_mul_i32 s46, s46, 5120"), I("s_add_u32 s42, s42, s46"),
         I("s_mul_i32 s43, s32, 5120"),
         I("s_mul_i32 s47, s30, 81920"), I("s_lshl_b32 s46, s31, 2"), I("s_add_u32 s46, s46, s32"), I("s_mul_i32 s46, s46, 2560"), I("s_add_u32 s47, s47, s46"),
         I("s_mul_i32 s33, s32, 3072"), I(f"s_add_u32 s33, s33, {L_Q}"),
         I("s_waitcnt lgkmcnt(0)")]
    o += srd(8, 4, 5, WS_USED)
    o += ln_loads()
    o += [I("s_mov_b32 m0, s33")]
    for p in range(3): o.append(I(f"buffer_load_dwordx4 v{VD}, s[8:11], s47 offen offset:{1024*p} lds", tag="Q"))
    o += [I("s_mov_b32 s40, s43"), I("s_mov_b32 s41, s42")] + [Ins(x.text, "KV0") for x in dma_chunk()]
    o += [I(f"s_add_u32 s40, s43, {SLOTB}"), I("s_add_u32 s41, s42, 10240")] + dma_chunk()
    o += [I("v_bfe_u32 v2, v1, 4, 1"), I("v_lshlrev_b32 v2, 1, v2"),
          I("v_and_b32 v3, 1, v1"), I("v_add_u32 v3, v2, v3"), I("v_mul_u32_u24 v3, 320, v3"),
          I("v_bfe_u32 v4, v1, 1, 1"), I("v_lshl_add_u32 v3, v4, 3, v3"),
          I("v_bfe_u32 v5, v1, 2, 2"), I("v_lshlrev_b32 v5, 4, v5"),
          I("v_lshrrev_b32 v6, 5, v1"),
          I(f"v_add3_u32 v{LKB}, v3, v5, 0"), I(f"v_lshl_add_u32 v{LKA}, v6, 7, v{LKB}"), I(f"v_add_u32 v{LKB}, 256, v{LKB}"),
          I("v_mul_u32_u24 v7, 320, v6"), I("v_and_b32 v8, 31, v1"), I("v_lshl_add_u32 v7, v8, 4, v7"), I(f"v_add_u32 v{LVA}, 10240, v7"),
          I("v_add_u32 v2, v2, v4"), I("v_mul_u32_u24 v2, 320, v2"), I("v_and_b32 v3, 1, v1"), I("v_lshl_add_u32 v2, v3, 3, v2"),
          I(f"v_add3_u32 v{KF}, v2, v5, s33"), I(f"v_lshl_add_u32 v{KF+1}, v6, 7, v{KF}"),
          I("v_cmp_gt_u32 s[44:45], 32, v1")]
    o += ln_compute()
    pre, body = wf_prep()
    o += pre
    a, st = finalize(o)
    txt = text_of(a) + "\n"
    a, st = finalize_loop(body, st)
    txt += text_of(a) + "\n"
    o = [WAITVM(["Q", "KV0"])]
    for q in range(2):
        o += [I(f"ds_read_b64_tr_b16 v[{QF+8*q}:{QF+8*q+1}], v{KF+1} offset:{1280*q}"),
              I(f"ds_read_b64_tr_b16 v[{QF+8*q+2}:{QF+8*q+3}], v{KF+1} offset:{1280*q+64}"),
              I(f"ds_read_b64_tr_b16 v[{QF+8*q+4}:{QF+8*q+5}], v{KF} offset:{1280*q+256}")]
    for q in range(2):
        o += [I(f"v_cndmask_b32 v{QF+8*q+4}, 0, v{QF+8*q+4}, s[44:45]"), I(f"v_mov_b32 v{QF+8*q+5}, 0"),
              I(f"v_mov_b32 v{QF+8*q+6}, 0"), I(f"v_mov_b32 v{QF+8*q+7}, 0")]
    for b in range(2):
        o += [I(f"v_mov_b32 v{KF+8*b+6}, 0x3f80"), I(f"v_mov_b32 v{KF+8*b+7}, 0")]
    o += [I("s_mov_b32 s34, 0"), I("s_barrier")]
    o += [I(f"v_mov_b32 v{VKA}, v{LKA}"), I(f"v_mov_b32 v{VKB}, v{LKB}")]
    o += k_reads(0) + qk(0, 0) + qk(0, 1)
    o += max16(T0, S(0, 0), True) + max16(T0+1, S(0, 1), True) + xhalf_max(T0, T0+2) + xhalf_max(T0+1, T0+3)
    o += set_m(T0, 0, T0+4) + set_m(T0+1, 1, T0+8)
    o += [I("s_waitcnt lgkmcnt(0)"), I("s_nop 7"), RAW("K2_main:")]
    a, st = finalize(o, st)
    txt += text_of(a) + "\n"
    o = [I(f"v_mov_b32 v{VKA}, v{LKA}"), I(f"v_mov_b32 v{VKB}, v{LKB}"), I(f"v_mov_b32 v{VVA}, v{LVA}"),
         I(f"v_add_u32 v{NKA}, {SLOTB}, v{LKA}"), I(f"v_add_u32 v{NKB}, {SLOTB}, v{LKB}"), I(f"v_add_u32 v{NVA}, {SLOTB}, v{LVA}"),
         I("s_mov_b32 s35, 0"),
         I(f"s_mov_b32 s36, {2*SLOTB}"),
         I("s_add_u32 s41, s42, 20480")]
    o += stamp(2)
    o += k_reads(0) + k_reads(1) + v_reads(0)
    for r in range(32): o.append(I(f"v_mov_b32 v{OO+r}, 0"))
    for r in range(4): o += [I(f"v_mov_b32 v{PP+12+r}, 0"), I(f"v_mov_b32 v{VF+12+r}, 0")]
    o += qk(0, 0) + qk(0, 1)
    o += [I("s_nop 11"), RAW("K2_loop:")]
    a, st = finalize(o, st)
    txt += text_of(a) + "\n"
    body = []
    for kt in range(8):
        if kt == 5:
            body += [I("s_waitcnt vmcnt(0)"), I("s_barrier"), I("s_add_u32 s40, s43, s36"),
                     RAW("    s_cmp_ge_u32 s35, 6\n    s_cbranch_scc1 K2_nodma")]
            body += [RAW("    " + x.text + ("\n    s_nop 0" if x.text.startswith("s_") else "")) for x in dma_chunk()]
            body += [RAW("K2_nodma:"), I("s_add_u32 s41, s41, 10240")]
        body += tile_body(kt)
    body += [I(f"v_mov_b32 v{VKA}, v{NKA}"), I(f"v_mov_b32 v{VKB}, v{NKB}"), I(f"v_mov_b32 v{VVA}, v{NVA}"),
             I(f"v_add_u32 v{NKA}, s36, v{LKA}"), I(f"v_add_u32 v{NKB}, s36, v{LKB}"), I(f"v_add_u32 v{NVA}, s36, v{LVA}"),
             I(f"s_add_u32 s36, s36, {SLOTB}"), I(f"s_cmp_eq_u32 s36, {3*SLOTB}"), I("s_cselect_b32 s36, 0, s36"),
             I("s_add_u32 s35, s35, 1"), I("s_cmp_lt_u32 s35, 8"), I("s_cbranch_scc1 K2_loop")]
    a, st = finalize_loop(body, st)
    txt += text_of(a) + "\n"
    o = [pv(7, 1, 1)] + stamp(3)
    o += [I("s_lshl_b32 s46, s31, 2"), I("s_add_u32 s46, s46, s32"),
          I("s_lshl_b32 s47, s46, 8"), I(f"s_add_u32 s47, s47, {WS_G}"),
          I("v_and_b32 v2, 31, v1"), I("v_lshlrev_b32 v3, 2, v2"),
          I(f"buffer_load_dword v{T0}, v3, s[8:11], s47 offen"), I(f"buffer_load_dword v{T0+1}, v3, s[8:11], s47 offen offset:128"),
          I(f"v_mov_b32 v{T0+2}, {f32(2.0**100)}"), I("s_mov_b64 s[48:49], -1")]
    for q in range(2):
        for r in range(11):
            o += [I(f"v_cmp_lt_f32 vcc, abs(v{OO+16*q+r}), v{T0+2}")]
            if r >= 8: o += [I("s_orn2_b64 vcc, vcc, s[44:45]")]
            o += [I("s_and_b64 s[48:49], s[48:49], vcc")]
    o += [I("s_cmp_eq_u64 s[48:49], -1"), I("s_cselect_b32 s48, 0, 1"),
          I(f"v_mov_b32 v{T0+3}, s48"), I("s_lshl_b32 s49, s32, 2"), I("v_mov_b32 v4, s49"),
          I(f"ds_write_b32 v4, v{T0+3} offset:{L_MISC+256}"), WAITDS(), I("s_barrier"),
          I("v_mov_b32 v4, 0"), I(f"ds_read_b128 v[{T0+4}:{T0+7}], v4 offset:{L_MISC+256}"),
          I(f"v_or3_b32 v{T0+4}, v{T0+4}, v{T0+5}, v{T0+6}"), I(f"v_or_b32 v{T0+4}, v{T0+4}, v{T0+7}"),
          I(f"v_readfirstlane_b32 s48, v{T0+4}"),
          I("s_andn2_b32 s48, s48, s34"), I("s_cmp_lg_u32 s48, 0"), I("s_cbranch_scc1 K2_fallback")]
    o += [I("s_lshl_b32 s46, s46, 2"), I("s_mul_i32 s46, s46, 92160"), I(f"s_add_u32 s46, s46, {WS_ACT}"),
          I("s_lshr_b32 s47, s30, 1"), I("s_lshl_b32 s47, s47, 10"), I("s_and_b32 s48, s30, 1"), I("s_lshl_b32 s48, s48, 9"),
          I("s_add_u32 s47, s47, s48"), I("s_add_u32 s47, s47, s46"),
          I("s_lshr_b32 s48, s30, 4"), I("s_add_u32 s48, s48, 16"), I("s_lshl_b32 s48, s48, 10"),
          I("s_bfe_u32 s49, s30, 0x20002"), I("s_lshl_b32 s49, s49, 8"), I("s_add_u32 s48, s48, s49"),
          I("s_and_b32 s49, s30, 3"), I("s_lshl_b32 s49, s49, 2"), I("s_add_u32 s48, s48, s49"), I("s_add_u32 s48, s48, s46"),
          I("v_bfe_u32 v3, v1, 4, 1"), I("s_mov_b32 s49, 92160"), I("v_mul_lo_u32 v3, v3, s49"),
          I("v_and_b32 v4, 15, v1"), I("v_lshl_add_u32 v3, v4, 4, v3"),
          I("v_lshrrev_b32 v4, 5, v1"), I("v_lshl_add_u32 v4, v4, 8, v3")]
    for q in range(2):
        O = OO + 16*q; t = T0 + 8 + 16*q
        o += [I(f"v_mov_b32 v{t}, v{O+10}"), I(f"v_mov_b32 v{t+1}, v{O+10}"), I(f"v_permlane32_swap_b32 v{t}, v{t+1}"),
              I(f"v_rcp_f32 v{t}, v{t}"), I(f"v_mul_f32 v{t}, v{t}, v{T0+q}")]
        for r in range(10): o.append(I(f"v_mul_f32 v{O+r}, v{O+r}, v{t}"))
        for r in range(5): o.append(I(f"v_cvt_pk_bf16_f32 v{t+4+r}, v{O+2*r}, v{O+2*r+1}"))
        o.append(I(f"buffer_store_dwordx4 v[{t+4}:{t+7}], v4, s[8:11], s47 offen"))
        o += [I("s_mov_b64 exec, s[44:45]"), I(f"buffer_store_dword v{t+8}, v3, s[8:11], s48 offen"), I("s_mov_b64 exec, -1")]
        if q == 0: o += [I(f"s_add_u32 s47, s47, {2*92160}"), I(f"s_add_u32 s48, s48, {2*92160}")]
    o += [I("s_endpgm")]
    a, _ = finalize(o, st)
    txt += text_of(a) + "\n"
    o = [RAW("K2_fallback:"), I("s_waitcnt vmcnt(0) lgkmcnt(0)"), I("s_nop 15"),
         I("s_mov_b32 s34, 1"), I("s_mov_b32 s35, 0"), I("s_mov_b32 s41, s42"), I("s_mov_b32 s40, s43"),
         I(f"v_mov_b32 v{T0}, 0xff7fffff"), I(f"v_mov_b32 v{T0+1}, 0xff7fffff")]
    for q in range(2): o += [I(f"v_mov_b32 v{QF+8*q+5}, 0"), I(f"v_mov_b32 v{QF+8*q+6}, 0")]
    o += [RAW("K2_fb_chunk:"), I("s_barrier")] + dma_chunk() + [I("s_waitcnt vmcnt(0)"), I("s_barrier"),
          I(f"v_mov_b32 v{VKA}, v{LKA}"), I(f"v_mov_b32 v{VKB}, v{LKB}"), I("s_mov_b32 s36, 0"), RAW("K2_fb_tile:")]
    o += k_reads(0) + qk(0, 0) + qk(0, 1) + max16(T0, S(0, 0)) + max16(T0+1, S(0, 1))
    o += [I(f"v_add_u32 v{VKA}, 1280, v{VKA}"), I(f"v_add_u32 v{VKB}, 1280, v{VKB}"),
          I("s_add_u32 s36, s36, 1"), I("s_cmp_lt_u32 s36, 8"), I("s_cbranch_scc1 K2_fb_tile"),
          I("s_add_u32 s41, s41, 10240"), I("s_add_u32 s35, s35, 1"), I("s_cmp_lt_u32 s35, 8"), I("s_cbranch_scc1 K2_fb_chunk")]
    o += xhalf_max(T0, T0+2) + xhalf_max(T0+1, T0+3) + set_m(T0, 0, T0+4) + set_m(T0+1, 1, T0+8)
    o += [I("s_barrier"), I("s_mov_b32 s41, s42")] + dma_chunk()
    o += [I(f"s_add_u32 s40, s43, {SLOTB}"), I("s_add_u32 s41, s42, 10240")] + dma_chunk()
    o += [I("s_waitcnt vmcnt(0)"), I("s_barrier"), I("s_nop 7"), I("s_branch K2_main")]
    a, _ = finalize(o)
    txt += text_of(a) + "\nK2_exit:\n"
    return kernel_text("k2_attn_kernel", txt, 256, kidx=1)

def launch(): return ("k2_attn_kernel", 256, 256, LDS_BYTES, build())
```

```python
from common import *
import k2
from k2 import (S, k_reads, v_reads, qk, pv, softmax_half, dma_chunk, set_m, max16, xhalf_max, dpp_reduce,
                SLOTB, L_Q, L_MISC, QF, KF, VF, SS, PP, OO, VKA, VKB, VVA, NKA, NKB, NVA, LKA, LKB, LVA, VD, VD4, T0)
EXP = os.environ.get('EXP', '').split(',')
LDS_BYTES = 74240
PRIO_A = int(os.environ.get('PRIO_A', '2')); PRIO_B = int(os.environ.get('PRIO_B', '0'))

def tile_body(kt):
    n1 = kt + 1; n2 = kt + 2
    V = softmax_half(kt, 0, 0) + softmax_half(kt, 0, 1) + softmax_half(kt, 1, 0) + softmax_half(kt, 1, 1)
    qa = qk(n1, 0); qb = qk(n1, 1)
    R = k_reads(n2 % 8, n2 >= 8) + v_reads(n1 % 8, n1 >= 8)
    M = [pv(kt - 1, 1, 1), qa[0], qa[1], pv(kt, 0, 0), qb[0], pv(kt, 0, 1), qb[1], pv(kt, 1, 0)]
    return V, M, R

def role_a():
    o = [I("s_setprio 3")]
    o += [I("s_and_b32 s30, s2, 7"), I("s_lshl_b32 s30, s30, 2"), I("s_lshr_b32 s46, s2, 6"), I("s_add_u32 s30, s30, s46"),
         I("s_bfe_u32 s31, s2, 0x30003"),
         I(f"v_lshlrev_b32 v{VD}, 4, v1"), I(f"v_add_u32 v{VD4}, 4096, v{VD}"),
         I("s_lshr_b32 s46, s32, 1"), I("s_add_u32 s46, s46, 1"), I("s_lshl_b32 s46, s46, 5"), I("s_add_u32 s46, s46, s30"),
         I("s_mul_i32 s42, s46, 81920"), I("s_and_b32 s46, s32, 1"), I("s_mul_i32 s46, s46, 5120"), I("s_add_u32 s42, s42, s46"),
         I("s_mul_i32 s43, s32, 5120"),
         I("s_mul_i32 s47, s30, 81920"), I("s_lshl_b32 s46, s31, 2"), I("s_add_u32 s46, s46, s32"), I("s_mul_i32 s46, s46, 2560"), I("s_add_u32 s47, s47, s46"),
         I("s_mul_i32 s33, s32, 3072"), I(f"s_add_u32 s33, s33, {L_Q}"),
         I("s_mov_b32 s53, s47")]
    first = [I("s_mov_b32 m0, s33")]
    for p in range(3): first.append(I(f"buffer_load_dwordx4 v{VD}, s[8:11], s53 offen offset:{1024*p} lds", tag="Q"))
    first += [I("s_mov_b32 s40, s43"), I("s_mov_b32 s41, s42")] + [Ins(x.text, "KV0") for x in dma_chunk()]
    o += first + stamp(4)
    if PRIO_A: o.append(I(f"s_setprio {PRIO_A}"))
    o += [I("v_bfe_u32 v2, v1, 4, 1"), I("v_lshlrev_b32 v2, 1, v2"),
          I("v_and_b32 v3, 1, v1"), I("v_add_u32 v3, v2, v3"), I("v_mul_u32_u24 v3, 320, v3"),
          I("v_bfe_u32 v4, v1, 1, 1"), I("v_lshl_add_u32 v3, v4, 3, v3"),
          I("v_bfe_u32 v5, v1, 2, 2"), I("v_lshlrev_b32 v5, 4, v5"),
          I("v_lshrrev_b32 v6, 5, v1"),
          I(f"v_add_u32 v{LKB}, v3, v5"), I(f"v_lshl_add_u32 v{LKA}, v6, 7, v{LKB}"), I(f"v_add_u32 v{LKB}, 256, v{LKB}"),
          I("v_mul_u32_u24 v7, 320, v6"), I("v_and_b32 v8, 31, v1"), I("v_lshl_add_u32 v7, v8, 4, v7"), I(f"v_add_u32 v{LVA}, 10240, v7"),
          I("v_add_u32 v2, v2, v4"), I("v_mul_u32_u24 v2, 320, v2"), I("v_and_b32 v3, 1, v1"), I("v_lshl_add_u32 v2, v3, 3, v2"),
          I(f"v_add3_u32 v{KF}, v2, v5, s33"), I(f"v_lshl_add_u32 v{KF+1}, v6, 7, v{KF}"),
          I("v_cmp_gt_u32 s[44:45], 32, v1"),
          I("s_lshl_b32 s46, s31, 2"), I("s_add_u32 s46, s46, s32"), I("s_lshl_b32 s47, s46, 8"), I(f"s_add_u32 s47, s47, {WS_G}"),
          I("v_lshlrev_b32 v3, 2, v8"),
          I("v_and_b32 v228, 7, v1"), I("v_lshlrev_b32 v228, 7, v228"), I("v_lshrrev_b32 v229, 3, v1"), I("v_lshl_add_u32 v228, v229, 12, v228"),
          I("v_mov_b32 v229, 0x7f000000"), I("v_cmp_gt_u32 vcc, 16, v1"), I("v_cndmask_b32 v228, v229, v228, vcc"),
          I("s_lshl_b32 s52, s2, 2"), I("s_add_u32 s52, s52, s32"), I("s_lshl_b32 s52, s52, 13"), I("s_add_u32 s52, s52, 1024"),
          I("s_mov_b32 s16, s24"), I("s_mov_b32 s17, s25"), I(f"s_mov_b32 s18, {2048*4096}"), I("s_mov_b32 s19, 0x00020000"),
          I("buffer_load_dword v230, v3, s[8:11], s47 offen"), I("buffer_load_dword v231, v3, s[8:11], s47 offen offset:128")]
    for q in range(2):
        o += [I(f"v_mov_b32 v{QF+8*q+6}, 0"), I(f"v_mov_b32 v{QF+8*q+7}, 0")]
    o += stamp(5) + [WAITVM("Q")] + stamp(6)
    for q in range(2):
        o += [I(f"ds_read_b64_tr_b16 v[{QF+8*q}:{QF+8*q+1}], v{KF+1} offset:{1280*q}"),
              I(f"ds_read_b64_tr_b16 v[{QF+8*q+2}:{QF+8*q+3}], v{KF+1} offset:{1280*q+64}"),
              I(f"ds_read_b64_tr_b16 v[{QF+8*q+4}:{QF+8*q+5}], v{KF} offset:{1280*q+256}")]
    o += [I("s_mov_b32 s34, 0"), I(f"v_mov_b32 v{VKA}, v{LKA}"), I(f"v_mov_b32 v{VKB}, v{LKB}"), WAITVM("KV0")] + stamp(7) + [I("s_barrier")] + stamp(8)
    o += [I(f"s_add_u32 s40, s43, {SLOTB}"), I("s_add_u32 s41, s42, 10240")] + dma_chunk()
    for q in range(2):
        o += [I(f"v_cndmask_b32 v{QF+8*q+4}, 0, v{QF+8*q+4}, s[44:45]"), I(f"v_mov_b32 v{QF+8*q+5}, 0")]
    o += k_reads(0)
    for b in range(2):
        o += [I(f"v_mov_b32 v{KF+8*b+6}, 0x3f80"), I(f"v_mov_b32 v{KF+8*b+7}, 0")]
    o += qk(0, 0) + qk(0, 1)
    o += max16(T0, S(0, 0), True) + max16(T0+1, S(0, 1), True) + xhalf_max(T0, T0+2) + xhalf_max(T0+1, T0+3)
    o += set_m(T0, 0, T0+4) + set_m(T0+1, 1, T0+8)
    o += [I("s_nop 1"), RAW("KA_main:")]
    if 'nolnld' in EXP: o = [x for x in o if not (x.mn == 'buffer_load_dwordx4' and not x.ldsdma)]
    if 'nolnst' in EXP: o = [x for x in o if not (x.mn == 'buffer_store_dwordx4')]
    if 'lnplain' in EXP: o = [I(x.text.replace(' sc1', ''), x.tag) if x.mn == 'buffer_store_dwordx4' else x for x in o]
    if 'notouch' in EXP: o += [I("s_mov_b32 s18, 0")]
    a, st = finalize(o)
    txt = text_of(a) + "\n"
    o = [I(f"v_mov_b32 v{VKA}, v{LKA}"), I(f"v_mov_b32 v{VKB}, v{LKB}"), I(f"v_mov_b32 v{VVA}, v{LVA}")]
    o += k_reads(0) + k_reads(1) + v_reads(0)
    o += [I(f"v_add_u32 v{NKA}, {SLOTB}, v{LKA}"), I(f"v_add_u32 v{NKB}, {SLOTB}, v{LKB}"), I(f"v_add_u32 v{NVA}, {SLOTB}, v{LVA}"),
          I("s_mov_b32 s35, 0"), I(f"s_mov_b32 s36, {2*SLOTB}"), I("s_add_u32 s41, s42, 20480")]
    o += stamp(2)
    o += qk(0, 0) + qk(0, 1)
    for r in range(32): o.append(I(f"v_mov_b32 v{OO+r}, 0"))
    for r in range(4): o += [I(f"v_mov_b32 v{PP+12+r}, 0"), I(f"v_mov_b32 v{VF+12+r}, 0")]
    o += [I("s_nop 1"), RAW("KA_loop:")]
    a, st = finalize(o, st)
    txt += text_of(a) + "\n"
    body = []
    for kt in range(8):
        V, M, R = tile_body(kt)
        X = {0: [I("s_waitcnt lgkmcnt(0)"), R[0]], 1: [R[1]], 2: [R[2]], 3: [R[3]], 4: [R[4]]}
        if kt == 4:
            X[6] = [I("s_waitcnt vmcnt(0)")]
            X[7] = [I("s_barrier")]
        if kt == 5:
            X[5] = [I("s_add_u32 s40, s43, s36"), I("s_cmp_ge_u32 s35, 6"), I("s_cselect_b32 s37, 0x7f000000, s41"), I("s_mov_b32 m0, s40")]
            X[6] = [I(f"buffer_load_dwordx4 v{VD}, s[8:11], s37 offen lds")]
            X[7] = [I(f"buffer_load_dwordx4 v{VD}, s[8:11], s37 offen offset:1024 lds")]
        if kt == 6:
            X[5] = [I(f"buffer_load_dwordx4 v{VD}, s[8:11], s37 offen offset:2048 lds")]
            X[6] = [I(f"buffer_load_dwordx4 v{VD}, s[8:11], s37 offen offset:3072 lds"), I("s_add_u32 m0, s40, 4096")]
            X[7] = [I(f"buffer_load_dwordx4 v{VD4}, s[8:11], s37 offen lds")]
        if kt == 5:
            X[4] = X[4] + [NOWR(I("buffer_load_dword v229, v228, s[16:19], s52 offen")), I("s_add_u32 s52, s52, 1024"), I("s_cmp_ge_u32 s35, 2"), I("s_cselect_b32 s18, 0, s18")]
        if kt == 7:
            X[5] = [I("s_add_u32 s41, s41, 10240"), I(f"v_mov_b32 v{VKA}, v{NKA}"), I(f"v_mov_b32 v{VKB}, v{NKB}"), I(f"v_mov_b32 v{VVA}, v{NVA}"),
                    I(f"v_add_u32 v{NKA}, s36, v{LKA}"), I(f"v_add_u32 v{NKB}, s36, v{LKB}"), I(f"v_add_u32 v{NVA}, s36, v{LVA}")]
            X[6] = [I(f"s_add_u32 s36, s36, {SLOTB}"), I(f"s_cmp_eq_u32 s36, {3*SLOTB}"), I("s_cselect_b32 s36, 0, s36")]
            X[7] = [I("s_add_u32 s35, s35, 1"), I("s_cmp_lt_u32 s35, 8")]
        for i in range(8):
            body += V[6*i:6*i+2] + [M[i]] + X.get(i, []) + V[6*i+2:6*i+6]
    body += [I("s_cbranch_scc1 KA_loop")]
    a, st = finalize_loop(body, st)
    txt += text_of(a) + "\n"
    o = [I("s_nop 0"), pv(7, 1, 1)] + stamp(3)
    o += [I("s_lshl_b32 s46, s31, 2"), I("s_add_u32 s46, s46, s32"),
          I(f"v_mov_b32 v{T0+2}, {f32(2.0**100)}"), I("s_mov_b64 s[48:49], -1")]
    for q in range(2):
        for r in range(11):
            o += [I(f"v_cmp_lt_f32 vcc, abs(v{OO+16*q+r}), v{T0+2}")]
            if r >= 8: o += [I("s_orn2_b64 vcc, vcc, s[44:45]")]
            o += [I("s_and_b64 s[48:49], s[48:49], vcc")]
    o += [I("s_cmp_eq_u64 s[48:49], -1"), I("s_cselect_b32 s48, 0, 1"),
          I(f"v_mov_b32 v{T0+3}, s48"), I("s_lshl_b32 s49, s32, 2"), I("v_mov_b32 v4, s49"),
          I(f"ds_write_b32 v4, v{T0+3} offset:{L_MISC+256}"), I("s_waitcnt vmcnt(0) lgkmcnt(0)"), I("s_barrier"),
          I("v_mov_b32 v4, 0"), I(f"ds_read_b128 v[{T0+4}:{T0+7}], v4 offset:{L_MISC+256}")]
    o += [I("s_lshl_b32 s46, s46, 2"), I("s_mul_i32 s46, s46, 92160"), I(f"s_add_u32 s46, s46, {WS_ACT}"),
          I("s_lshr_b32 s47, s30, 1"), I("s_lshl_b32 s47, s47, 10"), I("s_and_b32 s50, s30, 1"), I("s_lshl_b32 s50, s50, 9"),
          I("s_add_u32 s47, s47, s50"), I("s_add_u32 s47, s47, s46"),
          I("s_lshr_b32 s50, s30, 4"), I("s_add_u32 s50, s50, 16"), I("s_lshl_b32 s50, s50, 10"),
          I("s_bfe_u32 s49, s30, 0x20002"), I("s_lshl_b32 s49, s49, 8"), I("s_add_u32 s50, s50, s49"),
          I("s_and_b32 s49, s30, 3"), I("s_lshl_b32 s49, s49, 2"), I("s_add_u32 s50, s50, s49"), I("s_add_u32 s50, s50, s46"),
          I("v_bfe_u32 v3, v1, 4, 1"), I("s_mov_b32 s49, 92160"), I("v_mul_lo_u32 v3, v3, s49"),
          I("v_and_b32 v4, 15, v1"), I("v_lshl_add_u32 v3, v4, 4, v3"),
          I("v_lshrrev_b32 v4, 5, v1"), I("v_lshl_add_u32 v4, v4, 8, v3"),
          I(f"v_or3_b32 v{T0+4}, v{T0+4}, v{T0+5}, v{T0+6}"), I(f"v_or_b32 v{T0+4}, v{T0+4}, v{T0+7}"),
          I(f"v_readfirstlane_b32 s48, v{T0+4}"),
          I("s_andn2_b32 s48, s48, s34"), I("s_cmp_lg_u32 s48, 0"), I("s_cbranch_scc1 KA_fallback")]
    for q in range(2):
        O = OO + 16*q; t = T0 + 8 + 16*q
        o += [I(f"v_mov_b32 v{t}, v{O+10}"), I(f"v_mov_b32 v{t+1}, v{O+10}"), I(f"v_permlane32_swap_b32 v{t}, v{t+1}"),
              I(f"v_rcp_f32 v{t}, v{t}"), I(f"v_mul_f32 v{t}, v{t}, v{230+q}")]
        for r in range(10): o.append(I(f"v_mul_f32 v{O+r}, v{O+r}, v{t}"))
        for r in range(5): o.append(I(f"v_cvt_pk_bf16_f32 v{t+4+r}, v{O+2*r}, v{O+2*r+1}"))
        o.append(I(f"buffer_store_dwordx4 v[{t+4}:{t+7}], v4, s[8:11], s47 offen"))
        o += [I("s_mov_b64 exec, s[44:45]"), I(f"buffer_store_dword v{t+8}, v3, s[8:11], s50 offen"), I("s_mov_b64 exec, -1")]
        if q == 0: o += [I(f"s_add_u32 s47, s47, {2*92160}"), I(f"s_add_u32 s50, s50, {2*92160}")]
    o += [I("s_endpgm")]
    a, _ = finalize(o, st)
    txt += text_of(a) + "\n"
    o = [RAW("KA_fallback:"), I("s_waitcnt vmcnt(0) lgkmcnt(0)"), I("s_nop 15"),
         I("s_mov_b32 s34, 1"), I("s_mov_b32 s35, 0"), I("s_mov_b32 s41, s42"), I("s_mov_b32 s40, s43"),
         I(f"v_mov_b32 v{T0}, 0xff7fffff"), I(f"v_mov_b32 v{T0+1}, 0xff7fffff")]
    for q in range(2): o += [I(f"v_mov_b32 v{QF+8*q+5}, 0"), I(f"v_mov_b32 v{QF+8*q+6}, 0")]
    o += [RAW("KA_fb_chunk:"), I("s_barrier")] + dma_chunk() + [I("s_waitcnt vmcnt(0)"), I("s_barrier"),
          I(f"v_mov_b32 v{VKA}, v{LKA}"), I(f"v_mov_b32 v{VKB}, v{LKB}"), I("s_mov_b32 s36, 0"), RAW("KA_fb_tile:")]
    o += k_reads(0) + qk(0, 0) + qk(0, 1) + max16(T0, S(0, 0)) + max16(T0+1, S(0, 1))
    o += [I(f"v_add_u32 v{VKA}, 1280, v{VKA}"), I(f"v_add_u32 v{VKB}, 1280, v{VKB}"),
          I("s_add_u32 s36, s36, 1"), I("s_cmp_lt_u32 s36, 8"), I("s_cbranch_scc1 KA_fb_tile"),
          I("s_add_u32 s41, s41, 10240"), I("s_add_u32 s35, s35, 1"), I("s_cmp_lt_u32 s35, 8"), I("s_cbranch_scc1 KA_fb_chunk")]
    o += xhalf_max(T0, T0+2) + xhalf_max(T0+1, T0+3) + set_m(T0, 0, T0+4) + set_m(T0+1, 1, T0+8)
    o += [I("s_barrier"), I("s_mov_b32 s41, s42")] + dma_chunk()
    o += [I(f"s_add_u32 s40, s43, {SLOTB}"), I("s_add_u32 s41, s42, 10240")] + dma_chunk()
    o += [I("s_waitcnt vmcnt(0)"), I("s_barrier"), I("s_nop 7"), I("s_branch KA_main")]
    a, _ = finalize(o)
    txt += text_of(a) + "\n"
    return txt

ZSLOT = 9216; ZBASE = 32768
ACC = 16
ZF = [88, 124]
WFr = [160, 176]
Z1P = 192
VA = 228
VZ = 232
RB = 233
RA = 235
VT = 236
TB = 238
VX1 = 244
VA1 = 248
RT1 = 251; RT8 = 252
VP = 253
LB_MISC = 69632
BURST = int(os.environ.get('BURST', '0'))
def accr(T, tt): return ACC + 16*(T >> 1) + 8*tt + 4*(T & 1) if T < 8 else ACC + 64 + 4*tt

def dma_rows(slot, vo, srdn, so):
    g = [[I(f"s_add_u32 m0, s40, {slot*16384}")]]
    for p in range(4): g.append([I(f"buffer_load_dwordx4 v{vo+p}, {srdn}, {so} offen offset:{1024*p} lds", tag=f"W{slot}")])
    g[-1].append(I(f"s_add_u32 {so}, {so}, 128"))
    return g
def gdma_w(slot): return dma_rows(slot, VA, "s[12:15]", "s42")
def pdma_x(slot): return dma_rows(slot, VX1, "s[36:39]", "s34")
def dma_img(slot, vos, srdn, so, step, fl):
    return [[I(f"s_add_u32 m0, s41, {slot*ZSLOT}")],
            [I(f"buffer_load_dwordx4 v{vos[0]}, {srdn}, {so} offen{fl} lds", tag=f"D{slot}")],
            [I(f"buffer_load_dwordx4 v{vos[1]}, {srdn}, {so} offen offset:1024{fl} lds", tag=f"D{slot}")],
            [I("s_mov_b64 exec, 0xffff"), I(f"buffer_load_dwordx4 v{vos[2]}, {srdn}, {so} offen offset:2048{fl} lds", tag=f"D{slot}"), I("s_mov_b64 exec, -1"),
             I(f"s_add_u32 {so}, {so}, {step}")]]
def gdma_z(slot): return dma_img(slot, [VZ]*3, "s[8:11]", "s43", 9216, " sc1")
def pdma_a(slot): return dma_img(slot, [VA1, VA1+1, VA1+2], "s[20:23]", "s49", 32*9216, "")
if 'p1lin' in EXP:
    def pdma_a(slot): return dma_img(slot, [VZ]*3, "s[20:23]", "s49", 9216, "")
def flat(g): return [x for l in g for x in l]
def areads(slot, st_, tr):
    z = ZF[st_]
    if not tr: return [I(f"ds_read_b128 v[{z+4*i}:{z+4*i+3}], v{RA} offset:{slot*ZSLOT + 1024*i}") for i in range(9)]
    o = []
    for T in range(9):
        for h in range(2):
            if T < 8: o.append(I(f"ds_read_b64_tr_b16 v[{z+4*T+2*h}:{z+4*T+2*h+1}], v{RT1} offset:{slot*ZSLOT + 4608*h + 64*(T>>1) + 16*(T&1)}"))
            else: o.append(I(f"ds_read_b64_tr_b16 v[{z+4*T+2*h}:{z+4*T+2*h+1}], v{RT8} offset:{slot*ZSLOT + 4608*h}"))
    return o
def wreads(slot):
    w = WFr[slot]
    return [I(f"ds_read_b128 v[{w+8*ks+4*tt}:{w+8*ks+4*tt+3}], v{RB+ks} offset:{slot*16384 + 2048*tt}") for ks in range(2) for tt in range(2)]
def gmfmas(s, zero=False):
    z = ZF[s % 2]; w = WFr[(s >> 1) & 1] + 8*(s & 1)
    return [I(f"v_mfma_f32_16x16x32_bf16 v[{accr(T,tt)}:{accr(T,tt)+3}], v[{z+4*T}:{z+4*T+3}], v[{w+4*tt}:{w+4*tt+3}], " + ("0" if zero else f"v[{accr(T,tt)}:{accr(T,tt)+3}]"))
            for T in range(9) for tt in range(2)]
SYNC = int(os.environ.get('SYNC', '2'))
def gstage(s, dm, last=False, tr=False, zero=False, pre=()):
    ns = (s + 1) % 4
    mf = gmfmas(s, zero)
    if last: return mf
    tags = [f"D{ns}"] + ([f"W{(ns >> 1) & 1}"] if s & 1 else [])
    rd = areads(ns, ns % 2, tr)
    if s & 1: rd = wreads((ns >> 1) & 1)[:2] + rd + wreads((ns >> 1) & 1)[2:]
    side = []
    rd = [[x] for x in rd]; dm = list(dm)
    while rd or dm:
        if dm: side.append(dm.pop(0))
        if rd: side.append(rd.pop(0))
        if rd and len(rd) > len(dm): side.append(rd.pop(0))
    o = mf[:SYNC] + [WAITDS()] + ([WAITVM(tags)] if 'novm' not in EXP else []) + list(pre) + ([I("s_barrier")] if 'nobar' not in EXP else [])
    if 'nodma' in EXP: side = [g for g in side if not any(x.ldsdma for x in g)]
    rest = mf[SYNC:]; n = len(rest); m = len(side); j = 0
    if BURST: o.append(I("s_setprio 3"))
    for i, x in enumerate(rest):
        o.append(x)
        if BURST and i == BURST - 1: o.append(I("s_setprio 0"))
        tgt = min(m, -(-(i + 1) * m // n))
        o += flat(side[j:tgt]); j = tgt
    return o

def ln_loads():
    R = 64
    o = [I("v_lshrrev_b32 v2, 4, v0"), I("v_mul_u32_u24 v3, 2304, v2"), I("v_and_b32 v4, 15, v0"),
         I("v_lshl_add_u32 v13, v4, 4, v3"), I("v_and_b32 v5, 24, v0"), I("v_lshl_add_u32 v14, v5, 4, v13"),
         I("s_and_b32 s59, s2, 7"), I("s_lshl_b32 s59, s59, 5"), I("s_lshr_b32 s46, s2, 3"), I("s_add_u32 s59, s59, s46"),
         I("s_mul_i32 s46, s59, 36864"), I(f"s_add_u32 s46, s46, {WS_Z}"),
         I("v_and_b32 v5, 16, v0"), I("v_xor_b32 v5, 16, v5"), I("v_lshl_add_u32 v13, v5, 7, v13")]
    for i in range(9):
        if i < 8: o.append(I(f"buffer_load_dwordx4 v[{R+4*i}:{R+4*i+3}], v14, s[8:11], s46 offen offset:{512*(i>>1) + 128*(i&1)}"))
        else: o.append(I(f"buffer_load_dwordx4 v[{R+4*i}:{R+4*i+3}], v13, s[8:11], s46 offen"))
    o += [I("s_mov_b32 s46, 589824"), I("v_mul_lo_u32 v2, v2, s46"), I("v_lshl_add_u32 v15, v4, 4, v2")]
    return o

def ln_compute():
    R = 64; F = 100; A = 16; B = 32
    o = []
    for i in range(9):
        for d in range(4):
            k = 4*i + d
            o += [I(f"v_lshlrev_b32 v{F+2*k}, 16, v{R+k}"), I(f"v_and_b32 v{F+2*k+1}, 0xffff0000, v{R+k}")]
        if i == 0:
            for j in range(8): o.append(I(f"v_mul_f32 v{A+8+j}, v{F+j}, v{F+j}"))
        else:
            for j in range(8): o.append(I(f"v_add_f32 v{A+j}, v{F+j if i == 1 else A+j}, v{F+8*i+j}"))
            for j in range(8): o.append(I(f"v_fmac_f32 v{A+8+j}, v{F+8*i+j}, v{F+8*i+j}"))
    o += [I("v_and_b32 v2, 1, v1"), I("v_cmp_eq_u32 s[50:51], 0, v2"), I("v_and_b32 v2, 2, v1"), I("v_cmp_eq_u32 s[52:53], 0, v2"),
          I("v_and_b32 v2, 4, v1"), I("v_cmp_eq_u32 s[54:55], 0, v2"), I("v_and_b32 v2, 8, v1"), I("v_cmp_eq_u32 s[56:57], 0, v2")]
    n = 16
    for step, (msk, dpp) in enumerate((("s[56:57]", "row_mirror"), ("s[54:55]", "row_half_mirror"), ("s[52:53]", "quad_perm:[2,3,0,1]"), ("s[50:51]", "quad_perm:[1,0,3,2]"))):
        h = n // 2
        for i in range(h): o.append(I(f"v_cndmask_b32 v{B+i}, v{A+i}, v{A+h+i}, {msk}"))
        for i in range(h): o.append(I(f"v_cndmask_b32 v{A+i}, v{A+h+i}, v{A+i}, {msk}"))
        for i in range(h): o.append(I(f"v_add_f32_dpp v{A+i}, v{B+i}, v{A+i} {dpp} row_mask:0xf bank_mask:0xf"))
        n = h
    o += [I(f"v_lshlrev_b32 v2, 2, v0"), I(f"v_add_u32 v2, {LB_MISC}, v2"), I(f"ds_write_b32 v2, v{A}"),
          I("v_and_b32 v3, 15, v1"), I("v_lshlrev_b32 v3, 2, v3"), I(f"v_add_u32 v3, {LB_MISC}, v3"),
          WAITDS(), I("s_barrier")]
    for r in range(8): o.append(I(f"ds_read2_b32 v[{B+2*r}:{B+2*r+1}], v3 offset0:{32*r} offset1:{32*r+16}"))
    for r in range(8): o.append(I(f"v_add_f32 v{B+r}, v{B+r}, v{B+8+r}"))
    for r in range(4): o.append(I(f"v_add_f32 v{B+r}, v{B+r}, v{B+4+r}"))
    o += [I(f"v_add_f32 v{B}, v{B}, v{B+2}"), I(f"v_add_f32 v{B+1}, v{B+1}, v{B+3}"), I(f"v_add_f32 v{B}, v{B}, v{B+1}"),
          I(f"v_mul_f32 v{B}, {f32(1.0/2304)}, v{B}"),
          I(f"v_mov_b32_dpp v{B+1}, v{B} row_ror:8 row_mask:0xf bank_mask:0xf"),
          I(f"v_fma_f32 v{B+1}, -v{B}, v{B}, v{B+1}"), I(f"v_max_f32 v{B+1}, 0, v{B+1}"), I(f"v_add_f32 v{B+1}, {f32(1e-5)}, v{B+1}"),
          I(f"v_rsq_f32 v{B+1}, v{B+1}"), I(f"v_mul_f32 v{B}, -v{B}, v{B+1}" if False else f"v_mul_f32_e64 v{B}, -v{B}, v{B+1}")]
    for j in range(8): o.append(I(f"v_readlane_b32 s{50+j}, v{B}, {j}"))
    for j in range(8): o.append(I(f"v_mov_b32 v{A+j}, s{50+j}"))
    for j in range(8): o.append(I(f"v_readlane_b32 s{50+j}, v{B+1}, {j}"))
    o += [I("s_lshr_b32 s46, s59, 2"), I("s_mul_i32 s46, s46, 9216"), I("s_and_b32 s47, s59, 3"), I("s_lshl_b32 s47, s47, 8"),
          I("s_add_u32 s46, s46, s47"), I(f"s_add_u32 s46, s46, {WS_Z2N}")]
    for i in range(9):
        for j in range(8): o.append(I(f"v_fma_f32 v{F+8*i+j}, v{F+8*i+j}, s{50+j}, v{A+j}"))
        for j in range(4): o.append(I(f"v_cvt_pk_bf16_f32 v{R+4*i+j}, v{F+8*i+2*j}, v{F+8*i+2*j+1}"))
        o.append(I(f"buffer_store_dwordx4 v[{R+4*i}:{R+4*i+3}], v15, s[8:11], s46 offen offset:{1024*(i%4)} sc1", tag="LNST"))
        if i % 4 == 3: o.append(I("s_add_u32 s46, s46, 4096"))
    return o
def role_b():
    o = [I("s_sub_u32 s2, s2, 256"),
          I("s_and_b32 s30, s2, 1"), I("s_lshl_b32 s30, s30, 3"), I("s_bfe_u32 s46, s2, 0x30003"), I("s_add_u32 s30, s30, s46"),
          I("s_bfe_u32 s31, s2, 0x20001"), I("s_lshl_b32 s31, s31, 2"), I("s_lshr_b32 s46, s2, 6"), I("s_add_u32 s31, s31, s46"),
          I("s_lshl_b32 s33, s30, 2"), I("s_add_u32 s33, s33, s32"),
          I("s_lshl_b32 s42, s33, 17"),
          I(f"v_lshlrev_b32 v{VZ}, 4, v1"),
          I("s_lshl_b32 s40, s32, 12"), I("s_mul_i32 s44, s32, 2304"), I(f"s_add_u32 s41, s44, {ZBASE}"),
          I("v_lshrrev_b32 v7, 3, v1"),
          I("v_lshrrev_b32 v3, 4, v1"), I("v_and_b32 v4, 7, v1"), I("v_xor_b32 v4, v4, v3"), I("v_lshlrev_b32 v4, 4, v4"), I("v_xor_b32 v8, 64, v4")]
    o += srd(12, 24, 25, 2048*4096) + srd(16, 26, 27, 4096)
    o += [I("s_mul_i32 s48, s31, 589824"), I(f"s_add_u32 s48, s48, {WS_Z2N}"), I("s_add_u32 s43, s48, s44"),
          I("v_lshlrev_b32 v2, 12, v7"),
          I(f"v_add_u32 v{VA}, v2, v4"), I(f"v_add_u32 v{VA+1}, v2, v8"), I(f"v_add_u32 v{VA+1}, {32768-1024}, v{VA+1}"),
          I(f"v_add_u32 v{VA+2}, {65536-2048}, v{VA}"), I(f"v_add_u32 v{VA+3}, {65536-2048}, v{VA+1}"),
          I("v_and_b32 v2, 15, v1"), I("v_bfe_u32 v9, v1, 1, 3"), I("v_xor_b32 v4, v9, v3"), I("v_lshlrev_b32 v4, 4, v4"),
          I("v_lshl_add_u32 v4, v2, 7, v4"), I(f"v_add_u32 v{RB}, s40, v4"), I(f"v_xor_b32 v{RB+1}, 64, v{RB}"),
          I(f"v_add_u32 v{RA}, {ZBASE}, v{VZ}"),
          I("v_lshlrev_b32 v10, 1, v2"), I("v_lshlrev_b32 v11, 2, v2"),
          I("s_lshr_b32 s44, s2, 4"), I("s_lshl_b32 s44, s44, 7"), I(f"s_add_u32 s44, s44, {WS_CNT}"), I("s_and_b32 s45, s2, 63"), I("s_lshl_b32 s45, s45, 7"), I(f"s_add_u32 s45, s45, {WS_CNT + 4096}"),
          I(f"v_lshlrev_b32 v{VP}, 7, v1"), I(f"v_mov_b32 v{VT}, 0"), I(f"v_mov_b32 v{VT+1}, 1"),
          I("s_mul_i32 s46, s33, 184320"), I(f"s_add_u32 s46, s46, {WS_ACT + 18*1024}"),
          I("s_mul_i32 s34, s31, 9"), I("s_add_u32 s34, s34, 1"), I("s_lshr_b32 s34, s34, 1"), I("s_lshl_b32 s34, s34, 10"), I("s_add_u32 s34, s34, s46"),
          I("s_lshr_b32 s49, s31, 1"), I("s_mul_i32 s49, s49, 9216"), I("s_add_u32 s49, s49, 4096"), I("s_and_b32 s47, s31, 1"), I("s_lshl_b32 s47, s47, 9"),
          I("s_add_u32 s49, s49, s47"), I("s_add_u32 s49, s49, s46"),
          I(f"v_add_u32 v{VX1}, 92160, v{VZ}"),
          I("v_and_b32 v4, 31, v1"), I("v_lshlrev_b32 v4, 4, v4"), I("v_lshrrev_b32 v9, 5, v1"), I(f"v_lshl_add_u32 v{VX1+1}, v9, 3, v4"),
          I(f"v_add_u32 v{VX1+2}, 92160, v{VX1+1}")]
    o += ln_loads() + [I("s_setprio 3")] + stamp(7)
    o += ln_compute()
    o += stamp(2)
    o += flat(gdma_w(0)) + flat(gdma_w(1))
    o += [I("s_lshl_b32 s46, s33, 6"), I("s_lshl_b32 s47, s33, 7"), I(f"s_add_u32 s47, s47, {WS_G}"),
          I(f"buffer_load_ushort v{TB}, v10, s[16:19], s46 offen"), I(f"buffer_load_ushort v{TB+1}, v10, s[16:19], s46 offen offset:32"),
          I(f"buffer_load_dword v{TB+2}, v11, s[8:11], s47 offen"), I(f"buffer_load_dword v{TB+3}, v11, s[8:11], s47 offen offset:64"),
          WAITVM("LNST"), I("s_barrier")] + stamp(6)
    o += [RAW("    s_cmp_lg_u32 s32, 0\n    s_cbranch_scc1 KB_polled\n    s_mov_b64 exec, 1\n"
              f"    v_mov_b32 v{VP+1}, 1\n"
              f"    buffer_atomic_add v{VP+1}, v{VT}, s[8:11], s44 offen sc0 sc1\n    s_waitcnt vmcnt(0)\n"
              f"    v_readfirstlane_b32 s47, v{VP+1}\n    s_cmp_lg_u32 s47, 15\n    s_cbranch_scc1 KB_notlast\n"
              f"    s_mov_b64 exec, -1\n    s_mov_b32 s47, {WS_CNT + 4096}\n    buffer_atomic_add v{VT+1}, v{VP}, s[8:11], s47 offen sc1\n    s_mov_b64 exec, 1\n"
              f"KB_notlast:\n    s_mov_b32 s47, 0\nKB_poll:\n"
              f"    buffer_load_dword v{VP+1}, v{VT}, s[8:11], s45 offen sc1\n    s_add_u32 s47, s47, 1\n    s_waitcnt vmcnt(0)\n"
              f"    v_cmp_ne_u32 vcc, 16, v{VP+1}\n    s_cmp_gt_u32 s47, 0x10000\n    s_cbranch_scc1 KB_pdone\n    s_cbranch_vccz KB_pdone\n    s_sleep 1\n    s_branch KB_poll\n"
              "KB_pdone:\n    s_mov_b64 exec, -1\nKB_polled:"),
          I("s_barrier")] + stamp(3)
    for k in range(4): o += flat(gdma_z(k))
    o += [WAITVM(["D0", "W0"]), I("s_barrier")] + wreads(0) + areads(0, 0, False)
    o += [I("s_setprio 0"), I("s_mov_b32 s35, 0")] + stamp(4)
    def dm2(k):
        s_ = k % 4
        return (gdma_w(s_ >> 1) if s_ % 2 == 0 else []) + gdma_z(s_)
    for k in range(4): o += gstage(k, dm2(k), zero=(k == 0))
    o += [RAW("KB_loop:")]
    a, st = finalize(o); txt = text_of(a) + "\n"
    body = []
    for k in range(4): body += gstage(k, dm2(k))
    body += [I("s_add_u32 s35, s35, 1"), I("s_cmp_lt_u32 s35, 14"), I("s_cbranch_scc1 KB_loop")]
    a, st = finalize_loop(body, st); txt += text_of(a) + "\n"
    z1 = []
    for c in range(8):
        j, tt = divmod(c, 2)
        z1.append([I(f"buffer_load_dwordx4 v[{Z1P+4*c}:{Z1P+4*c+3}], v{VZ if tt == 0 else VX1}, s[8:11], s34 offen offset:{1024*j}")])
    for tt in range(2): z1.append([I(f"buffer_load_dwordx2 v[{Z1P+32+2*tt}:{Z1P+33+2*tt}], v{VX1+1+tt}, s[8:11], s49 offen")])
    o = gstage(0, z1[:5]) + gstage(1, z1[5:]) + gstage(2, []) + gstage(3, [], last=True)
    o += stamp(5) + [I("s_setprio 3")]
    o += [I(f"v_lshlrev_b32 v{TB}, 16, v{TB}"), I(f"v_lshlrev_b32 v{TB+1}, 16, v{TB+1}"),
          I(f"v_sub_f32 v{TB+2}, 1.0, v{TB+2}"), I(f"v_sub_f32 v{TB+3}, 1.0, v{TB+3}"),
          I(f"v_mul_f32 v{TB}, v{TB}, v{TB+2}"), I(f"v_mul_f32 v{TB+1}, v{TB+1}, v{TB+3}")]
    def quad(a_, z, sc, bi, t, dst):
        x = [I(f"v_lshlrev_b32 v{t}, 16, v{z}"), I(f"v_and_b32 v{t+1}, 0xffff0000, v{z}"),
             I(f"v_lshlrev_b32 v{t+2}, 16, v{z+1}"), I(f"v_and_b32 v{t+3}, 0xffff0000, v{z+1}")]
        for r in range(4): x.append(I(f"v_fma_f32 v{a_+r}, v{a_+r}, v{sc}, v{bi}"))
        for r in range(4): x.append(I(f"v_mul_f32 v{a_+r}, v{a_+r}, v{t+r}"))
        x += [I(f"v_cvt_pk_bf16_f32 v{dst}, v{a_}, v{a_+1}"), I(f"v_cvt_pk_bf16_f32 v{dst+1}, v{a_+2}, v{a_+3}")]
        return x
    D = ZF[0]
    for c in range(8):
        j, tt = divmod(c, 2)
        for q in range(2):
            g = 2*c + q
            o += quad(ACC + 4*g, Z1P + 2*g, TB+2+tt, TB+tt, 2 + 4*q, D + 4*c + 2*q)
        o.append(I(f"buffer_store_dwordx4 v[{D+4*c}:{D+4*c+3}], v{VZ if tt == 0 else VX1}, s[8:11], s34 offen offset:{1024*j}"))
    for tt in range(2):
        g = 16 + tt
        o += quad(ACC + 4*g, Z1P + 2*g, TB+2+tt, TB+tt, 2 + 4*tt, D + 32 + 2*tt)
        o.append(I(f"buffer_store_dwordx2 v[{D+32+2*tt}:{D+33+2*tt}], v{VX1+1+tt}, s[8:11], s49 offen"))
    a, st = finalize(o, st); txt += text_of(a) + "\n"
    return txt

def build():
    o = [RAW("    s_cmp_ge_u32 s2, 512\n    s_cbranch_scc1 K23_exit"),
         I("s_load_dwordx2 s[4:5], s[0:1], 88"), I("s_load_dwordx4 s[24:27], s[0:1], 40"),
         I("v_and_b32 v1, 63, v0"), I("v_lshrrev_b32 v2, 6, v0"), I("s_nop 0"), I("v_readfirstlane_b32 s32, v2"),
         I("s_waitcnt lgkmcnt(0)")]
    o += srd(8, 4, 5, WS_USED)
    a, st = finalize(o)
    txt = text_of(a) + "\n    s_cmp_ge_u32 s2, 256\n    s_cbranch_scc1 K23_B\n"
    if 'noA' in EXP: txt += "    s_branch K23_exit\n"
    txt += role_a() + "K23_B:\n" + role_b() + "K23_exit:\n"
    return kernel_text("k23_fused_kernel", txt, 256, kidx=1)

def launch(): return ("k23_fused_kernel", 512, 256, LDS_BYTES, build())
```

```python
from common import *
EXP = os.environ.get('EXP', '').split(',')
LDS_BYTES = 81920
ACC = 16
BUF = 96
VA = 4
VW = 8; VW4 = 9

def loads(b):
    r = BUF + 36*b
    o = []
    for i in range(4): o.append(I(f"buffer_load_dwordx4 v[{r+4*i}:{r+4*i+3}], v{VA+i}, s[8:11], s40 offen"))
    for n in range(4): o.append(I(f"buffer_load_dwordx4 v[{r+16+4*n}:{r+19+4*n}], v{VW}, s[8:11], s41 offen offset:{1024*n}"))
    o.append(I(f"buffer_load_dwordx4 v[{r+32}:{r+35}], v{VW4}, s[8:11], s41 offen"))
    o += [I("s_add_u32 s40, s40, 4096"), I("s_add_u32 s41, s41, 20480")]
    return o
def mfmas(b):
    r = BUF + 36*b
    return [I(f"v_mfma_f32_16x16x32_bf16 v[{ACC+16*n+4*t}:{ACC+16*n+4*t+3}], v[{r+16+4*n}:{r+19+4*n}], v[{r+4*t}:{r+4*t+3}], v[{ACC+16*n+4*t}:{ACC+16*n+4*t+3}]")
            for n in range(5) for t in range(4)]

def build():
    o = [RAW("    s_cmp_ge_u32 s2, 256\n    s_cbranch_scc1 K4_exit"),
         I("s_load_dwordx2 s[4:5], s[0:1], 88"), I("s_load_dwordx2 s[6:7], s[0:1], 72"),
         I("v_and_b32 v1, 63, v0"), I("v_lshrrev_b32 v2, 6, v0"), I("s_nop 0"), I("v_readfirstlane_b32 s32, v2"),
         I("s_bfe_u32 s30, s2, 0x20001"), I("s_lshl_b32 s30, s30, 3"), I("s_bfe_u32 s46, s2, 0x30003"), I("s_add_u32 s30, s30, s46"),
         I("s_and_b32 s31, s2, 1"), I("s_lshl_b32 s31, s31, 2"), I("s_lshr_b32 s46, s2, 6"), I("s_add_u32 s31, s31, s46"),
         I(f"s_mul_i32 s40, s30, {4*92160}"), I("s_lshl_b32 s46, s32, 10"), I("s_add_u32 s40, s40, s46"), I(f"s_add_u32 s40, s40, {WS_ACT}"),
         I(f"s_mul_i32 s41, s31, {450*1024}"), I("s_mul_i32 s46, s32, 5120"), I("s_add_u32 s41, s41, s46"), I(f"s_add_u32 s41, s41, {WS_WF}"),
         I(f"v_lshlrev_b32 v{VA}, 4, v1"), I(f"v_mov_b32 v{VW}, v{VA}")]
    for i in range(1, 4): o.append(I(f"v_add_u32 v{VA+i}, {92160*i}, v{VA}"))
    o += [I("v_bfe_u32 v2, v1, 3, 1"), I("v_lshlrev_b32 v2, 30, v2"), I(f"v_add3_u32 v{VW4}, v{VA}, v2, 0"), I(f"v_add_u32 v{VW4}, 4096, v{VW4}"),
          I("s_waitcnt lgkmcnt(0)")]
    o += srd(8, 4, 5, WS_USED) + srd(12, 6, 7, 2048*1152)
    o += loads(0) + loads(1) + loads(2)
    for r in range(80): o.append(I(f"v_mov_b32 v{ACC+r}, 0"))
    o += [I("s_mov_b32 s35, 0")] + stamp(2) + [RAW("K4_loop:")]
    a, st = finalize(o); txt = text_of(a) + "\n"
    body = []
    for b in range(4):
        body += merge(mfmas(b), loads((b + 3) % 4), start=1, end=14)
    body += [I("s_add_u32 s35, s35, 1"), I("s_cmp_lt_u32 s35, 5"), I("s_cbranch_scc1 K4_loop")]
    a, st = finalize_loop(body, st); txt += text_of(a) + "\n"
    o = mfmas(0) + mfmas(1) + [I("s_waitcnt vmcnt(0)"), RAW("    s_cmp_ge_u32 s32, 2\n    s_cbranch_scc1 K4_skip")] + mfmas(2) + [RAW("K4_skip:")]
    o += stamp(3)
    o += [I("s_mul_i32 s46, s32, 20480"), I(f"v_add_u32 v2, s46, v{VA}"), I("s_nop 7")]
    for i in range(20): o.append(I(f"ds_write_b128 v2, v[{ACC+4*i}:{ACC+4*i+3}] offset:{1024*i}"))
    o += [I("s_lshl_b32 s46, s32, 10"), I(f"v_add_u32 v3, s46, v{VA}"), I("v_add_u32 v10, 40960, v3"),
          WAITDS(), I("s_barrier")]
    for n in range(5):
        for w in range(4):
            r = BUF + 16*n + 4*w
            o.append(I(f"ds_read_b128 v[{r}:{r+3}], v{3 if w < 2 else 10} offset:{(w&1)*20480 + 4096*n}"))
    o += [I("v_and_b32 v2, 15, v1"), I("v_mul_u32_u24 v2, 1152, v2"), I("v_lshrrev_b32 v11, 4, v1"), I("v_lshl_add_u32 v2, v11, 3, v2"),
          I("s_lshl_b32 s46, s30, 2"), I("s_add_u32 s46, s46, s32"), I(f"s_mul_i32 s46, s46, {16*1152}"), I("s_mul_i32 s47, s31, 144"), I("s_add_u32 s46, s46, s47")]
    for n in range(5):
        r = BUF + 16*n
        for j in range(4): o.append(I(f"v_add_f32 v{r+j}, v{r+j}, v{r+4+j}"))
        for j in range(4): o.append(I(f"v_add_f32 v{r+8+j}, v{r+8+j}, v{r+12+j}"))
        for j in range(4): o.append(I(f"v_add_f32 v{r+j}, v{r+j}, v{r+8+j}"))
        o += [I(f"v_cvt_pk_bf16_f32 v{r}, v{r}, v{r+1}"), I(f"v_cvt_pk_bf16_f32 v{r+1}, v{r+2}, v{r+3}")]
        if n == 4: o.append(I("s_mov_b32 exec_hi, 0"))
        o.append(I(f"buffer_store_dwordx2 v[{r}:{r+1}], v2, s[12:15], s46 offen offset:{32*n}"))
    a, st = finalize(o, st); txt += text_of(a) + "\nK4_exit:\n"
    return kernel_text("k4_out_kernel", txt, 240, kidx=2)

def launch(): return ("k4_out_kernel", 256, 256, LDS_BYTES, build())
```

```python
import sys, importlib
from common import *
HEADER = open("cdna_kernels/%s.s.ref" % NAME).read().split("; Override launch geometry")[0]
def build(kernels, path):
    txt = HEADER
    for name, grid, block, lds, _ in kernels:
        txt += f"; @launch kernel={name} grid=({grid},1,1) block=({block},1,1) lds={lds}\n"
    txt += '.amdgcn_target "amdgcn-amd-amdhsa--gfx950"\n'
    seen = set()
    for name, _, _, _, code in kernels:
        if name in seen: continue
        seen.add(name); txt += code
    open(path, "w").write(txt)
if __name__ == "__main__":
    import k1, k23, k4
    ks = [k1.launch(), k23.launch(), k4.launch()]
    out = sys.argv[1] if len(sys.argv) > 1 else "cdna_kernels/%s.s" % NAME
    build(ks, out)
```

```python
import sys, importlib
from common import *
HEADER = open("cdna_kernels/%s.s.ref" % NAME).read().split("; Override launch geometry")[0]
def build(kernels, path):
    txt = HEADER
    for name, grid, block, lds, _ in kernels:
        txt += f"; @launch kernel={name} grid=({grid},1,1) block=({block},1,1) lds={lds}\n"
    txt += '.amdgcn_target "amdgcn-amd-amdhsa--gfx950"\n'
    seen = set()
    for name, _, _, _, code in kernels:
        if name in seen: continue
        seen.add(name); txt += code
    fl = os.environ.get("STFLAG", "sc1")
    which = os.environ.get("STK", "k1_,k23_,k4_").split(",")
    out = []; cur = ""
    for line in txt.split("\n"):
        if line.endswith("_kernel:"): cur = line
        if fl and "buffer_store_dwordx4" in line and " sc1" not in line and any(cur.startswith(w) for w in which): line += " " + fl
        out.append(line)
    open(path, "w").write("\n".join(out))
if __name__ == "__main__":
    import k1, k23, k4
    ks = [k1.launch(), k23.launch(), k4.launch()]
    out = sys.argv[1] if len(sys.argv) > 1 else "cdna_kernels/%s.s" % NAME
    build(ks, out)
```

```python
from common import *
from k2 import (S, k_reads, v_reads, qk, pv, softmax_half, set_m, max16, xhalf_max,
                SLOTB, L_Q, L_MISC, QF, KF, VF, SS, PP, OO, VKA, VKB, VVA, NKA, NKB, NVA, LKA, LKB, LVA, VD, VD4, T0)
EXP = os.environ.get('EXP', '').split(',')
DIRECT = 'direct' in EXP
NC1 = int(os.environ.get('NC1', '8'))
PRIO_A = [0, int(os.environ.get('PRIO_A1', '2')), int(os.environ.get('PRIO_A2', '2'))]

VG = 220
CH = 32 * QROW
def dma_chunk():
    o = [I("s_mov_b32 m0, s40")]
    for p in range(4): o.append(I(f"buffer_load_dwordx4 v{VG+p}, s[8:11], s41 offen offset:{1024*p} lds", tag="KV"))
    o += [I("s_add_u32 m0, s40, 4096"), I(f"buffer_load_dwordx4 v{VG+4}, s[8:11], s41 offen lds", tag="KV")]
    return o

def tile_body(kt):
    n1 = kt + 1; n2 = kt + 2
    V = softmax_half(kt, 0, 0) + softmax_half(kt, 0, 1) + softmax_half(kt, 1, 0) + softmax_half(kt, 1, 1)
    qa = qk(n1, 0); qb = qk(n1, 1)
    R = k_reads(n2 % 8, n2 >= 8) + v_reads(n1 % 8, n1 >= 8)
    M = [pv(kt - 1, 1, 1), qa[0], qa[1], pv(kt, 0, 0), qb[0], pv(kt, 0, 1), qb[1], pv(kt, 1, 0)]
    return V, M, R

def state_regs():
    return [QF + 4*i for i in range(4)] + [OO + 16*q + 4*i for q in range(2) for i in range(3)]

def wf_loads():
    b = [I("s_load_dwordx2 s[36:37], s[0:1], 16"), I("s_load_dwordx2 s[38:39], s[0:1], 56"),
         I("s_lshl_b32 s48, s2, 2"), I("s_add_u32 s48, s48, s32"), I("s_mov_b32 s23, 0x00020000"),
         I("s_mul_i32 s51, s48, 729"), I("s_lshr_b32 s51, s51, 16"),
         I("s_mul_i32 s52, s51, 90"), I("s_sub_u32 s52, s48, s52"),
         I("s_mul_i32 s51, s51, 144"),
         I("s_sub_u32 s53, s52, 18"), I("s_lshl_b32 s53, s53, 5"),
         I("s_mov_b32 s54, 8"), I("s_mov_b32 s55, 2"), I("s_mov_b32 s56, 16"), I("s_mov_b32 s57, 4"),
         I("s_sub_u32 s47, s52, 16"), I("s_mul_i32 s47, s47, 288"), I("s_add_u32 s47, s47, 16"),
         I(f"s_mov_b32 s22, {2304*1152}"), I("s_waitcnt lgkmcnt(0)"),
         I("s_cmp_lt_u32 s52, 18"),
         I("s_cselect_b32 s20, s36, s38"), I("s_cselect_b32 s21, s37, s39"), I(f"s_cselect_b32 s22, {576*1152}, s22"),
         I("s_cselect_b32 s53, s47, s53"), I("s_cselect_b32 s54, 36, s54"), I("s_cselect_b32 s55, 18, s55"),
         I("s_cselect_b32 s56, 144, s56"), I("s_cselect_b32 s57, 72, s57"),
         I("s_mul_i32 s47, s52, 36"),
         I("s_cmp_lt_u32 s52, 16"),
         I("s_cselect_b32 s53, s47, s53"), I("s_cselect_b32 s54, 8, s54"), I("s_cselect_b32 s55, 2, s55"),
         I("s_cselect_b32 s56, 18, s56"), I("s_cselect_b32 s57, 4, s57"),
         I("s_mulk_i32 s53, 1152"), I("s_mulk_i32 s54, 1152"), I("s_mulk_i32 s55, 1152"), I("s_mulk_i32 s56, 1152"), I("s_mulk_i32 s57, 1152"),
         I("s_add_u32 s53, s53, s51"),
         I("v_lshrrev_b32 v4, 5, v1"), I("v_mul_lo_u32 v4, v4, s55"), I("v_bfe_u32 v5, v1, 4, 1"), I("v_mul_u32_u24 v5, 1152, v5"),
         I("v_and_b32 v7, 15, v1"), I("v_cmp_lt_u32 vcc, 8, v7"), I("v_lshlrev_b32 v7, 4, v7"), I("v_add3_u32 v4, v4, v5, v7"),
         I("v_mov_b32 v5, 0x7f000000"), I("v_cndmask_b32 v6, v4, v5, vcc"),
         I("s_cmp_lt_u32 s48, 720"), I("s_cselect_b32 s22, s22, 0"),
         I("s_mul_i32 s58, s48, 5120"), I(f"s_add_u32 s58, s58, {WS_WF}"), I("s_cmp_lt_u32 s48, 720"), I("s_cselect_b32 s58, s58, 0x7f000000"),
         I("s_lshl_b32 s50, s32, 13"), I("s_barrier")]
    for p in range(8):
        b.append(I(f"s_add_u32 m0, s50, {1024*p}"))
        if p == 0: src = "s53"
        else:
            src = "s47"
            terms = (["s56"] if p & 4 else []) + (["s57"] if p & 2 else []) + (["s54"] if p & 1 else [])
            b.append(I(f"s_add_u32 s47, s53, {terms[0]}"))
            for t in terms[1:]: b.append(I(f"s_add_u32 s47, s47, {t}"))
        b.append(I(f"buffer_load_dwordx4 v6, s[20:23], {src} offen lds", tag="WFD"))
    return b
def wf_store():
    P = 100
    b = [I("v_lshrrev_b32 v4, 4, v1"), I("v_lshlrev_b32 v4, 11, v4"), I("v_bfe_u32 v5, v1, 2, 2"), I("v_lshl_add_u32 v4, v5, 8, v4"),
         I("v_and_b32 v5, 3, v1"), I("v_lshl_add_u32 v4, v5, 3, v4"), I("v_add_u32 v4, s50, v4"), I("v_lshl_add_u32 v7, v5, 3, v4"), WAITVM("WFD")]
    for nt in range(5):
        for h in range(2):
            if nt < 4: b.append(I(f"ds_read_b64_tr_b16 v[{P+4*nt+2*h}:{P+4*nt+2*h+1}], v7 offset:{1024*h + 64*(nt>>1) + 8*(nt&1)}"))
            else: b.append(I(f"ds_read_b64_tr_b16 v[{P+4*nt+2*h}:{P+4*nt+2*h+1}], v4 offset:{1024*h + 128}"))
    for nt in range(5):
        if nt == 4: b.append(I("s_add_u32 s58, s58, 4096"))
        b.append(I(f"buffer_store_dwordx4 v[{P+4*nt}:{P+4*nt+3}], v{VD}, s[8:11], s58 offen offset:{1024*(nt%4)}"))
    return b

def epi_addr():
    o = [I("v_lshrrev_b32 v6, 5, v1")]
    o += [I("s_lshl_b32 s46, s46, 2"), I("s_mul_i32 s46, s46, 92160"), I(f"s_add_u32 s46, s46, {WS_ACT}"),
          I("s_lshr_b32 s50, s30, 1"), I("s_lshl_b32 s50, s50, 10"), I("s_and_b32 s49, s30, 1"), I("s_lshl_b32 s49, s49, 9"),
          I("s_add_u32 s50, s50, s49"), I("s_add_u32 s50, s50, s46"),
          I("s_lshr_b32 s51, s30, 4"), I("s_add_u32 s51, s51, 16"), I("s_lshl_b32 s51, s51, 10"),
          I("s_bfe_u32 s49, s30, 0x20002"), I("s_lshl_b32 s49, s49, 8"), I("s_add_u32 s51, s51, s49"),
          I("s_and_b32 s49, s30, 3"), I("s_lshl_b32 s49, s49, 2"), I("s_add_u32 s51, s51, s49"), I("s_add_u32 s51, s51, s46"),
          I("v_bfe_u32 v3, v1, 4, 1"), I("s_mov_b32 s49, 92160"), I("v_mul_lo_u32 v3, v3, s49"),
          I("v_and_b32 v4, 15, v1"), I("v_lshl_add_u32 v232, v4, 4, v3"), I("v_lshl_add_u32 v233, v6, 8, v232"),
          I(f"v_add_u32 v234, {2*92160}, v232"), I(f"v_add_u32 v235, {2*92160}, v233")]
    return o

def role_a(part):
    FULL = (part == 1 and NC1 == 8)
    P = f"A{part}"
    c0 = 0 if part == 1 else NC1
    cend = NC1 if part == 1 else 8
    o = [I("s_setprio 2"),
         I("s_and_b32 s30, s2, 7"), I("s_lshl_b32 s30, s30, 2"), I("s_lshr_b32 s46, s2, 6"), I("s_add_u32 s30, s30, s46"),
         I("s_bfe_u32 s31, s2, 0x30003"),
         I(f"v_lshlrev_b32 v{VD}, 4, v1"), I(f"v_add_u32 v{VD4}, 4096, v{VD}"),
         I("s_lshr_b32 s46, s32, 1"), I("s_add_u32 s46, s46, 1"), I(f"s_mul_i32 s42, s46, {QPART}"),
         I("s_and_b32 s46, s32, 1"), I(f"s_mul_i32 s46, s46, {16*QROW}"), I("s_add_u32 s42, s42, s46"),
         I("s_mul_i32 s47, s30, 288"), I("v_mov_b32 v5, 9216")]
    for p in range(5):
        o += [I(f"v_add_u32 v2, {64*p}, v1"), I("v_mul_u32_u24 v3, 3277, v2"), I("v_lshrrev_b32 v3, 16, v3"),
              I("v_mul_u32_u24 v4, 20, v3"), I("v_sub_u32 v2, v2, v4"), I("v_cmp_gt_u32 vcc, 18, v2"),
              I("v_lshl_add_u32 v2, v2, 4, s47"), I("v_cndmask_b32 v2, v5, v2, vcc"),
              I(f"v_mul_u32_u24 v3, {QROW}, v3"), I(f"v_add_u32 v{VG+p}, v2, v3")]
        if 0 < p < 4: o.append(I(f"v_subrev_u32 v{VG+p}, {1024*p}, v{VG+p}"))
    o += [
         I("s_mul_i32 s43, s32, 5120"),
         I("s_mov_b32 s40, s43"), I(f"s_add_u32 s41, s42, {CH*c0}")]
    o += [Ins(x.text, "KV0") for x in dma_chunk()]
    o += [I("s_lshl_b32 s53, s2, 2"), I("s_add_u32 s53, s53, s32"), I("s_mul_i32 s53, s53, 10240"), I(f"s_add_u32 s53, s53, {WS_ST}"),
          I("s_add_u32 s54, s53, 8192")]
    if part == 1:
        o += [I("s_lshl_b32 s46, s31, 2"), I("s_add_u32 s46, s46, s32"), I(f"s_mul_i32 s47, s46, {8*QROW}"),
              I("s_mul_i32 s33, s32, 3072"), I(f"s_add_u32 s33, s33, {L_Q}"), I("s_mov_b32 m0, s33")]
        for p in range(3): o.append(I(f"buffer_load_dwordx4 v{VG+p}, s[8:11], s47 offen offset:{1024*p} lds", tag="Q"))
    else:
        for i, r in enumerate(state_regs()):
            o.append(I(f"buffer_load_dwordx4 v[{r}:{r+3}], v{VD4 if 4 <= i < 8 else VD}, s[8:11], {'s54' if i >= 8 else 's53'} offen offset:{1024*(i%4)}"))
    TRI = (part == 1 and 'notri' not in EXP)
    if TRI:
        for c in (1, 2): o += [I(f"s_add_u32 s40, s43, {SLOTB*c}"), I(f"s_add_u32 s41, s42, {CH*(c0+c)}")] + dma_chunk()
    o += stamp(4)
    o += [I("v_bfe_u32 v2, v1, 4, 1"), I("v_lshlrev_b32 v2, 1, v2"),
          I("v_and_b32 v3, 1, v1"), I("v_add_u32 v3, v2, v3"), I("v_mul_u32_u24 v3, 320, v3"),
          I("v_bfe_u32 v4, v1, 1, 1"), I("v_lshl_add_u32 v3, v4, 3, v3"),
          I("v_bfe_u32 v5, v1, 2, 2"), I("v_lshlrev_b32 v5, 4, v5"),
          I("v_lshrrev_b32 v6, 5, v1"),
          I(f"v_add_u32 v{LKB}, v3, v5"), I(f"v_lshl_add_u32 v{LKA}, v6, 7, v{LKB}"), I(f"v_add_u32 v{LKB}, 256, v{LKB}"),
          I("v_mul_u32_u24 v7, 320, v6"), I("v_and_b32 v8, 31, v1"), I("v_lshl_add_u32 v7, v8, 4, v7"), I(f"v_add_u32 v{LVA}, 10240, v7"),
          I("v_cmp_gt_u32 s[44:45], 32, v1"),
          I("s_mov_b32 s56, 0xfffff"), I("s_mov_b32 s57, 0xfffff")]
    for b in range(2):
        o += [I(f"v_mov_b32 v{KF+8*b+6}, 0x3f80"), I(f"v_mov_b32 v{KF+8*b+7}, 0")]
    for r in range(16): o.append(I(f"v_mov_b32 v{VF+r}, 0"))
    nxt = [I(f"s_add_u32 s40, s43, {SLOTB}"), I(f"s_add_u32 s41, s42, {CH*(c0+1)}")] + dma_chunk()
    if TRI: nxt = []
    if part == 1:
        o += [I("v_add_u32 v2, v2, v4"), I("v_mul_u32_u24 v2, 320, v2"), I("v_and_b32 v3, 1, v1"), I("v_lshl_add_u32 v2, v3, 3, v2"),
              I(f"v_add3_u32 v{T0}, v2, v5, s33"), I(f"v_lshl_add_u32 v{T0+1}, v6, 7, v{T0}")]
        o += [I("s_load_dwordx2 s[36:37], s[0:1], 16"), I("s_load_dwordx2 s[38:39], s[0:1], 56"),
              I("v_and_b32 v228, 7, v1"), I("v_lshlrev_b32 v228, 7, v228"), I("v_lshrrev_b32 v229, 3, v1"), I("v_lshl_add_u32 v228, v229, 12, v228"),
              I("v_mov_b32 v229, 0x7f000000"), I("v_cmp_gt_u32 vcc, 16, v1"), I("v_cndmask_b32 v228, v229, v228, vcc"),
              I("v_lshlrev_b32 v227, 7, v1"), I("v_cndmask_b32 v227, v229, v227, s[44:45]"),
              I("s_lshl_b32 s51, s2, 2"), I("s_add_u32 s51, s51, s32"), I("s_lshl_b32 s52, s51, 13"),
              I("s_mov_b32 s16, s24"), I("s_mov_b32 s17, s25"), I(f"s_mov_b32 s18, {2048*4096}"), I("s_mov_b32 s19, 0x00020000"),
              I("s_sub_u32 s50, s51, 648"), I(f"s_mov_b32 s22, {576*1152}"), I("s_mov_b32 s23, 0x00020000"), I("s_waitcnt lgkmcnt(0)"),
              I("s_cmp_lt_u32 s51, 648"), I("s_cselect_b32 s20, s38, s36"), I("s_cselect_b32 s21, s39, s37"), I(f"s_cselect_b32 s22, {2304*1152}, s22"),
              I("s_cselect_b32 s50, s51, s50"), I("s_lshl_b32 s50, s50, 12")]
        for q in range(2): o += [I(f"v_mov_b32 v{QF+8*q+6}, 0"), I(f"v_mov_b32 v{QF+8*q+7}, 0")]
        for r in range(32): o.append(I(f"v_mov_b32 v{OO+r}, 0"))
        o += [I(f"v_mov_b32 v{VKA}, v{LKA}"), I(f"v_mov_b32 v{VKB}, v{LKB}"), WAITVM("Q")]
        for q in range(2):
            o += [I(f"ds_read_b64_tr_b16 v[{QF+8*q}:{QF+8*q+1}], v{T0+1} offset:{1280*q}"),
                  I(f"ds_read_b64_tr_b16 v[{QF+8*q+2}:{QF+8*q+3}], v{T0+1} offset:{1280*q+64}"),
                  I(f"ds_read_b64_tr_b16 v[{QF+8*q+4}:{QF+8*q+5}], v{T0} offset:{1280*q+256}")]
        o += [I("s_barrier")] + k_reads(0) + nxt
        for q in range(2):
            o += [I(f"v_cndmask_b32 v{QF+8*q+4}, 0, v{QF+8*q+4}, s[44:45]"), I(f"v_mov_b32 v{QF+8*q+5}, 0")]
        o += qk(0, 0) + qk(0, 1)
        o += max16(T0, S(0, 0), True) + max16(T0+1, S(0, 1), True) + xhalf_max(T0, T0+2) + xhalf_max(T0+1, T0+3)
        o += set_m(T0, 0, T0+4) + set_m(T0+1, 1, T0+8) + [I("s_mov_b32 s34, 0")]
    else:
        o += [I("s_lshl_b32 s46, s31, 2"), I("s_add_u32 s46, s46, s32"), I("s_lshl_b32 s47, s46, 8"), I(f"s_add_u32 s47, s47, {WS_G}"),
              I("v_lshlrev_b32 v3, 2, v8"),
              I("buffer_load_dword v230, v3, s[8:11], s47 offen"), I("buffer_load_dword v231, v3, s[8:11], s47 offen offset:128")]
        o += epi_addr()
        for q in range(2):
            for r in range(12, 16): o.append(I(f"v_mov_b32 v{OO+16*q+r}, 0"))
        o += [I("s_mov_b32 s34, 0"), WAITVM("KV0"), I("s_barrier")] + nxt + [I("s_waitcnt vmcnt(7)")]
    lo = c0 + (1 if TRI else 0)
    o += [I(f"s_mov_b32 s55, {lo}"), I(f"s_mov_b32 s58, {max(0, cend - 2 - lo)}")]
    o += [I(f"s_mov_b32 s35, {c0}"), I(f"s_add_u32 s41, s42, {CH*(c0+2)}"), I(f"s_setprio {PRIO_A[part]}"), I("s_nop 1"), RAW(f"{P}_main:")]
    a, st = finalize(o)
    txt = text_of(a) + "\n"
    o = [I(f"v_mov_b32 v{VKA}, v{LKA}"), I(f"v_mov_b32 v{VKB}, v{LKB}"), I(f"v_mov_b32 v{VVA}, v{LVA}")]
    o += k_reads(0) + k_reads(1) + [I("s_mov_b64 exec, s[56:57]")] + v_reads(0) + [I("s_mov_b64 exec, -1")]
    o += [I(f"v_add_u32 v{NKA}, {SLOTB}, v{LKA}"), I(f"v_add_u32 v{NKB}, {SLOTB}, v{LKB}"), I(f"v_add_u32 v{NVA}, {SLOTB}, v{LVA}"),
          I(f"s_mov_b32 s36, {2*SLOTB}")]
    for r in range(4): o += [I(f"v_mov_b32 v{PP+12+r}, 0"), I(f"v_mov_b32 v{VF+12+r}, 0")]
    o += stamp(2) + qk(0, 0) + qk(0, 1)
    o += [I("s_nop 7"), RAW(f"{P}_loop:")]
    a, st = finalize(o, st)
    txt += text_of(a) + "\n"
    body = []
    if STAMPS and 'cst' in EXP:
        body += [I(f"s_mov_b32 s{SB+2*(5+i)}, s{SB+2*(6+i)}") for i in range(7)] + stamp(12) + [I("s_waitcnt lgkmcnt(0)")]
    for kt in range(8):
        V, M, R = tile_body(kt)
        X = {0: [I("s_waitcnt lgkmcnt(0)"), R[0]], 1: [R[1]], 2: [R[2]],
             3: [I("s_mov_b64 exec, s[56:57]"), R[3], R[4], I("s_mov_b64 exec, -1")]}
        if 'novmask' in EXP: X[3] = [R[3], R[4]]
        if kt == 4:
            X[6] = [I("s_waitcnt vmcnt(0)")]
            X[7] = [I("s_barrier")]
        def gd(i, txt): return RAW(f"    s_cbranch_scc1 {P}_nd{i}\n    {txt}\n{P}_nd{i}:")
        if kt == 4:
            X[4] = [I("s_add_u32 s40, s43, s36")]
            X[5] = [I("s_add_u32 s59, s40, 4096")]
        if kt == 5:
            X[4] = [I("s_sub_u32 s37, s35, s55")]
            X[5] = [I("s_cmp_ge_u32 s37, s58"), I("s_mov_b32 m0, s40")]
            X[6] = [gd(0, f"buffer_load_dwordx4 v{VG+0}, s[8:11], s41 offen lds")]
            X[7] = [gd(1, f"buffer_load_dwordx4 v{VG+1}, s[8:11], s41 offen offset:1024 lds")]
        if kt == 6:
            X[4] = [gd(2, f"buffer_load_dwordx4 v{VG+2}, s[8:11], s41 offen offset:2048 lds")]
            X[5] = [gd(3, f"buffer_load_dwordx4 v{VG+3}, s[8:11], s41 offen offset:3072 lds")]
            X[6] = [I("s_mov_b32 m0, s59")]
            X[7] = [gd(4, f"buffer_load_dwordx4 v{VG+4}, s[8:11], s41 offen lds")]
        if kt == 1 and part == 1 and 'notouch' not in EXP:
            X[4] = [I("s_sub_u32 s37, s35, 1")]
            X[5] = [I("s_cmp_ge_u32 s37, 3")]
            X[6] = [RAW(f"    s_cbranch_scc1 {P}_nt0\n    buffer_load_dword v229, v228, s[16:19], s52 offen\n{P}_nt0:")]
            X[7] = [I("s_add_u32 s52, s52, 1024")]
        if kt == 2 and part == 1 and 'notouch' not in EXP:
            X[5] = [I("s_cmp_lg_u32 s35, 2")]
            X[6] = [RAW(f"    s_cbranch_scc1 {P}_nt1\n    buffer_load_dword v229, v227, s[20:23], s50 offen\n{P}_nt1:")]
        if kt == 7:
            X[4] = [I(f"s_add_u32 s41, s41, {CH}"), I(f"v_mov_b32 v{VKA}, v{NKA}"), I(f"v_mov_b32 v{VKB}, v{NKB}"), I(f"v_mov_b32 v{VVA}, v{NVA}"),
                    I(f"v_add_u32 v{NKA}, s36, v{LKA}"), I(f"v_add_u32 v{NKB}, s36, v{LKB}"), I(f"v_add_u32 v{NVA}, s36, v{LVA}")]
            X[5] = [I(f"s_add_u32 s36, s36, {SLOTB}"), I(f"s_cmp_eq_u32 s36, {3*SLOTB}")]
            X[6] = [I("s_cselect_b32 s36, 0, s36"), I("s_add_u32 s35, s35, 1")]
            X[7] = [I(f"s_cmp_lt_u32 s35, {cend}")]
        for i in range(8):
            body += V[6*i:6*i+2] + [M[i]] + X.get(i, []) + V[6*i+2:6*i+6]
    body += [I(f"s_cbranch_scc1 {P}_loop")]
    a, st = finalize_loop(body, st)
    txt += text_of(a) + "\n"
    o = [I("s_nop 0"), pv(7, 1, 1)] + stamp(3)
    if FULL:
        o += [I("s_and_b32 s47, s2, 63"), I("s_lshl_b32 s47, s47, 7"), I(f"s_add_u32 s47, s47, {WS_CNT + 4096}"), I("v_mov_b32 v2, 0"), I("s_mov_b32 s48, 0"),
              RAW(f"{P}_gpoll:\n    buffer_load_dword v3, v2, s[8:11], s47 offen sc1\n    s_add_u32 s48, s48, 1\n    s_waitcnt vmcnt(0)\n    v_cmp_ne_u32 vcc, 16, v3\n"
                  f"    s_cmp_gt_u32 s48, 0x10000\n    s_cbranch_scc1 {P}_gok\n    s_cbranch_vccz {P}_gok\n    s_sleep 2\n    s_branch {P}_gpoll\n{P}_gok:"),
              I("s_lshl_b32 s46, s31, 2"), I("s_add_u32 s46, s46, s32"), I("s_lshl_b32 s47, s46, 8"), I(f"s_add_u32 s47, s47, {WS_G}"),
              I("v_and_b32 v3, 31, v1"), I("v_lshlrev_b32 v3, 2, v3"),
              I("buffer_load_dword v230, v3, s[8:11], s47 offen sc1"), I("buffer_load_dword v231, v3, s[8:11], s47 offen offset:128 sc1")]
        o += epi_addr()
    if part == 1 and not FULL:
        for i, r in enumerate(state_regs()):
            o.append(I(f"buffer_store_dwordx4 v[{r}:{r+3}], v{VD4 if 4 <= i < 8 else VD}, s[8:11], {'s54' if i >= 8 else 's53'} offen offset:{1024*(i%4)}"))
        o += [I("s_setprio 0")] + wf_loads() + wf_store()
        o.append(I("s_endpgm"))
        a, _ = finalize(o, st)
        return txt + text_of(a) + "\n"
    o += [I("s_setprio 3")]
    for q in range(2):
        O = OO + 16*q; t = T0 + 8 + 16*q
        o += [I(f"v_mov_b32 v{t}, v{O+10}"), I(f"v_mov_b32 v{t+1}, v{O+10}"),
              I(f"v_add_f32 v{T0+q}, abs(v{O}), abs(v{O+1})")]
        o.append(I(f"v_permlane32_swap_b32 v{t}, v{t+1}"))
        for r in range(2, 11): o.append(I(f"v_add_f32 v{T0+q}, v{T0+q}, abs(v{O+r})"))
        o += [I(f"v_rcp_f32 v{t}, v{t}"), I(f"v_mul_f32 v{t}, v{t}, v{230+q}")]
        for r in range(10): o.append(I(f"v_mul_f32 v{O+r}, v{O+r}, v{t}"))
        for r in range(5): o.append(I(f"v_cvt_pk_bf16_f32 v{t+4+r}, v{O+2*r}, v{O+2*r+1}"))
        o.append(I(f"buffer_store_dwordx4 v[{t+4}:{t+7}], v233, s[8:11], s{59+q} offen sc1" if False else f"buffer_store_dwordx4 v[{t+4}:{t+7}], v{233+2*q}, s[8:11], s50 offen sc1"))
        o += [I("s_mov_b64 exec, s[44:45]"), I(f"buffer_store_dword v{t+8}, v{232+2*q}, s[8:11], s51 offen sc1"), I("s_mov_b64 exec, -1")]
    o += [I(f"v_add_f32 v{T0}, v{T0}, v{T0+1}"), I(f"v_mov_b32 v{T0+2}, {f32(2.0**100)}"),
          I(f"v_cmp_nlt_f32 vcc, v{T0}, v{T0+2}"), I("s_cmp_lg_u64 vcc, 0"), I("s_cselect_b32 s48, 1, 0"),
          I(f"v_mov_b32 v{T0+3}, s48"), I("s_lshl_b32 s49, s32, 2"), I("v_mov_b32 v4, s49"),
          I(f"ds_write_b32 v4, v{T0+3} offset:{L_MISC+256}"),
          I("s_lshl_b32 s46, s31, 7"), I(f"s_add_u32 s46, s46, {WS_CNT2}"), I("s_lshl_b32 s47, s31, 12"), I(f"s_add_u32 s47, s47, {WS_FLG2}"),
          I("v_mov_b32 v2, 0"), I("v_mov_b32 v3, 1"), I("v_mov_b32 v5, 1"), I("v_lshlrev_b32 v4, 7, v1"),
          I("s_waitcnt vmcnt(0) lgkmcnt(0)"), I("s_barrier"),
          I(f"ds_read_b128 v[{T0+4}:{T0+7}], v2 offset:{L_MISC+256}"),
          I(f"v_or3_b32 v{T0+4}, v{T0+4}, v{T0+5}, v{T0+6}"), I(f"v_or_b32 v{T0+4}, v{T0+4}, v{T0+7}"),
          I(f"v_readfirstlane_b32 s48, v{T0+4}"),
          I("s_andn2_b32 s48, s48, s34"), I("s_cmp_lg_u32 s48, 0"), I(f"s_cbranch_scc1 {P}_fallback")]
    if FULL:
        o += [I("s_setprio 0")] + wf_loads() + wf_store()
    elif DIRECT:
        o += [RAW(f"    s_cmp_lg_u32 s32, 0\n    s_cbranch_scc1 {P}_done\n    s_mov_b32 exec_hi, 0\n    buffer_atomic_add v5, v4, s[8:11], s47 offen sc1\n{P}_done:")]
    else:
        o += [RAW(f"    s_cmp_lg_u32 s32, 0\n    s_cbranch_scc1 {P}_done\n    s_mov_b64 exec, 1\n    buffer_atomic_add v3, v2, s[8:11], s46 offen sc0 sc1\n    s_waitcnt vmcnt(0)\n"
              f"    v_readfirstlane_b32 s48, v3\n    s_cmp_lg_u32 s48, 31\n    s_cbranch_scc1 {P}_done\n    s_mov_b32 exec_lo, -1\n"
              f"    buffer_store_dword v5, v4, s[8:11], s47 offen sc1\n{P}_done:")]
    o += [I("s_endpgm")]
    a, _ = finalize(o, st)
    txt += text_of(a) + "\n"
    o = [RAW(f"{P}_fallback:"), I("s_waitcnt vmcnt(0) lgkmcnt(0)"), I("s_nop 15"),
         I("s_mov_b32 s18, 0"), I("s_mov_b32 s22, 0"), I("s_mov_b32 s34, 1"), I("s_mov_b32 s35, 0"), I("s_mov_b32 s41, s42"), I("s_mov_b32 s40, s43"),
         I(f"v_mov_b32 v{T0}, 0xff7fffff"), I(f"v_mov_b32 v{T0+1}, 0xff7fffff")]
    for q in range(2): o += [I(f"v_mov_b32 v{QF+8*q+5}, 0"), I(f"v_mov_b32 v{QF+8*q+6}, 0")]
    o += [RAW(f"{P}_fb_chunk:"), I("s_barrier")] + dma_chunk() + [I("s_waitcnt vmcnt(0)"), I("s_barrier"),
          I(f"v_mov_b32 v{VKA}, v{LKA}"), I(f"v_mov_b32 v{VKB}, v{LKB}"), I("s_mov_b32 s36, 0"), RAW(f"{P}_fb_tile:")]
    o += k_reads(0) + qk(0, 0) + qk(0, 1) + max16(T0, S(0, 0)) + max16(T0+1, S(0, 1))
    o += [I(f"v_add_u32 v{VKA}, 1280, v{VKA}"), I(f"v_add_u32 v{VKB}, 1280, v{VKB}"),
          I("s_add_u32 s36, s36, 1"), I("s_cmp_lt_u32 s36, 8"), I(f"s_cbranch_scc1 {P}_fb_tile"),
          I(f"s_add_u32 s41, s41, {CH}"), I("s_add_u32 s35, s35, 1"), I("s_cmp_lt_u32 s35, 8"), I(f"s_cbranch_scc1 {P}_fb_chunk")]
    o += xhalf_max(T0, T0+2) + xhalf_max(T0+1, T0+3) + set_m(T0, 0, T0+4) + set_m(T0+1, 1, T0+8)
    for r in range(32): o.append(I(f"v_mov_b32 v{OO+r}, 0"))
    o += [I("s_barrier"), I("s_mov_b32 s41, s42")] + dma_chunk()
    o += [I(f"s_add_u32 s40, s43, {SLOTB}"), I(f"s_add_u32 s41, s42, {CH}")] + dma_chunk()
    o += [I("s_mov_b32 s55, 0"), I("s_mov_b32 s58, 6"), I("s_mov_b32 s35, 0"), I(f"s_add_u32 s41, s42, {2*CH}"), I("s_waitcnt vmcnt(0)"), I("s_barrier"), I("s_nop 7"), I(f"s_branch {P}_main")]
    a, _ = finalize(o)
    txt += text_of(a) + "\n"
    return txt
```

```python
from asmlib import *
import struct, math, os

NAME = "gated_mix__mha_block__mixer_gmlp__prompt"
WS_QKV = 0
QROW = 9344; QPART = 256 * QROW
QKV_BYTES = 3 * QPART
WS_Z = 8 << 20
Z_BYTES = 144 * 65536
WS_Z2N = 28 << 20
Z2N_BYTES = 144 * 65536
WS_ACT = 40 << 20
ACT_BYTES = 128 * 90 * 1024
WS_WF = 52 << 20
WF_BYTES = 8 * 90 * 5 * 1024
WS_G = 56 << 20
G_BYTES = 8192
WS_CNT = (56 << 20) + 65536
WS_CNT2 = WS_CNT + 12288
WS_CNT3 = WS_CNT + 13312
MERGE = os.environ.get('MERGE', '1') == '1'
WS_FLG2 = WS_CNT + 16384
WS_ST = 18350080
WS_USED = 57 << 20

def f32(x): return "0x%08x" % struct.unpack("<I", struct.pack("<f", x))[0]
LOG2E = 1.4426950408889634
QSCALE = LOG2E / math.sqrt(18.0)
GELU_C1 = -2.0 * math.sqrt(2.0 / math.pi) * LOG2E
GELU_C2 = GELU_C1 * 0.044715

def srd(d, lo, hi, size, off=0):
    o = []
    if size == WS_USED: off += int(os.environ.get("WSOFF", "0")) << 20
    if off:
        o += [I(f"s_add_u32 s{d}, s{lo}, {off}"), I(f"s_addc_u32 s{d+1}, s{hi}, 0")]
    else:
        o += [I(f"s_mov_b32 s{d}, s{lo}"), I(f"s_mov_b32 s{d+1}, s{hi}")]
    o += [I(f"s_mov_b32 s{d+2}, {size}"), I(f"s_mov_b32 s{d+3}, 0x00020000")]
    return o

def kernel_text(name, body, vgpr, sgpr=96, accum=None):
    if accum is None: accum = (min(vgpr, 256) + 3) // 4 * 4
    return f""".text
.globl {name}
.p2align 8
.type {name},@function
{name}:
{body}
    s_endpgm
{name}_end:
.section .rodata,"a"
.p2align 6
.amdhsa_kernel {name}
  .amdhsa_next_free_vgpr {vgpr}
  .amdhsa_next_free_sgpr {sgpr}
  .amdhsa_accum_offset {accum}
  .amdhsa_group_segment_fixed_size 0
  .amdhsa_kernarg_size 96
  .amdhsa_user_sgpr_count 2
  .amdhsa_user_sgpr_kernarg_segment_ptr 1
  .amdhsa_system_sgpr_workgroup_id_x 1
.end_amdhsa_kernel
"""

import os
STAMPS = bool(int(os.environ.get("STAMPS", "0")))
WS_STAMP = 60 << 20
SB = 64
def stamp(i):
    if not STAMPS: return []
    return [I(f"s_memtime s[{SB+2*i}:{SB+2*i+1}]")]
def stamp_rt(i):
    if not STAMPS: return []
    return [I(f"s_memrealtime s[{SB+2*i}:{SB+2*i+1}]")]
def stamp_entry():
    if not STAMPS: return ""
    return (f"    s_memrealtime s[{SB}:{SB+1}]\n    s_memtime s[{SB+2}:{SB+3}]\n    v_readfirstlane_b32 s63, v0\n"
            f"    s_mov_b32 s62, s2\n    s_mov_b32 s60, s0\n    s_mov_b32 s61, s1\n" +
            "".join(f"    s_mov_b32 s{SB+i}, 0\n" for i in range(4, 32)))
def stamp_exit(kidx, name):
    if not STAMPS: return ""
    t = f"{name}_stampexit:\n    s_mov_b64 exec, -1\n    s_waitcnt vmcnt(0) lgkmcnt(0)\n    s_memtime s[{SB+28}:{SB+29}]\n    s_memrealtime s[{SB+30}:{SB+31}]\n"
    t += "    s_load_dwordx2 s[4:5], s[60:61], 88\n    s_waitcnt lgkmcnt(0)\n"
    t += f"    s_add_u32 s4, s4, {WS_STAMP + kidx*(1<<20)}\n    s_addc_u32 s5, s5, 0\n    s_mov_b32 s6, 0x100000\n    s_mov_b32 s7, 0x00020000\n"
    t += "    v_mov_b32 v1, 0\n"
    for i in range(16):
        t += f"    v_writelane_b32 v1, s{SB+2*i}, {i}\n"
    t += "    s_lshr_b32 s63, s63, 6\n    s_lshl_b32 s62, s62, 3\n    s_add_u32 s62, s62, s63\n    s_lshl_b32 s62, s62, 8\n"
    t += "    v_mbcnt_lo_u32_b32 v2, -1, 0\n    v_mbcnt_hi_u32_b32 v2, -1, v2\n    v_lshlrev_b32 v2, 2, v2\n"
    t += "    buffer_store_dword v1, v2, s[4:7], s62 offen\n    s_endpgm\n"
    return t
_kt = kernel_text
def kernel_text(name, body, vgpr, sgpr=96, accum=None, kidx=0):
    if STAMPS:
        body = stamp_entry() + body.replace("s_endpgm", f"s_branch {name}_stampexit") + f"\n    s_branch {name}_stampexit\n" + stamp_exit(kidx, name)
    return _kt(name, body, vgpr, sgpr, accum)

def code_prefetch(label, nbytes_per_wave, swave, vlane, vt, sp):
    lanes = nbytes_per_wave // 128
    mask = (1 << lanes) - 1
    t = (f"    s_getpc_b64 s[{sp}:{sp+1}]\n"
         f"    s_add_u32 s{sp}, s{sp}, {label}-.\n    s_addc_u32 s{sp+1}, s{sp+1}, 0\n"
         f"    s_mul_i32 s{sp+2}, s{swave}, {nbytes_per_wave}\n    v_lshlrev_b32 v{vt}, 7, v{vlane}\n    v_add_u32 v{vt}, s{sp+2}, v{vt}\n"
         f"    s_mov_b32 exec_lo, {hex(mask & 0xffffffff)}\n    s_mov_b32 exec_hi, {hex(mask >> 32)}\n"
         f"    global_load_dword v{vt+1}, v{vt}, s[{sp}:{sp+1}]\n    s_mov_b64 exec, -1\n")
    return t
```

```python
from common import *
import k2
from k2 import (S, k_reads, v_reads, qk, pv, softmax_half, dma_chunk, set_m, max16, xhalf_max, dpp_reduce,
                SLOTB, L_Q, L_MISC, QF, KF, VF, SS, PP, OO, VKA, VKB, VVA, NKA, NKB, NVA, LKA, LKB, LVA, VD, VD4, T0)
EXP = os.environ.get('EXP', '').split(',')
LDS_BYTES = 74240
PRIO_A = int(os.environ.get('PRIO_A', '2')); PRIO_B = int(os.environ.get('PRIO_B', '0'))

import attn
def role_a(): return attn.role_a(1)

ZSLOT = 9216; ZBASE = 32768
ACC = 16
ZF = [88, 124]
WFr = [160, 176]
Z1P = 192
VA = 228
VZ = 232
RB = 233
RA = 235
VT = 236
TB = 238
VX1 = 244
VA1 = 248
RT1 = 251; RT8 = 252
VP = 253
LB_MISC = 69632
BURST = int(os.environ.get('BURST', '0'))
def accr(T, tt): return ACC + 16*(T >> 1) + 8*tt + 4*(T & 1) if T < 8 else ACC + 64 + 4*tt

def dma_rows(slot, vo, srdn, so):
    g = [[I(f"s_add_u32 m0, s40, {slot*16384}")]]
    for p in range(4): g.append([I(f"buffer_load_dwordx4 v{vo+p}, {srdn}, {so} offen offset:{1024*p} lds", tag=f"W{slot}")])
    g[-1].append(I(f"s_add_u32 {so}, {so}, 128"))
    return g
def gdma_w(slot): return dma_rows(slot, VA, "s[12:15]", "s42")
def pdma_x(slot): return dma_rows(slot, VX1, "s[36:39]", "s34")
def dma_img(slot, vos, srdn, so, step, fl):
    return [[I(f"s_add_u32 m0, s41, {slot*ZSLOT}")],
            [I(f"buffer_load_dwordx4 v{vos[0]}, {srdn}, {so} offen{fl} lds", tag=f"D{slot}")],
            [I(f"buffer_load_dwordx4 v{vos[1]}, {srdn}, {so} offen offset:1024{fl} lds", tag=f"D{slot}")],
            [I("s_mov_b64 exec, 0xffff"), I(f"buffer_load_dwordx4 v{vos[2]}, {srdn}, {so} offen offset:2048{fl} lds", tag=f"D{slot}"), I("s_mov_b64 exec, -1"),
             I(f"s_add_u32 {so}, {so}, {step}")]]
def gdma_z(slot): return dma_img(slot, [VZ]*3, "s[8:11]", "s43", 9216, " sc1")
def pdma_a(slot): return dma_img(slot, [VA1, VA1+1, VA1+2], "s[20:23]", "s49", 32*9216, "")
if 'p1lin' in EXP:
    def pdma_a(slot): return dma_img(slot, [VZ]*3, "s[20:23]", "s49", 9216, "")
def flat(g): return [x for l in g for x in l]
def areads(slot, st_, tr):
    z = ZF[st_]
    if not tr: return [I(f"ds_read_b128 v[{z+4*i}:{z+4*i+3}], v{RA} offset:{slot*ZSLOT + 1024*i}") for i in range(9)]
    o = []
    for T in range(9):
        for h in range(2):
            if T < 8: o.append(I(f"ds_read_b64_tr_b16 v[{z+4*T+2*h}:{z+4*T+2*h+1}], v{RT1} offset:{slot*ZSLOT + 4608*h + 64*(T>>1) + 16*(T&1)}"))
            else: o.append(I(f"ds_read_b64_tr_b16 v[{z+4*T+2*h}:{z+4*T+2*h+1}], v{RT8} offset:{slot*ZSLOT + 4608*h}"))
    return o
def wreads(slot):
    w = WFr[slot]
    return [I(f"ds_read_b128 v[{w+8*ks+4*tt}:{w+8*ks+4*tt+3}], v{RB+ks} offset:{slot*16384 + 2048*tt}") for ks in range(2) for tt in range(2)]
def gmfmas(s, zero=False):
    z = ZF[s % 2]; w = WFr[(s >> 1) & 1] + 8*(s & 1)
    return [I(f"v_mfma_f32_16x16x32_bf16 v[{accr(T,tt)}:{accr(T,tt)+3}], v[{z+4*T}:{z+4*T+3}], v[{w+4*tt}:{w+4*tt+3}], " + ("0" if zero else f"v[{accr(T,tt)}:{accr(T,tt)+3}]"))
            for T in range(9) for tt in range(2)]
SYNC = int(os.environ.get('SYNC', '2'))
def gstage(s, dm, last=False, tr=False, zero=False, pre=()):
    ns = (s + 1) % 4
    mf = gmfmas(s, zero)
    if last: return mf
    tags = [f"D{ns}"] + ([f"W{(ns >> 1) & 1}"] if s & 1 else [])
    rd = areads(ns, ns % 2, tr)
    if s & 1: rd = wreads((ns >> 1) & 1)[:2] + rd + wreads((ns >> 1) & 1)[2:]
    side = []
    rd = [[x] for x in rd]; dm = list(dm)
    while rd or dm:
        if dm: side.append(dm.pop(0))
        if rd: side.append(rd.pop(0))
        if rd and len(rd) > len(dm): side.append(rd.pop(0))
    o = mf[:SYNC] + [WAITDS()] + ([WAITVM(tags)] if 'novm' not in EXP else []) + list(pre) + ([I("s_barrier")] if 'nobar' not in EXP else [])
    if 'nodma' in EXP: side = [g for g in side if not any(x.ldsdma for x in g)]
    rest = mf[SYNC:]; n = len(rest); m = len(side); j = 0
    if BURST: o.append(I("s_setprio 3"))
    for i, x in enumerate(rest):
        o.append(x)
        if BURST and i == BURST - 1: o.append(I("s_setprio 0"))
        tgt = min(m, -(-(i + 1) * m // n))
        o += flat(side[j:tgt]); j = tgt
    return o

def ln_loads():
    R = 64
    o = [I("v_lshrrev_b32 v2, 4, v0"), I("v_mul_u32_u24 v3, 2304, v2"), I("v_and_b32 v4, 15, v0"),
         I("v_lshl_add_u32 v13, v4, 4, v3"), I("v_and_b32 v5, 24, v0"), I("v_lshl_add_u32 v14, v5, 4, v13"),
         I("s_and_b32 s59, s2, 7"), I("s_lshl_b32 s59, s59, 5"), I("s_lshr_b32 s46, s2, 3"), I("s_add_u32 s59, s59, s46"),
         I("s_mul_i32 s46, s59, 36864"), I(f"s_add_u32 s46, s46, {WS_Z}"),
         I("v_and_b32 v5, 16, v0"), I("v_xor_b32 v5, 16, v5"), I("v_lshl_add_u32 v13, v5, 7, v13")]
    for i in range(9):
        if i < 8: o.append(I(f"buffer_load_dwordx4 v[{R+4*i}:{R+4*i+3}], v14, s[8:11], s46 offen offset:{512*(i>>1) + 128*(i&1)}"))
        else: o.append(I(f"buffer_load_dwordx4 v[{R+4*i}:{R+4*i+3}], v13, s[8:11], s46 offen"))
    o += [I("s_mov_b32 s46, 589824"), I("v_mul_lo_u32 v2, v2, s46"), I("v_lshl_add_u32 v15, v4, 4, v2")]
    return o

def ln_compute():
    R = 64; F = 100; A = 16; B = 32
    o = []
    for i in range(9):
        for d in range(4):
            k = 4*i + d
            o += [I(f"v_lshlrev_b32 v{F+2*k}, 16, v{R+k}"), I(f"v_and_b32 v{F+2*k+1}, 0xffff0000, v{R+k}")]
        if i == 0:
            for j in range(8): o.append(I(f"v_mul_f32 v{A+8+j}, v{F+j}, v{F+j}"))
        else:
            for j in range(8): o.append(I(f"v_add_f32 v{A+j}, v{F+j if i == 1 else A+j}, v{F+8*i+j}"))
            for j in range(8): o.append(I(f"v_fmac_f32 v{A+8+j}, v{F+8*i+j}, v{F+8*i+j}"))
    o += [I("v_and_b32 v2, 1, v1"), I("v_cmp_eq_u32 s[50:51], 0, v2"), I("v_and_b32 v2, 2, v1"), I("v_cmp_eq_u32 s[52:53], 0, v2"),
          I("v_and_b32 v2, 4, v1"), I("v_cmp_eq_u32 s[54:55], 0, v2"), I("v_and_b32 v2, 8, v1"), I("v_cmp_eq_u32 s[56:57], 0, v2")]
    n = 16
    for step, (msk, dpp) in enumerate((("s[56:57]", "row_mirror"), ("s[54:55]", "row_half_mirror"), ("s[52:53]", "quad_perm:[2,3,0,1]"), ("s[50:51]", "quad_perm:[1,0,3,2]"))):
        h = n // 2
        for i in range(h): o.append(I(f"v_cndmask_b32 v{B+i}, v{A+i}, v{A+h+i}, {msk}"))
        for i in range(h): o.append(I(f"v_cndmask_b32 v{A+i}, v{A+h+i}, v{A+i}, {msk}"))
        for i in range(h): o.append(I(f"v_add_f32_dpp v{A+i}, v{B+i}, v{A+i} {dpp} row_mask:0xf bank_mask:0xf"))
        n = h
    o += [I(f"v_lshlrev_b32 v2, 2, v0"), I(f"v_add_u32 v2, {LB_MISC}, v2"), I(f"ds_write_b32 v2, v{A}"),
          I("v_and_b32 v3, 15, v1"), I("v_lshlrev_b32 v3, 2, v3"), I(f"v_add_u32 v3, {LB_MISC}, v3"),
          WAITDS(), I("s_barrier")]
    for r in range(8): o.append(I(f"ds_read2_b32 v[{B+2*r}:{B+2*r+1}], v3 offset0:{32*r} offset1:{32*r+16}"))
    for r in range(8): o.append(I(f"v_add_f32 v{B+r}, v{B+r}, v{B+8+r}"))
    for r in range(4): o.append(I(f"v_add_f32 v{B+r}, v{B+r}, v{B+4+r}"))
    o += [I(f"v_add_f32 v{B}, v{B}, v{B+2}"), I(f"v_add_f32 v{B+1}, v{B+1}, v{B+3}"), I(f"v_add_f32 v{B}, v{B}, v{B+1}"),
          I(f"v_mul_f32 v{B}, {f32(1.0/2304)}, v{B}"),
          I(f"v_mov_b32_dpp v{B+1}, v{B} row_ror:8 row_mask:0xf bank_mask:0xf"),
          I(f"v_fma_f32 v{B+1}, -v{B}, v{B}, v{B+1}"), I(f"v_max_f32 v{B+1}, 0, v{B+1}"), I(f"v_add_f32 v{B+1}, {f32(1e-5)}, v{B+1}"),
          I(f"v_rsq_f32 v{B+1}, v{B+1}"), I(f"v_mul_f32 v{B}, -v{B}, v{B+1}" if False else f"v_mul_f32_e64 v{B}, -v{B}, v{B+1}")]
    for j in range(8): o.append(I(f"v_readlane_b32 s{50+j}, v{B}, {j}"))
    for j in range(8): o.append(I(f"v_mov_b32 v{A+j}, s{50+j}"))
    for j in range(8): o.append(I(f"v_readlane_b32 s{50+j}, v{B+1}, {j}"))
    o += [I("s_lshr_b32 s46, s59, 2"), I("s_mul_i32 s46, s46, 9216"), I("s_and_b32 s47, s59, 3"), I("s_lshl_b32 s47, s47, 8"),
          I("s_add_u32 s46, s46, s47"), I(f"s_add_u32 s46, s46, {WS_Z2N}")]
    for i in range(9):
        for j in range(8): o.append(I(f"v_fma_f32 v{F+8*i+j}, v{F+8*i+j}, s{50+j}, v{A+j}"))
        for j in range(4): o.append(I(f"v_cvt_pk_bf16_f32 v{R+4*i+j}, v{F+8*i+2*j}, v{F+8*i+2*j+1}"))
        o.append(I(f"buffer_store_dwordx4 v[{R+4*i}:{R+4*i+3}], v15, s[8:11], s46 offen offset:{1024*(i%4)} sc1", tag="LNST"))
        if i % 4 == 3: o.append(I("s_add_u32 s46, s46, 4096"))
    return o
def gate_loads():
    return [I("s_load_dwordx2 s[36:37], s[0:1], 0"), I("s_load_dwordx2 s[20:21], s[0:1], 64"),
            I(f"s_mov_b32 s38, {2048*1152}"), I("s_mov_b32 s39, 0x00020000"), I("s_mov_b32 s22, 1152"), I("s_mov_b32 s23, 0x00020000"),
            I("v_mul_u32_u24 v190, 36, v0"), I("v_and_b32 v191, 31, v0"), I("v_mul_u32_u24 v191, 36, v191"),
            I("s_mul_i32 s46, s59, 9216"), I("s_waitcnt lgkmcnt(0)"),
            I("buffer_load_dwordx4 v[172:175], v190, s[36:39], s46 offen"), I("buffer_load_dwordx4 v[176:179], v190, s[36:39], s46 offen offset:16"),
            I("buffer_load_dword v188, v190, s[36:39], s46 offen offset:32"),
            I("buffer_load_dwordx4 v[180:183], v191, s[20:23], 0 offen"), I("buffer_load_dwordx4 v[184:187], v191, s[20:23], 0 offen offset:16"),
            I("buffer_load_dword v189, v191, s[20:23], 0 offen offset:32")]
def gate_compute():
    o = [I("v_mov_b32 v190, 0"), I("v_mov_b32 v191, 0")]
    pairs = [(172+i, 180+i) for i in range(8)] + [(188, 189)]
    for k, (a, b) in enumerate(pairs):
        o += [I(f"v_lshlrev_b32 v4, 16, v{a}"), I(f"v_lshlrev_b32 v5, 16, v{b}"), I(f"v_and_b32 v6, 0xffff0000, v{a}"), I(f"v_and_b32 v7, 0xffff0000, v{b}"),
              I("v_fmac_f32 v190, v4, v5"), I("v_fmac_f32 v191, v6, v7")]
    o.append(I("v_add_f32 v190, v190, v191"))
    for m in ("row_shr:1", "row_shr:2", "row_shr:4", "row_shr:8"): o.append(I(f"v_add_f32_dpp v190, v190, v190 {m} bound_ctrl:0"))
    o += [I("v_add_f32_dpp v190, v190, v190 row_bcast:15 row_mask:0xa"),
          I(f"v_mul_f32 v190, {f32(-LOG2E)}, v190"), I("v_exp_f32 v190, v190"), I("v_add_f32 v190, 1.0, v190"), I("v_rcp_f32 v190, v190"),
          I("v_lshrrev_b32 v4, 5, v0"), I("v_lshlrev_b32 v4, 2, v4"), I("s_lshl_b32 s46, s59, 5"), I(f"s_add_u32 s46, s46, {WS_G}"),
          I("s_mov_b32 exec_lo, 0x80000000"), I("s_mov_b32 exec_hi, 0x80000000"),
          I("buffer_store_dword v190, v4, s[8:11], s46 offen sc1", tag="LNST"), I("s_mov_b64 exec, -1")]
    return o

def role_b():
    LATE = 'lnlate' in EXP
    o = [I("s_setprio 3" if not LATE else "s_setprio 1"), I("s_sub_u32 s2, s2, 256")] + ([] if LATE else ln_loads() + gate_loads())
    o += [
          I("s_and_b32 s30, s2, 1"), I("s_lshl_b32 s30, s30, 3"), I("s_bfe_u32 s46, s2, 0x30003"), I("s_add_u32 s30, s30, s46"),
          I("s_bfe_u32 s31, s2, 0x20001"), I("s_lshl_b32 s31, s31, 2"), I("s_lshr_b32 s46, s2, 6"), I("s_add_u32 s31, s31, s46"),
          I("s_lshl_b32 s33, s30, 2"), I("s_add_u32 s33, s33, s32"),
          I("s_lshl_b32 s42, s33, 17"),
          I(f"v_lshlrev_b32 v{VZ}, 4, v1"),
          I("s_lshl_b32 s40, s32, 12"), I("s_mul_i32 s44, s32, 2304"), I(f"s_add_u32 s41, s44, {ZBASE}"),
          I("v_lshrrev_b32 v7, 3, v1"),
          I("v_lshrrev_b32 v3, 4, v1"), I("v_and_b32 v4, 7, v1"), I("v_xor_b32 v4, v4, v3"), I("v_lshlrev_b32 v4, 4, v4"), I("v_xor_b32 v8, 64, v4")]
    o += srd(12, 24, 25, 2048*4096) + srd(16, 26, 27, 4096)
    o += [I("s_mul_i32 s48, s31, 589824"), I(f"s_add_u32 s48, s48, {WS_Z2N}"), I("s_add_u32 s43, s48, s44"),
          I("v_lshlrev_b32 v2, 12, v7"),
          I(f"v_add_u32 v{VA}, v2, v4"), I(f"v_add_u32 v{VA+1}, v2, v8"), I(f"v_add_u32 v{VA+1}, {32768-1024}, v{VA+1}"),
          I(f"v_add_u32 v{VA+2}, {65536-2048}, v{VA}"), I(f"v_add_u32 v{VA+3}, {65536-2048}, v{VA+1}"),
          I("v_and_b32 v2, 15, v1"), I("v_bfe_u32 v9, v1, 1, 3"), I("v_xor_b32 v4, v9, v3"), I("v_lshlrev_b32 v4, 4, v4"),
          I("v_lshl_add_u32 v4, v2, 7, v4"), I(f"v_add_u32 v{RB}, s40, v4"), I(f"v_xor_b32 v{RB+1}, 64, v{RB}"),
          I(f"v_add_u32 v{RA}, {ZBASE}, v{VZ}"),
          I("v_lshlrev_b32 v10, 1, v2"), I("v_lshlrev_b32 v11, 2, v2"),
          I("s_lshr_b32 s44, s2, 4"), I("s_lshl_b32 s44, s44, 7"), I(f"s_add_u32 s44, s44, {WS_CNT}"), I("s_and_b32 s45, s2, 63"), I("s_lshl_b32 s45, s45, 7"), I(f"s_add_u32 s45, s45, {WS_CNT + 4096}"),
          I(f"v_lshlrev_b32 v{VP}, 7, v1"), I(f"v_mov_b32 v{VT}, 0"), I(f"v_mov_b32 v{VT+1}, 1"),
          I("s_mul_i32 s46, s33, 184320"), I(f"s_add_u32 s46, s46, {WS_ACT + 18*1024}"),
          I("s_mul_i32 s34, s31, 9"), I("s_add_u32 s34, s34, 1"), I("s_lshr_b32 s34, s34, 1"), I("s_lshl_b32 s34, s34, 10"), I("s_add_u32 s34, s34, s46"),
          I("s_lshr_b32 s49, s31, 1"), I("s_mul_i32 s49, s49, 9216"), I("s_add_u32 s49, s49, 4096"), I("s_and_b32 s47, s31, 1"), I("s_lshl_b32 s47, s47, 9"),
          I("s_add_u32 s49, s49, s47"), I("s_add_u32 s49, s49, s46"),
          I(f"v_add_u32 v{VX1}, 92160, v{VZ}"),
          I("v_and_b32 v4, 31, v1"), I("v_lshlrev_b32 v4, 4, v4"), I("v_lshrrev_b32 v9, 5, v1"), I(f"v_lshl_add_u32 v{VX1+1}, v9, 3, v4"),
          I(f"v_add_u32 v{VX1+2}, 92160, v{VX1+1}")]
    if LATE: o += ln_loads() + gate_loads() + [I("s_setprio 3")]
    o += stamp(7)
    o += ln_compute() + gate_compute()
    o += stamp(2)
    o += flat(gdma_w(0)) + flat(gdma_w(1))
    o += [I("s_lshl_b32 s46, s33, 6"), I("s_lshl_b32 s47, s33, 7"), I(f"s_add_u32 s47, s47, {WS_G}"),
          I(f"buffer_load_ushort v{TB}, v10, s[16:19], s46 offen"), I(f"buffer_load_ushort v{TB+1}, v10, s[16:19], s46 offen offset:32"),
          I("s_mov_b32 s59, s47"),
          WAITVM("LNST"), I("s_barrier")] + stamp(6)
    o += [RAW("    s_cmp_lg_u32 s32, 0\n    s_cbranch_scc1 KB_pubd\n    s_mov_b64 exec, 1\n"
              f"    v_mov_b32 v{VP+1}, 1\n"
              f"    buffer_atomic_add v{VP+1}, v{VT}, s[8:11], s44 offen sc0 sc1\n    s_waitcnt vmcnt(0)\n"
              f"    v_readfirstlane_b32 s47, v{VP+1}\n    s_cmp_lg_u32 s47, 15\n    s_cbranch_scc1 KB_notlast\n"
              f"    s_mov_b64 exec, -1\n    s_mov_b32 s47, {WS_CNT + 4096}\n    buffer_atomic_add v{VT+1}, v{VP}, s[8:11], s47 offen sc1\n    s_mov_b64 exec, 1\n"
              f"KB_notlast:\n    s_mov_b64 exec, -1\nKB_pubd:")]
    o += [RAW("    s_cmp_lg_u32 s32, 0\n    s_cbranch_scc1 KB_polled\n    s_mov_b64 exec, 1\n    s_mov_b32 s47, 0\nKB_poll:\n"
              f"    buffer_load_dword v{VP+1}, v{VT}, s[8:11], s45 offen sc1\n    s_add_u32 s47, s47, 1\n    s_waitcnt vmcnt(0)\n"
              f"    v_cmp_ne_u32 vcc, 16, v{VP+1}\n    s_cmp_gt_u32 s47, 0x10000\n    s_cbranch_scc1 KB_pdone\n    s_cbranch_vccz KB_pdone\n    s_sleep 1\n    s_branch KB_poll\n"
              "KB_pdone:\n    s_mov_b64 exec, -1\nKB_polled:"),
          I("s_barrier")] + stamp(3)
    for k in range(4): o += flat(gdma_z(k))
    o += [I(f"buffer_load_dword v{TB+2}, v11, s[8:11], s59 offen sc1"), I(f"buffer_load_dword v{TB+3}, v11, s[8:11], s59 offen offset:64 sc1")]
    o += [WAITVM(["D0", "W0"]), I("s_barrier")] + wreads(0) + areads(0, 0, False)
    o += [I("s_setprio 0"), I("s_mov_b32 s35, 0")] + stamp(4)
    def dm2(k):
        s_ = k % 4
        return (gdma_w(s_ >> 1) if s_ % 2 == 0 else []) + gdma_z(s_)
    for k in range(4): o += gstage(k, dm2(k), zero=(k == 0))
    o += [RAW("KB_loop:")]
    a, st = finalize(o); txt = text_of(a) + "\n"
    body = []
    for k in range(4): body += gstage(k, dm2(k))
    body += [I("s_add_u32 s35, s35, 1"), I("s_cmp_lt_u32 s35, 14"), I("s_cbranch_scc1 KB_loop")]
    a, st = finalize_loop(body, st); txt += text_of(a) + "\n"
    z1 = []
    for c in range(8):
        j, tt = divmod(c, 2)
        z1.append([I(f"buffer_load_dwordx4 v[{Z1P+4*c}:{Z1P+4*c+3}], v{VZ if tt == 0 else VX1}, s[8:11], s34 offen offset:{1024*j}")])
    for tt in range(2): z1.append([I(f"buffer_load_dwordx2 v[{Z1P+32+2*tt}:{Z1P+33+2*tt}], v{VX1+1+tt}, s[8:11], s49 offen")])
    o = gstage(0, z1[:5]) + gstage(1, z1[5:]) + gstage(2, []) + gstage(3, [], last=True)
    o += stamp(5) + [I("s_setprio 3")]
    o += [I(f"v_lshlrev_b32 v{TB}, 16, v{TB}"), I(f"v_lshlrev_b32 v{TB+1}, 16, v{TB+1}"),
          I(f"v_sub_f32 v{TB+2}, 1.0, v{TB+2}"), I(f"v_sub_f32 v{TB+3}, 1.0, v{TB+3}"),
          I(f"v_mul_f32 v{TB}, v{TB}, v{TB+2}"), I(f"v_mul_f32 v{TB+1}, v{TB+1}, v{TB+3}")]
    def quad(a_, z, sc, bi, t, dst):
        x = [I(f"v_lshlrev_b32 v{t}, 16, v{z}"), I(f"v_and_b32 v{t+1}, 0xffff0000, v{z}"),
             I(f"v_lshlrev_b32 v{t+2}, 16, v{z+1}"), I(f"v_and_b32 v{t+3}, 0xffff0000, v{z+1}")]
        for r in range(4): x.append(I(f"v_fma_f32 v{a_+r}, v{a_+r}, v{sc}, v{bi}"))
        for r in range(4): x.append(I(f"v_mul_f32 v{a_+r}, v{a_+r}, v{t+r}"))
        x += [I(f"v_cvt_pk_bf16_f32 v{dst}, v{a_}, v{a_+1}"), I(f"v_cvt_pk_bf16_f32 v{dst+1}, v{a_+2}, v{a_+3}")]
        return x
    D = ZF[0]
    for c in range(8):
        j, tt = divmod(c, 2)
        for q in range(2):
            g = 2*c + q
            o += quad(ACC + 4*g, Z1P + 2*g, TB+2+tt, TB+tt, 2 + 4*q, D + 4*c + 2*q)
        o.append(I(f"buffer_store_dwordx4 v[{D+4*c}:{D+4*c+3}], v{VZ if tt == 0 else VX1}, s[8:11], s34 offen offset:{1024*j}"))
    for tt in range(2):
        g = 16 + tt
        o += quad(ACC + 4*g, Z1P + 2*g, TB+2+tt, TB+tt, 2 + 4*tt, D + 32 + 2*tt)
        o.append(I(f"buffer_store_dwordx2 v[{D+32+2*tt}:{D+33+2*tt}], v{VX1+1+tt}, s[8:11], s49 offen"))
    a, st = finalize(o, st); txt += text_of(a) + "\n"
    return txt

def build():
    o = [RAW("    s_cmp_ge_u32 s2, 512\n    s_cbranch_scc1 K23_exit"),
         I("s_load_dwordx2 s[4:5], s[0:1], 88"), I("s_load_dwordx4 s[24:27], s[0:1], 40"),
         I("v_and_b32 v1, 63, v0"), I("v_lshrrev_b32 v2, 6, v0"), I("s_nop 0"), I("v_readfirstlane_b32 s32, v2"),
         I("s_waitcnt lgkmcnt(0)")]
    o += srd(8, 4, 5, WS_USED)
    a, st = finalize(o)
    txt = text_of(a) + "\n    s_cmp_ge_u32 s2, 256\n    s_cbranch_scc1 K23_B\n"
    if 'noA' in EXP: txt += "    s_branch K23_exit\n"
    txt += role_a() + "K23_B:\n" + ("    s_branch K23_exit\n" if 'noB' in EXP else "") + role_b() + "K23_exit:\n"
    return kernel_text("k23_fused_kernel", txt, 256, kidx=1)

def launch(): return ("k23_fused_kernel", 512, 256, LDS_BYTES, build())
```

```python
from common import *
import attn
EXP = os.environ.get('EXP', '').split(',')
LDS_BYTES = 74240
ACC = 16
BUF = 96
VA = 4; VW = 8; VW4 = 9
FLAGV = '32' if attn.DIRECT else '1'
PRIO_C = int(os.environ.get('PRIO_C', '0'))

def loads_a(b, fl=""):
    r = BUF + 36*b
    return [I(f"buffer_load_dwordx4 v[{r+4*i}:{r+4*i+3}], v{VA+i}, s[8:11], s40 offen{fl}") for i in range(4)] + [I("s_add_u32 s40, s40, 4096")]
def loads_w(b):
    r = BUF + 36*b
    return ([I(f"buffer_load_dwordx4 v[{r+16+4*i}:{r+19+4*i}], v{VW}, s[8:11], s41 offen offset:{1024*i}") for i in range(4)] +
            [I(f"buffer_load_dwordx4 v[{r+32}:{r+35}], v{VW4}, s[8:11], s41 offen"), I("s_add_u32 s41, s41, 20480")])
def loads(b, fl=""): return zipmerge(loads_a(b, fl), loads_w(b))
def mfmas(b, zero=False):
    r = BUF + 36*b
    order = sorted([(n, t) for n in range(5) for t in range(4)], key=lambda x: (max(x), x))
    return [I(f"v_mfma_f32_16x16x32_bf16 v[{ACC+16*n+4*t}:{ACC+16*n+4*t+3}], v[{r+16+4*n}:{r+19+4*n}], v[{r+4*t}:{r+4*t+3}], " + ("0" if zero else f"v[{ACC+16*n+4*t}:{ACC+16*n+4*t+3}]"))
            for n, t in order]
def mg(m, l): return merge(m, l, start=1, end=14)

def role_c():
    o = [I("s_setprio 1"), I("s_sub_u32 s2, s2, 256"), I("s_load_dwordx2 s[6:7], s[0:1], 72"), I(f"v_lshlrev_b32 v{VW}, 4, v1"),
         I("s_and_b32 s30, s2, 7"), I("s_lshl_b32 s30, s30, 2"), I("s_lshr_b32 s46, s2, 6"), I("s_add_u32 s30, s30, s46"),
         I("s_bfe_u32 s31, s2, 0x30003"),
         I(f"s_mul_i32 s42, s30, {4*92160}"), I("s_lshl_b32 s46, s32, 10"), I("s_add_u32 s42, s42, s46"), I(f"s_add_u32 s42, s42, {WS_ACT}"),
         I(f"s_mul_i32 s43, s31, {450*1024}"), I("s_mul_i32 s46, s32, 5120"), I("s_add_u32 s43, s43, s46"), I(f"s_add_u32 s43, s43, {WS_WF}"),
         I(f"s_add_u32 s40, s42, {18*1024}"), I(f"s_add_u32 s41, s43, {18*5120}")]
    for i in range(4):
        o += [I(f"s_add_u32 s46, s32, {i}"), I("s_and_b32 s46, s46, 3"), I(f"s_mul_i32 s{50+i}, s46, 15360"), I("s_mul_i32 s46, s46, 92160"), I(f"v_add_u32 v{VA+i}, s46, v{VW}")]
    o += [I("v_bfe_u32 v2, v1, 3, 1"), I("v_lshlrev_b32 v2, 30, v2"), I(f"v_add_u32 v{VW4}, v{VW}, v2"), I(f"v_add_u32 v{VW4}, 4096, v{VW4}")]
    for i in range(1, 4): o.append(I(f"v_add_u32 v{9+i}, s{50+i}, v{VW}"))
    o += [I(f"v_add_u32 v13, s50, v{VW}"),
          I("v_and_b32 v2, 15, v1"), I("v_mul_u32_u24 v2, 1152, v2"), I("v_lshrrev_b32 v3, 4, v1"), I("v_lshl_add_u32 v14, v3, 4, v2"), I("v_lshl_add_u32 v15, v3, 3, v2"),
          I("s_lshl_b32 s46, s30, 2"), I("s_add_u32 s46, s46, s32"), I(f"s_mul_i32 s46, s46, {16*1152}"), I("s_mul_i32 s47, s31, 144"), I("s_add_u32 s46, s46, s47"),
          I("s_lshl_b32 s45, s30, 3"), I("s_add_u32 s45, s45, s31"), I("s_lshl_b32 s45, s45, 7"), I(f"s_add_u32 s45, s45, {WS_FLG2}"),
          I("v_mov_b32 v2, 0"), I("s_mov_b32 s35, 0"), I("s_waitcnt lgkmcnt(0)")]
    o += srd(12, 6, 7, 2048*1152)
    o += loads(0) + loads(1) + loads(2) + [I(f"s_setprio {PRIO_C}")] + stamp(2)
    o += mg(mfmas(0, True), loads(3))
    o += [RAW("KC_loop:")]
    a, st = finalize(o); txt = text_of(a) + "\n"
    body = []
    for b in (1, 2, 3, 0): body += mg(mfmas(b), loads((b + 3) % 4))
    body += [I("s_add_u32 s35, s35, 1"), I("s_cmp_lt_u32 s35, 3"), I("s_cbranch_scc1 KC_loop")]
    a, st = finalize_loop(body, st); txt += text_of(a) + "\n"
    o = mg(mfmas(1), [I("buffer_load_dword v3, v2, s[8:11], s45 offen sc1", tag="POLL")] + loads(0)) + mg(mfmas(2), loads(1))
    o += [I("s_mov_b32 s40, s42"), I("s_mov_b32 s41, s43")] + stamp(4)
    o += [WAITVM("POLL"),
          RAW("    s_mov_b32 s47, 0\nKC_poll:\n    v_cmp_ne_u32 vcc, " + FLAGV + ", v3\n    s_add_u32 s47, s47, 1\n    s_cmp_gt_u32 s47, 0x40000\n    s_cbranch_scc1 KC_polled\n    s_cbranch_vccz KC_polled\n"
              "    s_branch KC_slow\nKC_polled:")] + stamp(5)
    st_slow = finalize(o, st.clone())[1]
    oob = [I("s_cmp_lt_u32 s32, 2"), I("s_cselect_b32 s40, s40, 0x7f000000"), I("s_cselect_b32 s41, s41, 0x7f000000")]
    o += mg(mfmas(3), loads(2, " sc1")) + mg(mfmas(0), loads(3, " sc1")) + mg(mfmas(1), loads(0, " sc1")) + mg(mfmas(2), loads(1, " sc1"))
    o += oob + mg(mfmas(3), loads(2, " sc1")) + mfmas(0) + mfmas(1) + [I("s_waitcnt vmcnt(0)"), RAW("KC_join:")]
    slow = [RAW("KC_slow:")] + mg(mfmas(3), loads_w(2)) + mg(mfmas(0), loads_w(3)) + mg(mfmas(1), loads_w(0)) + loads_w(1) + [I("s_setprio 3"),
            RAW("KC_spin:\n    buffer_load_dword v3, v2, s[8:11], s45 offen sc1\n    s_add_u32 s47, s47, 1\n    s_waitcnt vmcnt(0)\n"
                "    v_cmp_ne_u32 vcc, " + FLAGV + ", v3\n    s_cmp_gt_u32 s47, 0x40000\n    s_cbranch_scc1 KC_spun\n    s_cbranch_vccz KC_spun\n    s_sleep 1\n    s_branch KC_spin\nKC_spun:")]
    xa = [I(f"buffer_load_dwordx4 v[{240+4*i}:{243+4*i}], v{VA+i}, s[8:11], s40 offen sc1") for i in range(4)]
    slow += stamp(5) + loads_a(2, " sc1") + loads_a(3, " sc1") + loads_a(0, " sc1") + loads_a(1, " sc1") + oob + xa
    slow += mfmas(2) + loads_w(2) + mfmas(3) + mfmas(0) + mfmas(1)
    slow += [I(f"v_mov_b32 v{BUF+72+r}, v{240+r}") for r in range(16)] + [I("s_waitcnt vmcnt(0)"), I("s_nop 1"), I("s_branch KC_join")]
    slow_txt = text_of(finalize(slow, st_slow)[0]) + "\n"
    last = mfmas(2)
    last.sort(key=lambda x: ((x.wr[0][1] - ACC) % 16 == 0))
    wr = [I(f"ds_write_b128 v{9+i}, v[{ACC+16*n+4*i}:{ACC+16*n+4*i+3}] offset:{5120*(i-1) + 1024*n}") for n in range(5) for i in range(1, 4)]
    wr.sort(key=lambda w: next(k for k, m in enumerate(last) if m.wr[0] == w.rd[1]))
    o += last[:8]
    for k, m in enumerate(last[8:]): o += [m, wr[k]]
    o += wr[12:]
    o += stamp(3) + [WAITDS(), I("s_barrier")]
    for n in range(5):
        for i in range(3):
            r = BUF + 12*n + 4*i
            o.append(I(f"ds_read_b128 v[{r}:{r+3}], v13 offset:{5120*i + 1024*n}"))
    P = BUF + 64
    for n in range(5):
        r = BUF + 12*n; a_ = ACC + 16*n
        for j in range(4): o.append(I(f"v_add_f32 v{a_+j}, v{a_+j}, v{r+j}"))
        for j in range(4): o.append(I(f"v_add_f32 v{r+4+j}, v{r+4+j}, v{r+8+j}"))
        for j in range(4): o.append(I(f"v_add_f32 v{a_+j}, v{a_+j}, v{r+4+j}"))
        o += [I(f"v_cvt_pk_bf16_f32 v{P+2*n}, v{a_}, v{a_+1}"), I(f"v_cvt_pk_bf16_f32 v{P+2*n+1}, v{a_+2}, v{a_+3}")]
        if n in (1, 3): o.append(I(f"buffer_store_dwordx4 v[{P+2*n-2}:{P+2*n+1}], v14, s[12:15], s46 offen offset:{32*(n-1)}"))
        if n == 4: o += [I("s_mov_b32 exec_hi, 0"), I(f"buffer_store_dwordx2 v[{P+8}:{P+9}], v15, s[12:15], s46 offen offset:128")]
    a, st = finalize(o, st); txt += text_of(a) + "\n    s_endpgm\n" + slow_txt
    return txt

def build():
    o = [RAW("    s_cmp_ge_u32 s2, 512\n    s_cbranch_scc1 K34_exit"),
         I("s_load_dwordx2 s[4:5], s[0:1], 88"),
         I("v_and_b32 v1, 63, v0"), I("v_lshrrev_b32 v2, 6, v0"), I("s_nop 0"), I("v_readfirstlane_b32 s32, v2"),
         I("s_waitcnt lgkmcnt(0)")]
    o += srd(8, 4, 5, WS_USED)
    a, st = finalize(o)
    txt = text_of(a) + "\n    s_cmp_ge_u32 s2, 256\n    s_cbranch_scc1 K34_C\n"
    txt += attn.role_a(2) + "K34_C:\n" + role_c() + "K34_exit:\n"
    return kernel_text("k34_out_kernel", txt, 256, kidx=2)

def launch(): return ("k34_out_kernel", 512, 256, LDS_BYTES, build())
```

```python
from common import *
EXP = os.environ.get('EXP', '').split(',')
LDS_BYTES = 61440
ACC = 16
BUF = 96
VA = 4
VW = 8; VW4 = 9
MAP = os.environ.get('K4MAP', '4x8')

def loads(b):
    r = BUF + 36*b
    o = []
    for i in range(4):
        o.append(I(f"buffer_load_dwordx4 v[{r+4*i}:{r+4*i+3}], v{VA+i}, s[8:11], s40 offen"))
        o.append(I(f"buffer_load_dwordx4 v[{r+16+4*i}:{r+19+4*i}], v{VW}, s[8:11], s41 offen offset:{1024*i}"))
    if 'k4now4' not in EXP: o.append(I(f"buffer_load_dwordx4 v[{r+32}:{r+35}], v{VW4}, s[8:11], s41 offen"))
    if 'k4noact' in EXP: o = [x for x in o if 's40' not in x.text]
    if 'k4now' in EXP: o = [x for x in o if 's41' not in x.text]
    o += [I("s_add_u32 s40, s40, 4096"), I("s_add_u32 s41, s41, 20480")]
    return o
def mfmas(b, zero=False):
    r = BUF + 36*b
    if 'k4nomfma' in EXP: return [I(f"v_mov_b32 v{ACC+4*k}, v{r+4*(k%9)}") for k in range(20)]
    order = sorted([(n, t) for n in range(5) for t in range(4)], key=lambda x: (max(x), x))
    return [I(f"v_mfma_f32_16x16x32_bf16 v[{ACC+16*n+4*t}:{ACC+16*n+4*t+3}], v[{r+16+4*n}:{r+19+4*n}], v[{r+4*t}:{r+4*t+3}], " + ("0" if zero else f"v[{ACC+16*n+4*t}:{ACC+16*n+4*t+3}]"))
            for n, t in order]

def build():
    o = [RAW("    s_cmp_ge_u32 s2, 256\n    s_cbranch_scc1 K4_exit"),
         I("s_load_dwordx2 s[4:5], s[0:1], 88"), I("s_load_dwordx2 s[6:7], s[0:1], 72"),
         I("v_and_b32 v1, 63, v0"), I("v_lshrrev_b32 v2, 6, v0"), I(f"v_lshlrev_b32 v{VW}, 4, v1"), I("v_readfirstlane_b32 s32, v2")]
    if MAP == '8x4':
        o += [I("s_bfe_u32 s30, s2, 0x20001"), I("s_lshl_b32 s30, s30, 3"), I("s_bfe_u32 s46, s2, 0x30003"), I("s_add_u32 s30, s30, s46"),
              I("s_and_b32 s31, s2, 1"), I("s_lshl_b32 s31, s31, 2"), I("s_lshr_b32 s46, s2, 6"), I("s_add_u32 s31, s31, s46")]
    else:
        o += [I("s_and_b32 s30, s2, 7"), I("s_lshl_b32 s30, s30, 2"), I("s_lshr_b32 s46, s2, 6"), I("s_add_u32 s30, s30, s46"),
              I("s_bfe_u32 s31, s2, 0x30003")]
    o += [I(f"s_mul_i32 s40, s30, {4*92160}"), I("s_lshl_b32 s46, s32, 10"), I("s_add_u32 s40, s40, s46"), I(f"s_add_u32 s40, s40, {WS_ACT}"),
          I(f"s_mul_i32 s41, s31, {450*1024}"), I("s_mul_i32 s46, s32, 5120"), I("s_add_u32 s41, s41, s46"), I(f"s_add_u32 s41, s41, {WS_WF}")]
    for i in range(4):
        o += [I(f"s_add_u32 s46, s32, {i}"), I("s_and_b32 s46, s46, 3"), I(f"s_mul_i32 s{50+i}, s46, 15360"), I("s_mul_i32 s46, s46, 92160"), I(f"v_add_u32 v{VA+i}, s46, v{VW}")]
    o += [I("v_bfe_u32 v2, v1, 3, 1"), I("v_lshlrev_b32 v2, 30, v2"), I(f"v_add_u32 v{VW4}, v{VW}, v2"), I(f"v_add_u32 v{VW4}, 4096, v{VW4}"),
          I("s_waitcnt lgkmcnt(0)")]
    o += srd(8, 4, 5, WS_USED)
    o += loads(0) + loads(1) + loads(2)
    o += srd(12, 6, 7, 2048*1152)
    for i in range(1, 4): o.append(I(f"v_add_u32 v{9+i}, s{50+i}, v{VW}"))
    o += [I(f"v_add_u32 v13, s50, v{VW}"),
          I("v_and_b32 v2, 15, v1"), I("v_mul_u32_u24 v2, 1152, v2"), I("v_lshrrev_b32 v3, 4, v1"), I("v_lshl_add_u32 v14, v3, 4, v2"), I("v_lshl_add_u32 v15, v3, 3, v2"),
          I("s_lshl_b32 s46, s30, 2"), I("s_add_u32 s46, s46, s32"), I(f"s_mul_i32 s46, s46, {16*1152}"), I("s_mul_i32 s47, s31, 144"), I("s_add_u32 s46, s46, s47"),
          I("s_mov_b32 s35, 0")] + stamp(2)
    o += merge(mfmas(0, True), loads(3), start=1, end=14)
    o += [RAW("K4_loop:")]
    a, st = finalize(o); txt = text_of(a) + "\n"
    body = []
    for b in (1, 2, 3, 0):
        body += merge(mfmas(b), loads((b + 3) % 4), start=1, end=14)
    body += [I("s_add_u32 s35, s35, 1"), I("s_cmp_lt_u32 s35, 4"), I("s_cbranch_scc1 K4_loop")]
    a, st = finalize_loop(body, st); txt += text_of(a) + "\n"
    o = merge(mfmas(1), loads(0), start=1, end=14) + merge(mfmas(2), loads(1), start=1, end=14)
    o += [I("s_cmp_lt_u32 s32, 2"), I("s_cselect_b32 s40, s40, 0x7f000000"), I("s_cselect_b32 s41, s41, 0x7f000000")]
    o += merge(mfmas(3), loads(2), start=1, end=14) + mfmas(0) + mfmas(1)
    last = mfmas(2)
    last.sort(key=lambda x: ((x.wr[0][1] - ACC) % 16 == 0))
    wr = [I(f"ds_write_b128 v{9+i}, v[{ACC+16*n+4*i}:{ACC+16*n+4*i+3}] offset:{5120*(i-1) + 1024*n}") for n in range(5) for i in range(1, 4)]
    wr.sort(key=lambda w: next(k for k, m in enumerate(last) if m.wr[0] == w.rd[1]))
    o += last[:8]
    for k, m in enumerate(last[8:]): o += [m, wr[k]]
    o += wr[12:]
    o += stamp(3) + [WAITDS(), I("s_barrier")]
    for n in range(5):
        for i in range(3):
            r = BUF + 12*n + 4*i
            o.append(I(f"ds_read_b128 v[{r}:{r+3}], v13 offset:{5120*i + 1024*n}"))
    P = BUF + 64
    for n in range(5):
        r = BUF + 12*n; a_ = ACC + 16*n
        for j in range(4): o.append(I(f"v_add_f32 v{a_+j}, v{a_+j}, v{r+j}"))
        for j in range(4): o.append(I(f"v_add_f32 v{r+4+j}, v{r+4+j}, v{r+8+j}"))
        for j in range(4): o.append(I(f"v_add_f32 v{a_+j}, v{a_+j}, v{r+4+j}"))
        o += [I(f"v_cvt_pk_bf16_f32 v{P+2*n}, v{a_}, v{a_+1}"), I(f"v_cvt_pk_bf16_f32 v{P+2*n+1}, v{a_+2}, v{a_+3}")]
        if n in (1, 3): o.append(I(f"buffer_store_dwordx4 v[{P+2*n-2}:{P+2*n+1}], v14, s[12:15], s46 offen offset:{32*(n-1)}"))
        if n == 4: o += [I("s_mov_b32 exec_hi, 0"), I(f"buffer_store_dwordx2 v[{P+8}:{P+9}], v15, s[12:15], s46 offen offset:128")]
    a, st = finalize(o, st); txt += text_of(a) + "\nK4_exit:\n"
    return kernel_text("k4_out_kernel", txt, 240, kidx=2)

def launch(): return ("k4_out_kernel", 256, 256, LDS_BYTES, build())
```

```python
import sys, importlib
from common import *
HEADER = open("cdna_kernels/%s.s.ref" % NAME).read().split("; Override launch geometry")[0]
def build(kernels, path):
    txt = HEADER
    for name, grid, block, lds, _ in kernels:
        txt += f"; @launch kernel={name} grid=({grid},1,1) block=({block},1,1) lds={lds}\n"
    txt += '.amdgcn_target "amdgcn-amd-amdhsa--gfx950"\n'
    seen = set()
    for name, _, _, _, code in kernels:
        if name in seen: continue
        seen.add(name); txt += code
    fl = os.environ.get("STFLAG", "sc1")
    which = os.environ.get("STK", "k1_,k23_").split(",")
    out = []; cur = ""
    for line in txt.split("\n"):
        if line.endswith("_kernel:"): cur = line
        if line.startswith("K1_LT:") and os.environ.get("LPLAIN", "0") == "1": cur = "plain"
        if fl and "buffer_store_dwordx4" in line and " sc1" not in line and any(cur.startswith(w) for w in which): line += " " + fl
        out.append(line)
    open(path, "w").write("\n".join(out))
if __name__ == "__main__":
    import k23, k34
    k1 = importlib.import_module(os.environ.get('K1MOD', 'k1'))
    import k4
    ks = [k1.launch(), k23.launch(), k34.launch() if os.environ.get('NC1', '8') != '8' else k4.launch()]
    out = sys.argv[1] if len(sys.argv) > 1 else "cdna_kernels/%s.s" % NAME
    build(ks, out)
```

```python
from common import *
from k2 import (S, k_reads, v_reads, qk, pv, softmax_half, set_m, max16, xhalf_max,
                SLOTB, L_Q, L_MISC, QF, KF, VF, SS, PP, OO, VKA, VKB, VVA, NKA, NKB, NVA, LKA, LKB, LVA, VD, VD4, T0)
EXP = os.environ.get('EXP', '').split(',')
DIRECT = 'direct' in EXP
NC1 = int(os.environ.get('NC1', '8'))
PRIO_A = [0, int(os.environ.get('PRIO_A1', '2')), int(os.environ.get('PRIO_A2', '2'))]

VG = 220
CH = 32 * QROW
def dma_chunk():
    o = [I("s_mov_b32 m0, s40")]
    for p in range(4): o.append(I(f"buffer_load_dwordx4 v{VG+p}, s[8:11], s41 offen offset:{1024*p} lds", tag="KV"))
    o += [I("s_add_u32 m0, s40, 4096"), I(f"buffer_load_dwordx4 v{VG+4}, s[8:11], s41 offen lds", tag="KV")]
    return o

def tile_body(kt):
    n1 = kt + 1; n2 = kt + 2
    V = softmax_half(kt, 0, 0) + softmax_half(kt, 0, 1) + softmax_half(kt, 1, 0) + softmax_half(kt, 1, 1)
    qa = qk(n1, 0); qb = qk(n1, 1)
    R = k_reads(n2 % 8, n2 >= 8) + v_reads(n1 % 8, n1 >= 8)
    M = [pv(kt - 1, 1, 1), qa[0], qa[1], pv(kt, 0, 0), qb[0], pv(kt, 0, 1), qb[1], pv(kt, 1, 0)]
    return V, M, R

def state_regs():
    return [QF + 4*i for i in range(4)] + [OO + 16*q + 4*i for q in range(2) for i in range(3)]

def wf_loads():
    b = [I("s_load_dwordx2 s[36:37], s[0:1], 16"), I("s_load_dwordx2 s[38:39], s[0:1], 56"),
         I("s_lshl_b32 s48, s2, 2"), I("s_add_u32 s48, s48, s32"), I("s_mov_b32 s23, 0x00020000"),
         I("s_mul_i32 s51, s48, 729"), I("s_lshr_b32 s51, s51, 16"),
         I("s_mul_i32 s52, s51, 90"), I("s_sub_u32 s52, s48, s52"),
         I("s_mul_i32 s51, s51, 144"),
         I("s_sub_u32 s53, s52, 18"), I("s_lshl_b32 s53, s53, 5"),
         I("s_mov_b32 s54, 8"), I("s_mov_b32 s55, 2"), I("s_mov_b32 s56, 16"), I("s_mov_b32 s57, 4"),
         I("s_sub_u32 s47, s52, 16"), I("s_mul_i32 s47, s47, 288"), I("s_add_u32 s47, s47, 16"),
         I(f"s_mov_b32 s22, {2304*1152}"), I("s_waitcnt lgkmcnt(0)"),
         I("s_cmp_lt_u32 s52, 18"),
         I("s_cselect_b32 s20, s36, s38"), I("s_cselect_b32 s21, s37, s39"), I(f"s_cselect_b32 s22, {576*1152}, s22"),
         I("s_cselect_b32 s53, s47, s53"), I("s_cselect_b32 s54, 36, s54"), I("s_cselect_b32 s55, 18, s55"),
         I("s_cselect_b32 s56, 144, s56"), I("s_cselect_b32 s57, 72, s57"),
         I("s_mul_i32 s47, s52, 36"),
         I("s_cmp_lt_u32 s52, 16"),
         I("s_cselect_b32 s53, s47, s53"), I("s_cselect_b32 s54, 8, s54"), I("s_cselect_b32 s55, 2, s55"),
         I("s_cselect_b32 s56, 18, s56"), I("s_cselect_b32 s57, 4, s57"),
         I("s_mulk_i32 s53, 1152"), I("s_mulk_i32 s54, 1152"), I("s_mulk_i32 s55, 1152"), I("s_mulk_i32 s56, 1152"), I("s_mulk_i32 s57, 1152"),
         I("s_add_u32 s53, s53, s51"),
         I("v_lshrrev_b32 v4, 5, v1"), I("v_mul_lo_u32 v4, v4, s55"), I("v_bfe_u32 v5, v1, 4, 1"), I("v_mul_u32_u24 v5, 1152, v5"),
         I("v_and_b32 v7, 15, v1"), I("v_cmp_lt_u32 vcc, 8, v7"), I("v_lshlrev_b32 v7, 4, v7"), I("v_add3_u32 v4, v4, v5, v7"),
         I("v_mov_b32 v5, 0x7f000000"), I("v_cndmask_b32 v6, v4, v5, vcc"),
         I("s_cmp_lt_u32 s48, 720"), I("s_cselect_b32 s22, s22, 0"),
         I("s_mul_i32 s58, s48, 5120"), I(f"s_add_u32 s58, s58, {WS_WF}"), I("s_cmp_lt_u32 s48, 720"), I("s_cselect_b32 s58, s58, 0x7f000000"),
         I("s_lshl_b32 s50, s32, 13"), I("s_barrier")]
    for p in range(8):
        b.append(I(f"s_add_u32 m0, s50, {1024*p}"))
        if p == 0: src = "s53"
        else:
            src = "s47"
            terms = (["s56"] if p & 4 else []) + (["s57"] if p & 2 else []) + (["s54"] if p & 1 else [])
            b.append(I(f"s_add_u32 s47, s53, {terms[0]}"))
            for t in terms[1:]: b.append(I(f"s_add_u32 s47, s47, {t}"))
        b.append(I(f"buffer_load_dwordx4 v6, s[20:23], {src} offen lds", tag="WFD"))
    return b
def wf_store():
    P = 100
    b = [I("v_lshrrev_b32 v4, 4, v1"), I("v_lshlrev_b32 v4, 11, v4"), I("v_bfe_u32 v5, v1, 2, 2"), I("v_lshl_add_u32 v4, v5, 8, v4"),
         I("v_and_b32 v5, 3, v1"), I("v_lshl_add_u32 v4, v5, 3, v4"), I("v_add_u32 v4, s50, v4"), I("v_lshl_add_u32 v7, v5, 3, v4"), WAITVM("WFD")]
    for nt in range(5):
        for h in range(2):
            if nt < 4: b.append(I(f"ds_read_b64_tr_b16 v[{P+4*nt+2*h}:{P+4*nt+2*h+1}], v7 offset:{1024*h + 64*(nt>>1) + 8*(nt&1)}"))
            else: b.append(I(f"ds_read_b64_tr_b16 v[{P+4*nt+2*h}:{P+4*nt+2*h+1}], v4 offset:{1024*h + 128}"))
    for nt in range(5):
        if nt == 4: b.append(I("s_add_u32 s58, s58, 4096"))
        b.append(I(f"buffer_store_dwordx4 v[{P+4*nt}:{P+4*nt+3}], v{VD}, s[8:11], s58 offen offset:{1024*(nt%4)}"))
    return b

def epi_addr():
    o = [I("v_lshrrev_b32 v6, 5, v1")]
    o += [I("s_lshl_b32 s46, s46, 2"), I("s_mul_i32 s46, s46, 92160"), I(f"s_add_u32 s46, s46, {WS_ACT}"),
          I("s_lshr_b32 s50, s30, 1"), I("s_lshl_b32 s50, s50, 10"), I("s_and_b32 s49, s30, 1"), I("s_lshl_b32 s49, s49, 9"),
          I("s_add_u32 s50, s50, s49"), I("s_add_u32 s50, s50, s46"),
          I("s_lshr_b32 s51, s30, 4"), I("s_add_u32 s51, s51, 16"), I("s_lshl_b32 s51, s51, 10"),
          I("s_bfe_u32 s49, s30, 0x20002"), I("s_lshl_b32 s49, s49, 8"), I("s_add_u32 s51, s51, s49"),
          I("s_and_b32 s49, s30, 3"), I("s_lshl_b32 s49, s49, 2"), I("s_add_u32 s51, s51, s49"), I("s_add_u32 s51, s51, s46"),
          I("v_bfe_u32 v3, v1, 4, 1"), I("s_mov_b32 s49, 92160"), I("v_mul_lo_u32 v3, v3, s49"),
          I("v_and_b32 v4, 15, v1"), I("v_lshl_add_u32 v232, v4, 4, v3"), I("v_lshl_add_u32 v233, v6, 8, v232"),
          I(f"v_add_u32 v234, {2*92160}, v232"), I(f"v_add_u32 v235, {2*92160}, v233")]
    return o

def role_a(part):
    FULL = (part == 1 and NC1 == 8)
    P = f"A{part}"
    c0 = 0 if part == 1 else NC1
    cend = NC1 if part == 1 else 8
    o = [I("s_setprio 2" if part == 1 else "s_setprio 3"),
         I("s_and_b32 s30, s2, 7"), I("s_lshl_b32 s30, s30, 2"), I("s_lshr_b32 s46, s2, 6"), I("s_add_u32 s30, s30, s46"),
         I("s_bfe_u32 s31, s2, 0x30003"),
         I(f"v_lshlrev_b32 v{VD}, 4, v1"), I(f"v_add_u32 v{VD4}, 4096, v{VD}"),
         I("s_lshr_b32 s46, s32, 1"), I("s_add_u32 s46, s46, 1"), I(f"s_mul_i32 s42, s46, {QPART}"),
         I("s_and_b32 s46, s32, 1"), I(f"s_mul_i32 s46, s46, {16*QROW}"), I("s_add_u32 s42, s42, s46"),
         I("s_mul_i32 s47, s30, 288"), I("v_mov_b32 v5, 9216"), I(f"v_mov_b32 v7, {QROW}")]
    for p in range(5):
        o += [I(f"v_add_u32 v2, {64*p}, v1"), I("v_mul_u32_u24 v3, 3277, v2"), I("v_lshrrev_b32 v3, 16, v3"),
              I("v_mul_u32_u24 v4, 20, v3"), I("v_sub_u32 v2, v2, v4"), I("v_cmp_gt_u32 vcc, 18, v2"),
              I("v_lshl_add_u32 v2, v2, 4, s47"),
              I(f"v_mad_u32_u24 v2, v3, v7, v2"), I(f"v_cndmask_b32 v{VG+p}, v5, v2, vcc")]
        if 0 < p < 4: o.append(I(f"v_subrev_u32 v{VG+p}, {1024*p}, v{VG+p}"))
    o += [
         I("s_mul_i32 s43, s32, 5120"),
         I("s_mov_b32 s40, s43"), I(f"s_add_u32 s41, s42, {CH*c0}")]
    o += [Ins(x.text, "KV0") for x in dma_chunk()]
    o += [I("s_lshl_b32 s53, s2, 2"), I("s_add_u32 s53, s53, s32"), I("s_mul_i32 s53, s53, 10240"), I(f"s_add_u32 s53, s53, {WS_ST}"),
          I("s_add_u32 s54, s53, 8192")]
    if part == 1:
        o += [I("s_lshl_b32 s46, s31, 2"), I("s_add_u32 s46, s46, s32"), I(f"s_mul_i32 s47, s46, {8*QROW}"),
              I("s_mul_i32 s33, s32, 3072"), I(f"s_add_u32 s33, s33, {L_Q}"), I("s_mov_b32 m0, s33")]
        for p in range(3): o.append(I(f"buffer_load_dwordx4 v{VG+p}, s[8:11], s47 offen offset:{1024*p} lds", tag="Q"))
    else:
        for i, r in enumerate(state_regs()):
            o.append(I(f"buffer_load_dwordx4 v[{r}:{r+3}], v{VD4 if 4 <= i < 8 else VD}, s[8:11], {'s54' if i >= 8 else 's53'} offen offset:{1024*(i%4)}"))
    TRI = (part == 1 and 'notri' not in EXP)
    tri = []
    for c in (1, 2): tri += [I(f"s_add_u32 s40, s43, {SLOTB*c}"), I(f"s_add_u32 s41, s42, {CH*(c0+c)}")] + dma_chunk()
    if TRI and 'trilate' not in EXP: o += tri; tri = []
    o += stamp(4)
    o += [I("v_bfe_u32 v2, v1, 4, 1"), I("v_lshlrev_b32 v2, 1, v2"),
          I("v_and_b32 v3, 1, v1"), I("v_add_u32 v3, v2, v3"), I("v_mul_u32_u24 v3, 320, v3"),
          I("v_bfe_u32 v4, v1, 1, 1"), I("v_lshl_add_u32 v3, v4, 3, v3"),
          I("v_bfe_u32 v5, v1, 2, 2"), I("v_lshlrev_b32 v5, 4, v5"),
          I("v_lshrrev_b32 v6, 5, v1"),
          I(f"v_add_u32 v{LKB}, v3, v5"), I(f"v_lshl_add_u32 v{LKA}, v6, 7, v{LKB}"), I(f"v_add_u32 v{LKB}, 256, v{LKB}"),
          I("v_mul_u32_u24 v7, 320, v6"), I("v_and_b32 v8, 31, v1"), I("v_lshl_add_u32 v7, v8, 4, v7"), I(f"v_add_u32 v{LVA}, 10240, v7"),
          I("v_cmp_gt_u32 s[44:45], 32, v1"),
          I("s_mov_b32 s56, 0xfffff"), I("s_mov_b32 s57, 0xfffff")]
    for b in range(2):
        o += [I(f"v_mov_b32 v{KF+8*b+6}, 0x3f80"), I(f"v_mov_b32 v{KF+8*b+7}, 0")]
    for r in range(16): o.append(I(f"v_mov_b32 v{VF+r}, 0"))
    nxt = [I(f"s_add_u32 s40, s43, {SLOTB}"), I(f"s_add_u32 s41, s42, {CH*(c0+1)}")] + dma_chunk()
    if TRI: nxt = tri
    if part == 1:
        o += [I("v_add_u32 v2, v2, v4"), I("v_mul_u32_u24 v2, 320, v2"), I("v_and_b32 v3, 1, v1"), I("v_lshl_add_u32 v2, v3, 3, v2"),
              I(f"v_add3_u32 v{T0}, v2, v5, s33"), I(f"v_lshl_add_u32 v{T0+1}, v6, 7, v{T0}")]
        o += [I("s_load_dwordx2 s[36:37], s[0:1], 16"), I("s_load_dwordx2 s[38:39], s[0:1], 56"),
              ] + ([I("v_and_b32 v228, 15, v1"), I("v_lshlrev_b32 v228, 6, v228"), I("v_lshrrev_b32 v229, 4, v1"), I("v_lshl_add_u32 v228, v229, 12, v228"),
              I("v_mov_b32 v229, 0x7f000000"), I("v_cndmask_b32 v228, v229, v228, s[44:45]"), I("v_lshlrev_b32 v227, 6, v1")] if 't64' in EXP else
              [I("v_and_b32 v228, 7, v1"), I("v_lshlrev_b32 v228, 7, v228"), I("v_lshrrev_b32 v229, 3, v1"), I("v_lshl_add_u32 v228, v229, 12, v228"),
              I("v_mov_b32 v229, 0x7f000000"), I("v_cmp_gt_u32 vcc, 16, v1"), I("v_cndmask_b32 v228, v229, v228, vcc"),
              I("v_lshlrev_b32 v227, 7, v1"), I("v_cndmask_b32 v227, v229, v227, s[44:45]")]) + [
              I("s_lshl_b32 s51, s2, 2"), I("s_add_u32 s51, s51, s32"), I("s_lshl_b32 s52, s51, 13"),
              I("s_mov_b32 s16, s24"), I("s_mov_b32 s17, s25"), I(f"s_mov_b32 s18, {2048*4096}"), I("s_mov_b32 s19, 0x00020000"),
              I("s_sub_u32 s50, s51, 648"), I(f"s_mov_b32 s22, {576*1152}"), I("s_mov_b32 s23, 0x00020000"), I("s_waitcnt lgkmcnt(0)"),
              I("s_cmp_lt_u32 s51, 648"), I("s_cselect_b32 s20, s38, s36"), I("s_cselect_b32 s21, s39, s37"), I(f"s_cselect_b32 s22, {2304*1152}, s22"),
              I("s_cselect_b32 s50, s51, s50"), I("s_lshl_b32 s50, s50, 12")]
        for q in range(2): o += [I(f"v_mov_b32 v{QF+8*q+6}, 0"), I(f"v_mov_b32 v{QF+8*q+7}, 0")]
        for r in range(32): o.append(I(f"v_mov_b32 v{OO+r}, 0"))
        o += [I(f"v_mov_b32 v{VKA}, v{LKA}"), I(f"v_mov_b32 v{VKB}, v{LKB}"), WAITVM("Q")]
        for q in range(2):
            o += [I(f"ds_read_b64_tr_b16 v[{QF+8*q}:{QF+8*q+1}], v{T0+1} offset:{1280*q}"),
                  I(f"ds_read_b64_tr_b16 v[{QF+8*q+2}:{QF+8*q+3}], v{T0+1} offset:{1280*q+64}"),
                  I(f"ds_read_b64_tr_b16 v[{QF+8*q+4}:{QF+8*q+5}], v{T0} offset:{1280*q+256}")]
        o += [I("s_barrier")] + k_reads(0) + nxt
        for q in range(2):
            o += [I(f"v_cndmask_b32 v{QF+8*q+4}, 0, v{QF+8*q+4}, s[44:45]"), I(f"v_mov_b32 v{QF+8*q+5}, 0")]
        o += qk(0, 0) + qk(0, 1)
        o += max16(T0, S(0, 0), True) + max16(T0+1, S(0, 1), True) + xhalf_max(T0, T0+2) + xhalf_max(T0+1, T0+3)
        o += set_m(T0, 0, T0+4) + set_m(T0+1, 1, T0+8) + [I("s_mov_b32 s34, 0")]
    else:
        o += [I("s_lshl_b32 s46, s31, 2"), I("s_add_u32 s46, s46, s32"), I("s_lshl_b32 s47, s46, 8"), I(f"s_add_u32 s47, s47, {WS_G}"),
              I("v_lshlrev_b32 v3, 2, v8"),
              I("buffer_load_dword v230, v3, s[8:11], s47 offen"), I("buffer_load_dword v231, v3, s[8:11], s47 offen offset:128")]
        o += epi_addr()
        for q in range(2):
            for r in range(12, 16): o.append(I(f"v_mov_b32 v{OO+16*q+r}, 0"))
        o += [I("s_mov_b32 s34, 0"), WAITVM("KV0"), I("s_barrier")] + nxt + [I("s_waitcnt vmcnt(7)")]
    lo = c0 + (1 if TRI else 0)
    o += [I(f"s_mov_b32 s55, {lo}"), I(f"s_mov_b32 s58, {max(0, cend - 2 - lo)}")]
    o += [I(f"s_mov_b32 s35, {c0}"), I(f"s_add_u32 s41, s42, {CH*(c0+2)}"), I(f"s_setprio {PRIO_A[part]}"), I("s_nop 1"), RAW(f"{P}_main:")]
    a, st = finalize(o)
    txt = text_of(a) + "\n"
    o = [I(f"v_mov_b32 v{VKA}, v{LKA}"), I(f"v_mov_b32 v{VKB}, v{LKB}"), I(f"v_mov_b32 v{VVA}, v{LVA}")]
    o += k_reads(0) + k_reads(1) + [I("s_mov_b64 exec, s[56:57]")] + v_reads(0) + [I("s_mov_b64 exec, -1")]
    o += [I(f"v_add_u32 v{NKA}, {SLOTB}, v{LKA}"), I(f"v_add_u32 v{NKB}, {SLOTB}, v{LKB}"), I(f"v_add_u32 v{NVA}, {SLOTB}, v{LVA}"),
          I(f"s_mov_b32 s36, {2*SLOTB}")]
    for r in range(4): o += [I(f"v_mov_b32 v{PP+12+r}, 0"), I(f"v_mov_b32 v{VF+12+r}, 0")]
    o += stamp(2) + qk(0, 0) + qk(0, 1)
    o += [I("s_nop 7"), RAW(f"{P}_loop:")]
    a, st = finalize(o, st)
    txt += text_of(a) + "\n"
    body = []
    if STAMPS and 'cst' in EXP:
        body += [I(f"s_mov_b32 s{SB+2*(5+i)}, s{SB+2*(6+i)}") for i in range(7)] + stamp(12) + [I("s_waitcnt lgkmcnt(0)")]
    for kt in range(8):
        V, M, R = tile_body(kt)
        X = {0: [I("s_waitcnt lgkmcnt(0)"), R[0]], 1: [R[1]], 2: [R[2]],
             3: [I("s_mov_b64 exec, s[56:57]"), R[3], R[4], I("s_mov_b64 exec, -1")]}
        if 'novmask' in EXP: X[3] = [R[3], R[4]]
        if kt == 4:
            X[6] = [I("s_waitcnt vmcnt(0)")]
            X[7] = [I("s_barrier")]
        def gd(i, txt): return RAW(f"    s_cbranch_scc1 {P}_nd{i}\n    {txt}\n{P}_nd{i}:")
        if kt == 4:
            X[4] = [I("s_add_u32 s40, s43, s36")]
            X[5] = [I("s_add_u32 s59, s40, 4096")]
        if kt == 5:
            X[4] = [I("s_sub_u32 s37, s35, s55")]
            X[5] = [I("s_cmp_ge_u32 s37, s58"), I("s_mov_b32 m0, s40")]
            X[6] = [gd(0, f"buffer_load_dwordx4 v{VG+0}, s[8:11], s41 offen lds")]
            X[7] = [gd(1, f"buffer_load_dwordx4 v{VG+1}, s[8:11], s41 offen offset:1024 lds")]
        if kt == 6:
            X[4] = [gd(2, f"buffer_load_dwordx4 v{VG+2}, s[8:11], s41 offen offset:2048 lds")]
            X[5] = [gd(3, f"buffer_load_dwordx4 v{VG+3}, s[8:11], s41 offen offset:3072 lds")]
            X[6] = [I("s_mov_b32 m0, s59")]
            X[7] = [gd(4, f"buffer_load_dwordx4 v{VG+4}, s[8:11], s41 offen lds")]
        if kt == 1 and part == 1 and 'notouch' not in EXP:
            X[4] = [I("s_sub_u32 s37, s35, 1")]
            X[5] = [I("s_cmp_ge_u32 s37, 3")]
            X[6] = [RAW(f"    s_cbranch_scc1 {P}_nt0\n    buffer_load_dword v229, v228, s[16:19], s52 offen\n{P}_nt0:")]
            X[7] = [I("s_add_u32 s52, s52, 1024")]
        if kt == 2 and part == 1 and 'notouch' not in EXP:
            X[5] = [I("s_cmp_lg_u32 s35, 2")]
            X[6] = [RAW(f"    s_cbranch_scc1 {P}_nt1\n    buffer_load_dword v229, v227, s[20:23], s50 offen\n{P}_nt1:")]
        if kt == 7:
            X[4] = [I(f"s_add_u32 s41, s41, {CH}"), I(f"v_mov_b32 v{VKA}, v{NKA}"), I(f"v_mov_b32 v{VKB}, v{NKB}"), I(f"v_mov_b32 v{VVA}, v{NVA}"),
                    I(f"v_add_u32 v{NKA}, s36, v{LKA}"), I(f"v_add_u32 v{NKB}, s36, v{LKB}"), I(f"v_add_u32 v{NVA}, s36, v{LVA}")]
            X[5] = [I(f"s_add_u32 s36, s36, {SLOTB}"), I(f"s_cmp_eq_u32 s36, {3*SLOTB}")]
            X[6] = [I("s_cselect_b32 s36, 0, s36"), I("s_add_u32 s35, s35, 1")]
            X[7] = [I(f"s_cmp_lt_u32 s35, {cend}")]
        for i in range(8):
            body += V[6*i:6*i+2] + [M[i]] + X.get(i, []) + V[6*i+2:6*i+6]
    body += [I(f"s_cbranch_scc1 {P}_loop")]
    a, st = finalize_loop(body, st)
    txt += text_of(a) + "\n"
    o = [I("s_nop 0"), pv(7, 1, 1)] + stamp(3)
    if FULL:
        o += [I("s_and_b32 s47, s2, 63"), I("s_lshl_b32 s47, s47, 7"), I(f"s_add_u32 s47, s47, {WS_CNT + 4096}"), I("v_mov_b32 v2, 0"), I("s_mov_b32 s48, 0"),
              RAW(f"{P}_gpoll:\n    buffer_load_dword v3, v2, s[8:11], s47 offen sc1\n    s_add_u32 s48, s48, 1\n    s_waitcnt vmcnt(0)\n    v_cmp_ne_u32 vcc, 16, v3\n"
                  f"    s_cmp_gt_u32 s48, 0x10000\n    s_cbranch_scc1 {P}_gok\n    s_cbranch_vccz {P}_gok\n    s_sleep 2\n    s_branch {P}_gpoll\n{P}_gok:"),
              I("s_lshl_b32 s46, s31, 2"), I("s_add_u32 s46, s46, s32"), I("s_lshl_b32 s47, s46, 8"), I(f"s_add_u32 s47, s47, {WS_G}"),
              I("v_and_b32 v3, 31, v1"), I("v_lshlrev_b32 v3, 2, v3"),
              I("buffer_load_dword v230, v3, s[8:11], s47 offen sc1"), I("buffer_load_dword v231, v3, s[8:11], s47 offen offset:128 sc1")]
        o += epi_addr()
    if part == 1 and not FULL:
        for i, r in enumerate(state_regs()):
            o.append(I(f"buffer_store_dwordx4 v[{r}:{r+3}], v{VD4 if 4 <= i < 8 else VD}, s[8:11], {'s54' if i >= 8 else 's53'} offen offset:{1024*(i%4)}"))
        o += [I("s_setprio 0")] + wf_loads() + wf_store()
        if 'nocp2' not in EXP: o += [RAW(code_prefetch("k34_out_kernel", 3072, 32, 1, 2, 46))]
        o.append(I("s_endpgm"))
        a, _ = finalize(o, st)
        return txt + text_of(a) + "\n"
    o += [I("s_setprio 3")]
    for q in range(2):
        O = OO + 16*q; t = T0 + 8 + 16*q
        o += [I(f"v_mov_b32 v{t}, v{O+10}"), I(f"v_mov_b32 v{t+1}, v{O+10}"),
              I(f"v_add_f32 v{T0+q}, abs(v{O}), abs(v{O+1})")]
        o.append(I(f"v_permlane32_swap_b32 v{t}, v{t+1}"))
        for r in range(2, 11): o.append(I(f"v_add_f32 v{T0+q}, v{T0+q}, abs(v{O+r})"))
        o += [I(f"v_rcp_f32 v{t}, v{t}"), I(f"v_mul_f32 v{t}, v{t}, v{230+q}")]
        for r in range(10): o.append(I(f"v_mul_f32 v{O+r}, v{O+r}, v{t}"))
        for r in range(5): o.append(I(f"v_cvt_pk_bf16_f32 v{t+4+r}, v{O+2*r}, v{O+2*r+1}"))
        o.append(I(f"buffer_store_dwordx4 v[{t+4}:{t+7}], v233, s[8:11], s{59+q} offen sc1" if False else f"buffer_store_dwordx4 v[{t+4}:{t+7}], v{233+2*q}, s[8:11], s50 offen sc1"))
        o += [I("s_mov_b64 exec, s[44:45]"), I(f"buffer_store_dword v{t+8}, v{232+2*q}, s[8:11], s51 offen" + ("" if FULL else " sc1")), I("s_mov_b64 exec, -1")]
    o += [I(f"v_add_f32 v{T0}, v{T0}, v{T0+1}"), I(f"v_mov_b32 v{T0+2}, {f32(2.0**100)}"),
          I(f"v_cmp_nlt_f32 vcc, v{T0}, v{T0+2}"), I("s_cmp_lg_u64 vcc, 0"), I("s_cselect_b32 s48, 1, 0"),
          I(f"v_mov_b32 v{T0+3}, s48"), I("s_lshl_b32 s49, s32, 2"), I("v_mov_b32 v4, s49"),
          I(f"ds_write_b32 v4, v{T0+3} offset:{L_MISC+256}"),
          I("s_lshl_b32 s46, s31, 7"), I(f"s_add_u32 s46, s46, {WS_CNT2}"), I("s_lshl_b32 s47, s31, 12"), I(f"s_add_u32 s47, s47, {WS_FLG2}"),
          I("v_mov_b32 v2, 0"), I("v_mov_b32 v3, 1"), I("v_mov_b32 v5, 1"), I("v_lshlrev_b32 v4, 7, v1"),
          I("s_waitcnt vmcnt(0) lgkmcnt(0)"), I("s_barrier"),
          I(f"ds_read_b128 v[{T0+4}:{T0+7}], v2 offset:{L_MISC+256}"),
          I(f"v_or3_b32 v{T0+4}, v{T0+4}, v{T0+5}, v{T0+6}"), I(f"v_or_b32 v{T0+4}, v{T0+4}, v{T0+7}"),
          I(f"v_readfirstlane_b32 s48, v{T0+4}"),
          I("s_andn2_b32 s48, s48, s34"), I("s_cmp_lg_u32 s48, 0"), I(f"s_cbranch_scc1 {P}_fallback")]
    if FULL:
        o += [I("s_setprio 0")] + wf_loads() + wf_store()
        if 'nocp2' not in EXP: o += [RAW(code_prefetch("k4_out_kernel", 1024, 32, 1, 2, 46))]
    elif DIRECT:
        o += [RAW(f"    s_cmp_lg_u32 s32, 0\n    s_cbranch_scc1 {P}_done\n    s_mov_b32 exec_hi, 0\n    buffer_atomic_add v5, v4, s[8:11], s47 offen sc1\n{P}_done:")]
    else:
        o += [RAW(f"    s_cmp_lg_u32 s32, 0\n    s_cbranch_scc1 {P}_done\n    s_mov_b64 exec, 1\n    buffer_atomic_add v3, v2, s[8:11], s46 offen sc0 sc1\n    s_waitcnt vmcnt(0)\n"
              f"    v_readfirstlane_b32 s48, v3\n    s_cmp_lg_u32 s48, 31\n    s_cbranch_scc1 {P}_done\n    s_mov_b32 exec_lo, -1\n"
              f"    buffer_store_dword v5, v4, s[8:11], s47 offen sc1\n{P}_done:")]
    o += [I("s_endpgm")]
    a, _ = finalize(o, st)
    txt += text_of(a) + "\n"
    o = [RAW(f"{P}_fallback:"), I("s_waitcnt vmcnt(0) lgkmcnt(0)"), I("s_nop 15"),
         I("s_mov_b32 s18, 0"), I("s_mov_b32 s22, 0"), I("s_mov_b32 s34, 1"), I("s_mov_b32 s35, 0"), I("s_mov_b32 s41, s42"), I("s_mov_b32 s40, s43"),
         I(f"v_mov_b32 v{T0}, 0xff7fffff"), I(f"v_mov_b32 v{T0+1}, 0xff7fffff")]
    for q in range(2): o += [I(f"v_mov_b32 v{QF+8*q+5}, 0"), I(f"v_mov_b32 v{QF+8*q+6}, 0")]
    o += [RAW(f"{P}_fb_chunk:"), I("s_barrier")] + dma_chunk() + [I("s_waitcnt vmcnt(0)"), I("s_barrier"),
          I(f"v_mov_b32 v{VKA}, v{LKA}"), I(f"v_mov_b32 v{VKB}, v{LKB}"), I("s_mov_b32 s36, 0"), RAW(f"{P}_fb_tile:")]
    o += k_reads(0) + qk(0, 0) + qk(0, 1) + max16(T0, S(0, 0)) + max16(T0+1, S(0, 1))
    o += [I(f"v_add_u32 v{VKA}, 1280, v{VKA}"), I(f"v_add_u32 v{VKB}, 1280, v{VKB}"),
          I("s_add_u32 s36, s36, 1"), I("s_cmp_lt_u32 s36, 8"), I(f"s_cbranch_scc1 {P}_fb_tile"),
          I(f"s_add_u32 s41, s41, {CH}"), I("s_add_u32 s35, s35, 1"), I("s_cmp_lt_u32 s35, 8"), I(f"s_cbranch_scc1 {P}_fb_chunk")]
    o += xhalf_max(T0, T0+2) + xhalf_max(T0+1, T0+3) + set_m(T0, 0, T0+4) + set_m(T0+1, 1, T0+8)
    for r in range(32): o.append(I(f"v_mov_b32 v{OO+r}, 0"))
    o += [I("s_barrier"), I("s_mov_b32 s41, s42")] + dma_chunk()
    o += [I(f"s_add_u32 s40, s43, {SLOTB}"), I(f"s_add_u32 s41, s42, {CH}")] + dma_chunk()
    o += [I("s_mov_b32 s55, 0"), I("s_mov_b32 s58, 6"), I("s_mov_b32 s35, 0"), I(f"s_add_u32 s41, s42, {2*CH}"), I("s_waitcnt vmcnt(0)"), I("s_barrier"), I("s_nop 7"), I(f"s_branch {P}_main")]
    a, _ = finalize(o)
    txt += text_of(a) + "\n"
    return txt
```

```python
from common import *
import k2
from k2 import (S, k_reads, v_reads, qk, pv, softmax_half, dma_chunk, set_m, max16, xhalf_max, dpp_reduce,
                SLOTB, L_Q, L_MISC, QF, KF, VF, SS, PP, OO, VKA, VKB, VVA, NKA, NKB, NVA, LKA, LKB, LVA, VD, VD4, T0)
EXP = os.environ.get('EXP', '').split(',')
LDS_BYTES = 74240
PRIO_A = int(os.environ.get('PRIO_A', '2')); PRIO_B = int(os.environ.get('PRIO_B', '0'))

import attn
def role_a(): return attn.role_a(1)

ZG = 2432; ZSLOT = 4*ZG; ZBASE = 32768
ACC = 16
ZF = [88, 124]
WFr = [160, 176]
Z1P = 192
VA = 228
VZ = 232
RB = 233
RA = 235
VT = 236
TB = 238
VX1 = 244
VA1 = 248
RT1 = 251; RT8 = 252
VP = 253
LB_MISC = 71680
BURST = int(os.environ.get('BURST', '0'))
def accr(T, tt): return ACC + 16*(T >> 1) + 8*tt + 4*(T & 1) if T < 8 else ACC + 64 + 4*tt

def dma_rows(slot, vo, srdn, so):
    g = [[I(f"s_add_u32 m0, s40, {slot*16384}")]]
    for p in range(4): g.append([I(f"buffer_load_dwordx4 v{vo+p}, {srdn}, {so} offen offset:{1024*p} lds", tag=f"W{slot}")])
    g[-1].append(I(f"s_add_u32 {so}, {so}, 128"))
    return g
def gdma_w(slot): return dma_rows(slot, VA, "s[12:15]", "s42")
def pdma_x(slot): return dma_rows(slot, VX1, "s[36:39]", "s34")
def dma_img(slot, vos, srdn, so, step, fl):
    return [[I(f"s_add_u32 m0, s41, {slot*ZSLOT}")],
            [I(f"buffer_load_dwordx4 v{vos[0]}, {srdn}, {so} offen{fl} lds", tag=f"D{slot}")],
            [I(f"buffer_load_dwordx4 v{vos[1]}, {srdn}, {so} offen offset:1024{fl} lds", tag=f"D{slot}")],
            [I("s_mov_b64 exec, 0xffff"), I(f"buffer_load_dwordx4 v{vos[2]}, {srdn}, {so} offen offset:2048{fl} lds", tag=f"D{slot}"), I("s_mov_b64 exec, -1"),
             I(f"s_add_u32 {so}, {so}, {step}")]]
def gdma_z(slot): return dma_img(slot, [VZ]*3, "s[8:11]", "s43", 4*36864, " sc1")
def pdma_a(slot): return dma_img(slot, [VA1, VA1+1, VA1+2], "s[20:23]", "s49", 32*9216, "")
if 'p1lin' in EXP:
    def pdma_a(slot): return dma_img(slot, [VZ]*3, "s[20:23]", "s49", 9216, "")
def flat(g): return [x for l in g for x in l]
def areads(slot, st_, tr):
    z = ZF[st_]
    if not tr: return [I(f"ds_read_b128 v[{z+4*i}:{z+4*i+3}], v{RA if i < 8 else RT8} offset:{slot*ZSLOT + (512*(i>>1) + 128*(i&1) if i < 8 else 0)}") for i in range(9)]
    o = []
    for T in range(9):
        for h in range(2):
            if T < 8: o.append(I(f"ds_read_b64_tr_b16 v[{z+4*T+2*h}:{z+4*T+2*h+1}], v{RT1} offset:{slot*ZSLOT + 4608*h + 64*(T>>1) + 16*(T&1)}"))
            else: o.append(I(f"ds_read_b64_tr_b16 v[{z+4*T+2*h}:{z+4*T+2*h+1}], v{RT8} offset:{slot*ZSLOT + 4608*h}"))
    return o
def wreads(slot):
    w = WFr[slot]
    return [I(f"ds_read_b128 v[{w+8*ks+4*tt}:{w+8*ks+4*tt+3}], v{RB+ks} offset:{slot*16384 + 2048*tt}") for ks in range(2) for tt in range(2)]
def gmfmas(s, zero=False):
    z = ZF[s % 2]; w = WFr[(s >> 1) & 1] + 8*(s & 1)
    return [I(f"v_mfma_f32_16x16x32_bf16 v[{accr(T,tt)}:{accr(T,tt)+3}], v[{z+4*T}:{z+4*T+3}], v[{w+4*tt}:{w+4*tt+3}], " + ("0" if zero else f"v[{accr(T,tt)}:{accr(T,tt)+3}]"))
            for T in range(9) for tt in range(2)]
SYNC = int(os.environ.get('SYNC', '4'))
def gstage(s, dm, last=False, tr=False, zero=False, pre=()):
    ns = (s + 1) % 4
    mf = gmfmas(s, zero)
    if last: return mf
    tags = [f"D{ns}"] + ([f"W{(ns >> 1) & 1}"] if s & 1 else [])
    rd = areads(ns, ns % 2, tr)
    if s & 1: rd = wreads((ns >> 1) & 1)[:2] + rd + wreads((ns >> 1) & 1)[2:]
    side = []
    rd = [[x] for x in rd]; dm = list(dm)
    while rd or dm:
        if dm: side.append(dm.pop(0))
        if rd: side.append(rd.pop(0))
        if rd and len(rd) > len(dm): side.append(rd.pop(0))
    o = mf[:SYNC] + [WAITDS()] + ([WAITVM(tags)] if 'novm' not in EXP else []) + list(pre) + ([I("s_barrier")] if 'nobar' not in EXP else [])
    if 'nodma' in EXP: side = [g for g in side if not any(x.ldsdma for x in g)]
    rest = mf[SYNC:]; n = len(rest); m = len(side); j = 0
    if BURST: o.append(I("s_setprio 3"))
    for i, x in enumerate(rest):
        o.append(x)
        if BURST and i == BURST - 1: o.append(I("s_setprio 0"))
        tgt = min(m, -(-(i + 1) * m // n))
        o += flat(side[j:tgt]); j = tgt
    return o

def ln_loads():
    R = 64
    o = [I("v_lshlrev_b32 v15, 4, v0"),
         I("s_and_b32 s59, s2, 7"), I("s_lshl_b32 s59, s59, 5"), I("s_lshr_b32 s46, s2, 3"), I("s_add_u32 s59, s59, s46"),
         I("s_mul_i32 s58, s59, 36864"), I(f"s_add_u32 s58, s58, {WS_Z}"), I("s_mov_b32 s46, s58")]
    for i in range(9):
        o.append(I(f"buffer_load_dwordx4 v[{R+4*i}:{R+4*i+3}], v15, s[8:11], s46 offen"))
        if i < 8: o.append(I("s_add_u32 s46, s46, 4096"))
    return o

def ln_compute():
    R = 64; F = 100; A = 16; B = 32
    o = []
    for i in range(9):
        for d in range(4):
            k = 4*i + d
            o += [I(f"v_lshlrev_b32 v{F+2*k}, 16, v{R+k}"), I(f"v_and_b32 v{F+2*k+1}, 0xffff0000, v{R+k}")]
        if i == 0:
            for j in range(8): o.append(I(f"v_mul_f32 v{A+8+j}, v{F+j}, v{F+j}"))
        else:
            for j in range(8): o.append(I(f"v_add_f32 v{A+j}, v{F+j if i == 1 else A+j}, v{F+8*i+j}"))
            for j in range(8): o.append(I(f"v_fmac_f32 v{A+8+j}, v{F+8*i+j}, v{F+8*i+j}"))
    o += [I("v_and_b32 v2, 1, v1"), I("v_cmp_eq_u32 s[50:51], 0, v2"), I("v_and_b32 v2, 2, v1"), I("v_cmp_eq_u32 s[52:53], 0, v2"),
          I("v_and_b32 v2, 4, v1"), I("v_cmp_eq_u32 s[54:55], 0, v2"), I("v_and_b32 v2, 8, v1"), I("v_cmp_eq_u32 s[56:57], 0, v2")]
    n = 16
    for step, (msk, dpp) in enumerate((("s[56:57]", "row_mirror"), ("s[54:55]", "row_half_mirror"), ("s[52:53]", "quad_perm:[2,3,0,1]"), ("s[50:51]", "quad_perm:[1,0,3,2]"))):
        h = n // 2
        for i in range(h): o.append(I(f"v_cndmask_b32 v{B+i}, v{A+i}, v{A+h+i}, {msk}"))
        for i in range(h): o.append(I(f"v_cndmask_b32 v{A+i}, v{A+h+i}, v{A+i}, {msk}"))
        for i in range(h): o.append(I(f"v_add_f32_dpp v{A+i}, v{B+i}, v{A+i} {dpp} row_mask:0xf bank_mask:0xf"))
        n = h
    o += [I(f"v_lshlrev_b32 v2, 2, v0"), I(f"v_add_u32 v2, {LB_MISC}, v2"), I(f"ds_write_b32 v2, v{A}"),
          I("v_and_b32 v3, 15, v1"), I("v_lshlrev_b32 v3, 2, v3"), I(f"v_add_u32 v3, {LB_MISC}, v3"),
          WAITDS(), I("s_barrier")]
    for r in range(8): o.append(I(f"ds_read2_b32 v[{B+2*r}:{B+2*r+1}], v3 offset0:{32*r} offset1:{32*r+16}"))
    for r in range(8): o.append(I(f"v_add_f32 v{B+r}, v{B+r}, v{B+8+r}"))
    for r in range(4): o.append(I(f"v_add_f32 v{B+r}, v{B+r}, v{B+4+r}"))
    o += [I(f"v_add_f32 v{B}, v{B}, v{B+2}"), I(f"v_add_f32 v{B+1}, v{B+1}, v{B+3}"), I(f"v_add_f32 v{B}, v{B}, v{B+1}"),
          I(f"v_mul_f32 v{B}, {f32(1.0/2304)}, v{B}"),
          I(f"v_mov_b32_dpp v{B+1}, v{B} row_ror:8 row_mask:0xf bank_mask:0xf"),
          I(f"v_fma_f32 v{B+1}, -v{B}, v{B}, v{B+1}"), I(f"v_max_f32 v{B+1}, 0, v{B+1}"), I(f"v_add_f32 v{B+1}, {f32(1e-5)}, v{B+1}"),
          I(f"v_rsq_f32 v{B+1}, v{B+1}"), I(f"v_mul_f32 v{B}, -v{B}, v{B+1}" if False else f"v_mul_f32_e64 v{B}, -v{B}, v{B+1}")]
    for j in range(8): o.append(I(f"v_readlane_b32 s{50+j}, v{B}, {j}"))
    for j in range(8): o.append(I(f"v_mov_b32 v{A+j}, s{50+j}"))
    for j in range(8): o.append(I(f"v_readlane_b32 s{50+j}, v{B+1}, {j}"))
    for i in range(9):
        for j in range(8): o.append(I(f"v_fma_f32 v{F+8*i+j}, v{F+8*i+j}, s{50+j}, v{A+j}"))
        for j in range(4): o.append(I(f"v_cvt_pk_bf16_f32 v{R+4*i+j}, v{F+8*i+2*j}, v{F+8*i+2*j+1}"))
        o.append(I(f"buffer_store_dwordx4 v[{R+4*i}:{R+4*i+3}], v15, s[8:11], s58 offen sc1", tag="LNST"))
        o.append(I("s_add_u32 s58, s58, 4096"))
    return o
def gate_loads():
    o = [I("s_load_dwordx2 s[36:37], s[0:1], 0"), I("s_load_dwordx2 s[20:21], s[0:1], 64"),
         I(f"s_mov_b32 s38, {2048*1152}"), I("s_mov_b32 s39, 0x00020000"), I("s_mov_b32 s22, 1152"), I("s_mov_b32 s23, 0x00020000"),
         I("v_and_b32 v191, 31, v0"), I("v_lshlrev_b32 v191, 4, v191"), I("v_lshrrev_b32 v190, 5, v0"), I("v_mul_u32_u24 v190, 1152, v190"), I("v_add_u32 v190, v190, v191"),
         I("v_mov_b32 v189, 0x7f000000"), I("v_cmp_gt_u32 vcc, 128, v191"), I("v_cndmask_b32 v189, v189, v190, vcc"),
         I("s_mul_i32 s46, s59, 9216"), I("s_waitcnt lgkmcnt(0)")]
    for i in range(3):
        o += [I(f"buffer_load_dwordx4 v[{192+4*i}:{195+4*i}], v{190 if i < 2 else 189}, s[36:39], s46 offen offset:{512*i}"),
              I(f"buffer_load_dwordx4 v[{204+4*i}:{207+4*i}], v191, s[20:23], 0 offen offset:{512*i}")]
    return o
def gate_compute():
    o = [I("v_mov_b32 v190, 0"), I("v_mov_b32 v191, 0")]
    for k in range(12):
        a, b = 192 + k, 204 + k
        o += [I(f"v_lshlrev_b32 v4, 16, v{a}"), I(f"v_lshlrev_b32 v5, 16, v{b}"), I(f"v_and_b32 v6, 0xffff0000, v{a}"), I(f"v_and_b32 v7, 0xffff0000, v{b}"),
              I("v_fmac_f32 v190, v4, v5"), I("v_fmac_f32 v191, v6, v7")]
    o.append(I("v_add_f32 v190, v190, v191"))
    for m in ("row_shr:1", "row_shr:2", "row_shr:4", "row_shr:8"): o.append(I(f"v_add_f32_dpp v190, v190, v190 {m} bound_ctrl:0"))
    o += [I("v_add_f32_dpp v190, v190, v190 row_bcast:15 row_mask:0xa"),
          I(f"v_mul_f32 v190, {f32(-LOG2E)}, v190"), I("v_exp_f32 v190, v190"), I("v_add_f32 v190, 1.0, v190"), I("v_rcp_f32 v190, v190"),
          I("v_lshrrev_b32 v4, 5, v0"), I("v_lshlrev_b32 v4, 2, v4"), I("s_lshl_b32 s46, s59, 5"), I(f"s_add_u32 s46, s46, {WS_G}"),
          I("s_mov_b32 exec_lo, 0x80000000"), I("s_mov_b32 exec_hi, 0x80000000"),
          I("buffer_store_dword v190, v4, s[8:11], s46 offen sc1", tag="LNST"), I("s_mov_b64 exec, -1")]
    return o

def role_b():
    LATE = 'lnearly' not in EXP
    o = [I("s_setprio 3" if not LATE else "s_setprio 1"), I("s_sub_u32 s2, s2, 256")] + ([] if LATE else ln_loads() + gate_loads())
    o += [
          I("s_and_b32 s30, s2, 1"), I("s_lshl_b32 s30, s30, 3"), I("s_bfe_u32 s46, s2, 0x30003"), I("s_add_u32 s30, s30, s46"),
          I("s_bfe_u32 s31, s2, 0x20001"), I("s_lshl_b32 s31, s31, 2"), I("s_lshr_b32 s46, s2, 6"), I("s_add_u32 s31, s31, s46"),
          I("s_lshl_b32 s33, s30, 2"), I("s_add_u32 s33, s33, s32"),
          I("s_lshl_b32 s42, s33, 17"),
          I(f"v_lshlrev_b32 v{VZ}, 4, v1"),
          I("s_lshl_b32 s40, s32, 12"), I(f"s_mul_i32 s41, s32, {ZG}"), I(f"s_add_u32 s41, s41, {ZBASE}"), I("s_mul_i32 s44, s32, 36864"),
          I("v_lshrrev_b32 v7, 3, v1"),
          I("v_lshrrev_b32 v3, 4, v1"), I("v_and_b32 v4, 7, v1"), I("v_xor_b32 v4, v4, v3"), I("v_lshlrev_b32 v4, 4, v4"), I("v_xor_b32 v8, 64, v4")]
    o += srd(12, 24, 25, 2048*4096) + srd(16, 26, 27, 4096)
    o += [I("s_mul_i32 s48, s31, 2304"), I(f"s_add_u32 s48, s48, {WS_Z}"), I("s_add_u32 s43, s48, s44"),
          I("v_lshlrev_b32 v2, 12, v7"),
          I(f"v_add_u32 v{VA}, v2, v4"), I(f"v_add_u32 v{VA+1}, v2, v8"), I(f"v_add_u32 v{VA+1}, {32768-1024}, v{VA+1}"),
          I(f"v_add_u32 v{VA+2}, {65536-2048}, v{VA}"), I(f"v_add_u32 v{VA+3}, {65536-2048}, v{VA+1}"),
          I("v_and_b32 v2, 15, v1"), I("v_bfe_u32 v9, v1, 1, 3"), I("v_xor_b32 v4, v9, v3"), I("v_lshlrev_b32 v4, 4, v4"),
          I("v_lshl_add_u32 v4, v2, 7, v4"), I(f"v_add_u32 v{RB}, s40, v4"), I(f"v_xor_b32 v{RB+1}, 64, v{RB}"),
          I(f"v_mul_u32_u24 v4, {ZG}, v3"), I("v_lshl_add_u32 v4, v2, 4, v4"), I("s_and_b32 s46, s31, 1"),
          I("s_lshl_b32 s47, s46, 11"), I(f"s_sub_u32 s47, {ZBASE + 2048}, s47"), I(f"v_add_u32 v{RT8}, s47, v4"),
          I("v_and_b32 v9, 8, v1"), I("v_lshl_add_u32 v4, v9, 4, v4"), I("s_lshl_b32 s47, s46, 8"), I(f"s_add_u32 s47, s47, {ZBASE}"), I(f"v_add_u32 v{RA}, s47, v4"),
          I("v_lshlrev_b32 v10, 1, v2"), I("v_lshlrev_b32 v11, 2, v2"),
          I("s_lshr_b32 s44, s2, 4"), I("s_lshl_b32 s44, s44, 7"), I(f"s_add_u32 s44, s44, {WS_CNT}"), I("s_and_b32 s45, s2, 63"), I("s_lshl_b32 s45, s45, 7"), I(f"s_add_u32 s45, s45, {WS_CNT + 4096}"),
          I(f"v_lshlrev_b32 v{VP}, 7, v1"), I(f"v_mov_b32 v{VT}, 0"), I(f"v_mov_b32 v{VT+1}, 1"),
          I("s_mul_i32 s46, s33, 184320"), I(f"s_add_u32 s46, s46, {WS_ACT + 18*1024}"),
          I("s_mul_i32 s34, s31, 9"), I("s_add_u32 s34, s34, 1"), I("s_lshr_b32 s34, s34, 1"), I("s_lshl_b32 s34, s34, 10"), I("s_add_u32 s34, s34, s46"),
          I("s_lshr_b32 s49, s31, 1"), I("s_mul_i32 s49, s49, 9216"), I("s_add_u32 s49, s49, 4096"), I("s_and_b32 s47, s31, 1"), I("s_lshl_b32 s47, s47, 9"),
          I("s_add_u32 s49, s49, s47"), I("s_add_u32 s49, s49, s46"),
          I(f"v_add_u32 v{VX1}, 92160, v{VZ}"),
          I("v_and_b32 v4, 31, v1"), I("v_lshlrev_b32 v4, 4, v4"), I("v_lshrrev_b32 v9, 5, v1"), I(f"v_lshl_add_u32 v{VX1+1}, v9, 3, v4"),
          I(f"v_add_u32 v{VX1+2}, 92160, v{VX1+1}")]
    if LATE: o += ln_loads() + gate_loads() + [I("s_setprio 3")]
    early = flat(gdma_w(0)) + flat(gdma_w(1))
    early += [I("s_lshl_b32 s46, s33, 6"),
          I(f"buffer_load_ushort v{TB}, v10, s[16:19], s46 offen"), I(f"buffer_load_ushort v{TB+1}, v10, s[16:19], s46 offen offset:32")]
    o += stamp(7)
    ln = ln_compute()
    cut = next(i for i, x in enumerate(ln) if x.mn == "s_barrier")
    WLATE = 'wlate' in EXP
    if WLATE:
        o += ln[:cut-1] + gate_compute() + ln[cut-1:]
        etxt = text_of(finalize(early)[0])
        o += [RAW("    s_cmp_eq_u32 s32, 0\n    s_cbranch_scc1 KB_w0\n" + etxt + "\n    s_waitcnt vmcnt(10)\n    s_branch KB_w1\nKB_w0:\n    s_waitcnt vmcnt(0)\nKB_w1:"), I("s_waitcnt vmcnt(63)")]
    else: o += ln[:cut-1] + early + gate_compute() + ln[cut-1:]
    o += stamp(2)
    o += [I("s_lshl_b32 s59, s33, 7"), I(f"s_add_u32 s59, s59, {WS_G}"),
          ] + ([] if WLATE else [WAITVM("LNST")]) + [I("s_barrier")] + stamp(6)
    o += [RAW("    s_cmp_lg_u32 s32, 0\n    s_cbranch_scc1 KB_pubd\n    s_mov_b64 exec, 1\n"
              f"    v_mov_b32 v{VP+1}, 1\n"
              f"    buffer_atomic_add v{VP+1}, v{VT}, s[8:11], s44 offen sc0 sc1\n    s_waitcnt vmcnt(0)\n"
              f"    v_readfirstlane_b32 s47, v{VP+1}\n    s_cmp_lg_u32 s47, 15\n    s_cbranch_scc1 KB_notlast\n"
              f"    s_mov_b64 exec, -1\n    s_mov_b32 s47, {WS_CNT + 4096}\n    buffer_atomic_add v{VT+1}, v{VP}, s[8:11], s47 offen sc1\n    s_mov_b64 exec, 1\n"
              f"KB_notlast:\n    s_mov_b64 exec, -1\nKB_pubd:")]
    o += [RAW("    s_cmp_lg_u32 s32, 0\n    s_cbranch_scc1 KB_polled\n    s_mov_b64 exec, 1\n    s_mov_b32 s47, 0\nKB_poll:\n"
              f"    buffer_load_dword v{VP+1}, v{VT}, s[8:11], s45 offen sc1\n    s_add_u32 s47, s47, 1\n    s_waitcnt vmcnt(0)\n"
              f"    v_cmp_ne_u32 vcc, 16, v{VP+1}\n    s_cmp_gt_u32 s47, 0x10000\n    s_cbranch_scc1 KB_pdone\n    s_cbranch_vccz KB_pdone\n    s_sleep 1\n    s_branch KB_poll\n"
              "KB_pdone:\n    s_mov_b64 exec, -1\n" + (etxt + "\n" if WLATE else "") + "KB_polled:"),
          I("s_barrier")] + stamp(3)
    for k in range(4): o += flat(gdma_z(k))
    o += [I(f"buffer_load_dword v{TB+2}, v11, s[8:11], s59 offen sc1"), I(f"buffer_load_dword v{TB+3}, v11, s[8:11], s59 offen offset:64 sc1")]
    o += [WAITVM(["D0", "W0"]), I("s_barrier")] + wreads(0) + areads(0, 0, False)
    o += [I("s_setprio 0"), I("s_mov_b32 s35, 0")] + stamp(4)
    def dm2(k):
        s_ = k % 4
        return (gdma_w(s_ >> 1) if s_ % 2 == 0 else []) + gdma_z(s_)
    for k in range(4): o += gstage(k, dm2(k), zero=(k == 0))
    o += [RAW("KB_loop:")]
    a, st = finalize(o); txt = text_of(a) + "\n"
    body = []
    for k in range(4): body += gstage(k, dm2(k))
    body += [I("s_add_u32 s35, s35, 1"), I("s_cmp_lt_u32 s35, 14"), I("s_cbranch_scc1 KB_loop")]
    a, st = finalize_loop(body, st); txt += text_of(a) + "\n"
    z1 = []
    for c in range(8):
        j, tt = divmod(c, 2)
        z1.append([I(f"buffer_load_dwordx4 v[{Z1P+4*c}:{Z1P+4*c+3}], v{VZ if tt == 0 else VX1}, s[8:11], s34 offen offset:{1024*j}")])
    for tt in range(2): z1.append([I(f"buffer_load_dwordx2 v[{Z1P+32+2*tt}:{Z1P+33+2*tt}], v{VX1+1+tt}, s[8:11], s49 offen")])
    prep = [I(f"v_lshlrev_b32 v{TB}, 16, v{TB}"), I(f"v_lshlrev_b32 v{TB+1}, 16, v{TB+1}"),
          I(f"v_sub_f32 v{TB+2}, 1.0, v{TB+2}"), I(f"v_sub_f32 v{TB+3}, 1.0, v{TB+3}"),
          I(f"v_mul_f32 v{TB}, v{TB}, v{TB+2}"), I(f"v_mul_f32 v{TB+1}, v{TB+1}, v{TB+3}")]
    o = gstage(0, z1[:5]) + gstage(1, z1[5:]) + gstage(2, [[x] for x in prep])
    def quad(a_, z, sc, bi, t, dst):
        x = [I(f"v_lshlrev_b32 v{t}, 16, v{z}"), I(f"v_and_b32 v{t+1}, 0xffff0000, v{z}"),
             I(f"v_lshlrev_b32 v{t+2}, 16, v{z+1}"), I(f"v_and_b32 v{t+3}, 0xffff0000, v{z+1}")]
        for r in range(4): x.append(I(f"v_fma_f32 v{a_+r}, v{a_+r}, v{sc}, v{bi}"))
        for r in range(4): x.append(I(f"v_mul_f32 v{a_+r}, v{a_+r}, v{t+r}"))
        x += [I(f"v_cvt_pk_bf16_f32 v{dst}, v{a_}, v{a_+1}"), I(f"v_cvt_pk_bf16_f32 v{dst+1}, v{a_+2}, v{a_+3}")]
        return x
    D = ZF[0]
    ep = []
    for c in range(8):
        j, tt = divmod(c, 2)
        for q in range(2):
            g = 2*c + q
            ep += quad(ACC + 4*g, Z1P + 2*g, TB+2+tt, TB+tt, 2 + 4*q, D + 4*c + 2*q)
        ep.append(I(f"buffer_store_dwordx4 v[{D+4*c}:{D+4*c+3}], v{VZ if tt == 0 else VX1}, s[8:11], s34 offen offset:{1024*j}"))
    for tt in range(2):
        g = 16 + tt
        ep += quad(ACC + 4*g, Z1P + 2*g, TB+2+tt, TB+tt, 2 + 4*tt, D + 32 + 2*tt)
        ep.append(I(f"buffer_store_dwordx2 v[{D+32+2*tt}:{D+33+2*tt}], v{VX1+1+tt}, s[8:11], s49 offen"))
    mf = gstage(3, [], last=True)
    o += [I("s_setprio 3")] + mf[:6]
    k = 0
    for m in mf[6:]:
        o += [m] + ep[k:k+2]; k += 2
    o += stamp(5) + ep[k:]
    a, st = finalize(o, st); txt += text_of(a) + "\n"
    return txt

def build():
    o = [RAW("    s_cmp_ge_u32 s2, 512\n    s_cbranch_scc1 K23_exit"),
         I("s_load_dwordx2 s[4:5], s[0:1], 88"), I("s_load_dwordx4 s[24:27], s[0:1], 40"),
         I("v_and_b32 v1, 63, v0"), I("v_lshrrev_b32 v2, 6, v0"), I("s_nop 0"), I("v_readfirstlane_b32 s32, v2"),
         I("s_waitcnt lgkmcnt(0)")]
    o += srd(8, 4, 5, WS_USED)
    a, st = finalize(o)
    txt = text_of(a) + "\n    s_cmp_ge_u32 s2, 256\n    s_cbranch_scc1 K23_B\n"
    if 'noA' in EXP: txt += "    s_branch K23_exit\n"
    txt += role_a() + "K23_B:\n" + ("    s_branch K23_exit\n" if 'noB' in EXP else "") + role_b() + "K23_exit:\n"
    return kernel_text("k23_fused_kernel", txt, 256, kidx=1)

def launch(): return ("k23_fused_kernel", 512, 256, LDS_BYTES, build())
```

```python
from common import *
EXP = os.environ.get('EXP', '').split(',')
LDS_BYTES = 61440
ACC = 16
BUF = 96
VA = 4
VW = 8; VW4 = 9
MAP = os.environ.get('K4MAP', '4x8')

def loads(b):
    r = BUF + 36*b
    o = []
    for i in range(4):
        o.append(I(f"buffer_load_dwordx4 v[{r+4*i}:{r+4*i+3}], v{VA+i}, s[8:11], s40 offen"))
        o.append(I(f"buffer_load_dwordx4 v[{r+16+4*i}:{r+19+4*i}], v{VW}, s[8:11], s41 offen offset:{1024*i}"))
    if 'k4now4' not in EXP: o.append(I(f"buffer_load_dwordx4 v[{r+32}:{r+35}], v{VW4}, s[8:11], s41 offen"))
    if 'k4noact' in EXP: o = [x for x in o if 's40' not in x.text]
    if 'k4now' in EXP: o = [x for x in o if 's41' not in x.text]
    o += [I("s_add_u32 s40, s40, 4096"), I("s_add_u32 s41, s41, 20480")]
    return o
def mfmas(b, zero=False):
    r = BUF + 36*b
    if 'k4nomfma' in EXP: return [I(f"v_mov_b32 v{ACC+4*k}, v{r+4*(k%9)}") for k in range(20)]
    order = sorted([(n, t) for n in range(5) for t in range(4)], key=lambda x: (max(x), x))
    return [I(f"v_mfma_f32_16x16x32_bf16 v[{ACC+16*n+4*t}:{ACC+16*n+4*t+3}], v[{r+16+4*n}:{r+19+4*n}], v[{r+4*t}:{r+4*t+3}], " + ("0" if zero else f"v[{ACC+16*n+4*t}:{ACC+16*n+4*t+3}]"))
            for n, t in order]

def build():
    HALF = 'k4half' in EXP
    o = [RAW("    s_cmp_ge_u32 s2, 256\n    s_cbranch_scc1 K4_exit" if not HALF else "    s_lshr_b32 s59, s2, 8\n    s_and_b32 s2, s2, 255"),
         I("s_load_dwordx2 s[4:5], s[0:1], 88"), I("s_load_dwordx2 s[6:7], s[0:1], 72"),
         I("v_and_b32 v1, 63, v0"), I("v_lshrrev_b32 v2, 6, v0"), I(f"v_lshlrev_b32 v{VW}, 4, v1"), I("v_readfirstlane_b32 s32, v2")]
    if MAP == '8x4':
        o += [I("s_bfe_u32 s30, s2, 0x20001"), I("s_lshl_b32 s30, s30, 3"), I("s_bfe_u32 s46, s2, 0x30003"), I("s_add_u32 s30, s30, s46"),
              I("s_and_b32 s31, s2, 1"), I("s_lshl_b32 s31, s31, 2"), I("s_lshr_b32 s46, s2, 6"), I("s_add_u32 s31, s31, s46")]
    else:
        o += [I("s_and_b32 s30, s2, 7"), I("s_lshl_b32 s30, s30, 2"), I("s_lshr_b32 s46, s2, 6"), I("s_add_u32 s30, s30, s46"),
              I("s_bfe_u32 s31, s2, 0x30003")]
    o += [I(f"s_mul_i32 s40, s30, {4*92160}"), I("s_lshl_b32 s46, s32, 10"), I("s_add_u32 s40, s40, s46"), I(f"s_add_u32 s40, s40, {WS_ACT}"),
          I(f"s_mul_i32 s41, s31, {450*1024}"), I("s_mul_i32 s46, s32, 5120"), I("s_add_u32 s41, s41, s46"), I(f"s_add_u32 s41, s41, {WS_WF}")]
    if HALF: o += [I("s_mul_i32 s46, s59, 45056"), I("s_add_u32 s40, s40, s46"), I("s_mul_i32 s46, s59, 225280"), I("s_add_u32 s41, s41, s46")]
    for i in range(4):
        o += [I(f"s_add_u32 s46, s32, {i}"), I("s_and_b32 s46, s46, 3"), I(f"s_mul_i32 s{50+i}, s46, 15360"), I("s_mul_i32 s46, s46, 92160"), I(f"v_add_u32 v{VA+i}, s46, v{VW}")]
    o += [I("v_bfe_u32 v2, v1, 3, 1"), I("v_lshlrev_b32 v2, 30, v2"), I(f"v_add_u32 v{VW4}, v{VW}, v2"), I(f"v_add_u32 v{VW4}, 4096, v{VW4}"),
          I("s_waitcnt lgkmcnt(0)")]
    o += srd(8, 4, 5, WS_USED)
    o += loads(0) + loads(1) + loads(2)
    o += srd(12, 6, 7, 2048*1152)
    for i in range(1, 4): o.append(I(f"v_add_u32 v{9+i}, s{50+i}, v{VW}"))
    o += [I(f"v_add_u32 v13, s50, v{VW}"),
          I("v_and_b32 v2, 15, v1"), I("v_mul_u32_u24 v2, 1152, v2"), I("v_lshrrev_b32 v3, 4, v1"), I("v_lshl_add_u32 v14, v3, 4, v2"), I("v_lshl_add_u32 v15, v3, 3, v2"),
          I("s_lshl_b32 s46, s30, 2"), I("s_add_u32 s46, s46, s32"), I(f"s_mul_i32 s46, s46, {16*1152}"), I("s_mul_i32 s47, s31, 144"), I("s_add_u32 s46, s46, s47"),
          I("s_mov_b32 s35, 0")] + stamp(2)
    o += merge(mfmas(0, True), loads(3), start=1, end=14)
    o += [RAW("K4_loop:")]
    a, st = finalize(o); txt = text_of(a) + "\n"
    body = []
    for b in (1, 2, 3, 0):
        body += merge(mfmas(b), loads((b + 3) % 4), start=1, end=14)
    body += [I("s_add_u32 s35, s35, 1"), I("s_cmp_lt_u32 s35, 4" if not HALF else "s_cmp_lt_u32 s35, 1"), I("s_cbranch_scc1 K4_loop")]
    a, st = finalize_loop(body, st); txt += text_of(a) + "\n"
    o = merge(mfmas(1), loads(0), start=1, end=14) + merge(mfmas(2), loads(1), start=1, end=14)
    o += [I("s_cmp_lt_u32 s32, 2"), I("s_cselect_b32 s40, s40, 0x7f000000"), I("s_cselect_b32 s41, s41, 0x7f000000")]
    o += merge(mfmas(3), loads(2), start=1, end=14) + mfmas(0) + mfmas(1)
    last = mfmas(2)
    last.sort(key=lambda x: ((x.wr[0][1] - ACC) % 16 == 0))
    wr = [I(f"ds_write_b128 v{9+i}, v[{ACC+16*n+4*i}:{ACC+16*n+4*i+3}] offset:{5120*(i-1) + 1024*n}") for n in range(5) for i in range(1, 4)]
    wr.sort(key=lambda w: next(k for k, m in enumerate(last) if m.wr[0] == w.rd[1]))
    o += last[:8]
    for k, m in enumerate(last[8:]): o += [m, wr[k]]
    o += wr[12:]
    o += stamp(3) + [WAITDS(), I("s_barrier")]
    for n in range(5):
        for i in range(3):
            r = BUF + 12*n + 4*i
            o.append(I(f"ds_read_b128 v[{r}:{r+3}], v13 offset:{5120*i + 1024*n}"))
    P = BUF + 64
    for n in range(5):
        r = BUF + 12*n; a_ = ACC + 16*n
        for j in range(4): o.append(I(f"v_add_f32 v{a_+j}, v{a_+j}, v{r+j}"))
        for j in range(4): o.append(I(f"v_add_f32 v{r+4+j}, v{r+4+j}, v{r+8+j}"))
        for j in range(4): o.append(I(f"v_add_f32 v{a_+j}, v{a_+j}, v{r+4+j}"))
        o += [I(f"v_cvt_pk_bf16_f32 v{P+2*n}, v{a_}, v{a_+1}"), I(f"v_cvt_pk_bf16_f32 v{P+2*n+1}, v{a_+2}, v{a_+3}")]
        if n in (1, 3): o.append(I(f"buffer_store_dwordx4 v[{P+2*n-2}:{P+2*n+1}], v14, s[12:15], s46 offen offset:{32*(n-1)}"))
        if n == 4: o += [I("s_mov_b32 exec_hi, 0"), I(f"buffer_store_dwordx2 v[{P+8}:{P+9}], v15, s[12:15], s46 offen offset:128")]
    a, st = finalize(o, st); txt += text_of(a) + "\nK4_exit:\n"
    return kernel_text("k4_out_kernel", txt, 240, kidx=2)

def launch(): return ("k4_out_kernel", 512 if 'k4half' in EXP else 256, 256, LDS_BYTES, build())
```

```python
from common import *
from k2 import (S, k_reads, v_reads, qk, pv, softmax_half, set_m, max16, xhalf_max,
                SLOTB, L_Q, L_MISC, QF, KF, VF, SS, PP, OO, VKA, VKB, VVA, NKA, NKB, NVA, LKA, LKB, LVA, VD, VD4, T0)
EXP = os.environ.get('EXP', '').split(',')
DIRECT = 'direct' in EXP
NC1 = int(os.environ.get('NC1', '8'))
PRIO_A = [0, int(os.environ.get('PRIO_A1', '2')), int(os.environ.get('PRIO_A2', '2'))]

VG = 220
CH = 32 * QROW
def dma_chunk():
    o = [I("s_mov_b32 m0, s40")]
    for p in range(4): o.append(I(f"buffer_load_dwordx4 v{VG+p}, s[8:11], s41 offen offset:{1024*p} lds", tag="KV"))
    o += [I("s_add_u32 m0, s40, 4096"), I(f"buffer_load_dwordx4 v{VG+4}, s[8:11], s41 offen lds", tag="KV")]
    return o

def tile_body(kt):
    n1 = kt + 1; n2 = kt + 2
    V = softmax_half(kt, 0, 0) + softmax_half(kt, 0, 1) + softmax_half(kt, 1, 0) + softmax_half(kt, 1, 1)
    qa = qk(n1, 0); qb = qk(n1, 1)
    R = k_reads(n2 % 8, n2 >= 8) + v_reads(n1 % 8, n1 >= 8)
    M = [pv(kt - 1, 1, 1), qa[0], qa[1], pv(kt, 0, 0), qb[0], pv(kt, 0, 1), qb[1], pv(kt, 1, 0)]
    return V, M, R

def state_regs():
    return [QF + 4*i for i in range(4)] + [OO + 16*q + 4*i for q in range(2) for i in range(3)]

def wf_loads():
    b = [I("s_load_dwordx2 s[36:37], s[0:1], 16"), I("s_load_dwordx2 s[38:39], s[0:1], 56"),
         I("s_lshl_b32 s48, s2, 2"), I("s_add_u32 s48, s48, s32"), I("s_mov_b32 s23, 0x00020000"),
         I("s_mul_i32 s51, s48, 729"), I("s_lshr_b32 s51, s51, 16"),
         I("s_mul_i32 s52, s51, 90"), I("s_sub_u32 s52, s48, s52"),
         I("s_mul_i32 s51, s51, 144"),
         I("s_sub_u32 s53, s52, 18"), I("s_lshl_b32 s53, s53, 5"),
         I("s_mov_b32 s54, 8"), I("s_mov_b32 s55, 2"), I("s_mov_b32 s56, 16"), I("s_mov_b32 s57, 4"),
         I("s_sub_u32 s47, s52, 16"), I("s_mul_i32 s47, s47, 288"), I("s_add_u32 s47, s47, 16"),
         I(f"s_mov_b32 s22, {2304*1152}"), I("s_waitcnt lgkmcnt(0)"),
         I("s_cmp_lt_u32 s52, 18"),
         I("s_cselect_b32 s20, s36, s38"), I("s_cselect_b32 s21, s37, s39"), I(f"s_cselect_b32 s22, {576*1152}, s22"),
         I("s_cselect_b32 s53, s47, s53"), I("s_cselect_b32 s54, 36, s54"), I("s_cselect_b32 s55, 18, s55"),
         I("s_cselect_b32 s56, 144, s56"), I("s_cselect_b32 s57, 72, s57"),
         I("s_mul_i32 s47, s52, 36"),
         I("s_cmp_lt_u32 s52, 16"),
         I("s_cselect_b32 s53, s47, s53"), I("s_cselect_b32 s54, 8, s54"), I("s_cselect_b32 s55, 2, s55"),
         I("s_cselect_b32 s56, 18, s56"), I("s_cselect_b32 s57, 4, s57"),
         I("s_mulk_i32 s53, 1152"), I("s_mulk_i32 s54, 1152"), I("s_mulk_i32 s55, 1152"), I("s_mulk_i32 s56, 1152"), I("s_mulk_i32 s57, 1152"),
         I("s_add_u32 s53, s53, s51"),
         I("v_lshrrev_b32 v4, 5, v1"), I("v_mul_lo_u32 v4, v4, s55"), I("v_bfe_u32 v5, v1, 4, 1"), I("v_mul_u32_u24 v5, 1152, v5"),
         I("v_and_b32 v7, 15, v1"), I("v_cmp_lt_u32 vcc, 8, v7"), I("v_lshlrev_b32 v7, 4, v7"), I("v_add3_u32 v4, v4, v5, v7"),
         I("v_mov_b32 v5, 0x7f000000"), I("v_cndmask_b32 v6, v4, v5, vcc"),
         I("s_cmp_lt_u32 s48, 720"), I("s_cselect_b32 s22, s22, 0"),
         I("s_mul_i32 s58, s48, 5120"), I(f"s_add_u32 s58, s58, {WS_WF}"), I("s_cmp_lt_u32 s48, 720"), I("s_cselect_b32 s58, s58, 0x7f000000"),
         I("s_lshl_b32 s50, s32, 13"), I("s_barrier")]
    for p in range(8):
        b.append(I(f"s_add_u32 m0, s50, {1024*p}"))
        if p == 0: src = "s53"
        else:
            src = "s47"
            terms = (["s56"] if p & 4 else []) + (["s57"] if p & 2 else []) + (["s54"] if p & 1 else [])
            b.append(I(f"s_add_u32 s47, s53, {terms[0]}"))
            for t in terms[1:]: b.append(I(f"s_add_u32 s47, s47, {t}"))
        b.append(I(f"buffer_load_dwordx4 v6, s[20:23], {src} offen lds", tag="WFD"))
    return b
def wf_store():
    P = 100
    b = [I("v_lshrrev_b32 v4, 4, v1"), I("v_lshlrev_b32 v4, 11, v4"), I("v_bfe_u32 v5, v1, 2, 2"), I("v_lshl_add_u32 v4, v5, 8, v4"),
         I("v_and_b32 v5, 3, v1"), I("v_lshl_add_u32 v4, v5, 3, v4"), I("v_add_u32 v4, s50, v4"), I("v_lshl_add_u32 v7, v5, 3, v4"), WAITVM("WFD")]
    for nt in range(5):
        for h in range(2):
            if nt < 4: b.append(I(f"ds_read_b64_tr_b16 v[{P+4*nt+2*h}:{P+4*nt+2*h+1}], v7 offset:{1024*h + 64*(nt>>1) + 8*(nt&1)}"))
            else: b.append(I(f"ds_read_b64_tr_b16 v[{P+4*nt+2*h}:{P+4*nt+2*h+1}], v4 offset:{1024*h + 128}"))
    for nt in range(5):
        if nt == 4: b.append(I("s_add_u32 s58, s58, 4096"))
        b.append(I(f"buffer_store_dwordx4 v[{P+4*nt}:{P+4*nt+3}], v{VD}, s[8:11], s58 offen offset:{1024*(nt%4)}"))
    return b

def epi_addr():
    o = [I("v_lshrrev_b32 v6, 5, v1")]
    o += [I("s_lshl_b32 s46, s46, 2"), I("s_mul_i32 s46, s46, 92160"), I(f"s_add_u32 s46, s46, {WS_ACT}"),
          I("s_lshr_b32 s50, s30, 1"), I("s_lshl_b32 s50, s50, 10"), I("s_and_b32 s49, s30, 1"), I("s_lshl_b32 s49, s49, 9"),
          I("s_add_u32 s50, s50, s49"), I("s_add_u32 s50, s50, s46"),
          I("s_lshr_b32 s51, s30, 4"), I("s_add_u32 s51, s51, 16"), I("s_lshl_b32 s51, s51, 10"),
          I("s_bfe_u32 s49, s30, 0x20002"), I("s_lshl_b32 s49, s49, 8"), I("s_add_u32 s51, s51, s49"),
          I("s_and_b32 s49, s30, 3"), I("s_lshl_b32 s49, s49, 2"), I("s_add_u32 s51, s51, s49"), I("s_add_u32 s51, s51, s46"),
          I("v_bfe_u32 v3, v1, 4, 1"), I("s_mov_b32 s49, 92160"), I("v_mul_lo_u32 v3, v3, s49"),
          I("v_and_b32 v4, 15, v1"), I("v_lshl_add_u32 v232, v4, 4, v3"), I("v_lshl_add_u32 v233, v6, 8, v232"),
          I(f"v_add_u32 v234, {2*92160}, v232"), I(f"v_add_u32 v235, {2*92160}, v233")]
    return o

def role_a(part):
    FULL = (part == 1 and NC1 == 8)
    P = f"A{part}"
    c0 = 0 if part == 1 else NC1
    cend = NC1 if part == 1 else 8
    o = [I("s_setprio 2" if part == 1 else "s_setprio 3"),
         I("s_and_b32 s30, s2, 7"), I("s_lshl_b32 s30, s30, 2"), I("s_lshr_b32 s46, s2, 6"), I("s_add_u32 s30, s30, s46"),
         I("s_bfe_u32 s31, s2, 0x30003"),
         I(f"v_lshlrev_b32 v{VD}, 4, v1"), I(f"v_add_u32 v{VD4}, 4096, v{VD}"),
         I("s_lshr_b32 s46, s32, 1"), I("s_add_u32 s46, s46, 1"), I(f"s_mul_i32 s42, s46, {QPART}"),
         I("s_and_b32 s46, s32, 1"), I(f"s_mul_i32 s46, s46, {16*QROW}"), I("s_add_u32 s42, s42, s46"),
         I("s_mul_i32 s47, s30, 288"), I("v_mov_b32 v5, 9216"), I(f"v_mov_b32 v7, {QROW}")]
    for p in range(5):
        o += [I(f"v_add_u32 v2, {64*p}, v1"), I("v_mul_u32_u24 v3, 3277, v2"), I("v_lshrrev_b32 v3, 16, v3"),
              I("v_mul_u32_u24 v4, 20, v3"), I("v_sub_u32 v2, v2, v4"), I("v_cmp_gt_u32 vcc, 18, v2"),
              I("v_lshl_add_u32 v2, v2, 4, s47"),
              I(f"v_mad_u32_u24 v2, v3, v7, v2"), I(f"v_cndmask_b32 v{VG+p}, v5, v2, vcc")]
        if 0 < p < 4: o.append(I(f"v_subrev_u32 v{VG+p}, {1024*p}, v{VG+p}"))
    o += [
         I("s_mul_i32 s43, s32, 5120"),
         I("s_mov_b32 s40, s43"), I(f"s_add_u32 s41, s42, {CH*c0}")]
    o += [Ins(x.text, "KV0") for x in dma_chunk()]
    o += [I("s_lshl_b32 s53, s2, 2"), I("s_add_u32 s53, s53, s32"), I("s_mul_i32 s53, s53, 10240"), I(f"s_add_u32 s53, s53, {WS_ST}"),
          I("s_add_u32 s54, s53, 8192")]
    if part == 1:
        o += [I("s_lshl_b32 s46, s31, 2"), I("s_add_u32 s46, s46, s32"), I(f"s_mul_i32 s47, s46, {8*QROW}"),
              I("s_mul_i32 s33, s32, 3072"), I(f"s_add_u32 s33, s33, {L_Q}"), I("s_mov_b32 m0, s33")]
        for p in range(3): o.append(I(f"buffer_load_dwordx4 v{VG+p}, s[8:11], s47 offen offset:{1024*p} lds", tag="Q"))
    else:
        for i, r in enumerate(state_regs()):
            o.append(I(f"buffer_load_dwordx4 v[{r}:{r+3}], v{VD4 if 4 <= i < 8 else VD}, s[8:11], {'s54' if i >= 8 else 's53'} offen offset:{1024*(i%4)}"))
    TRI = (part == 1 and 'notri' not in EXP)
    tri = []
    for c in (1, 2): tri += [I(f"s_add_u32 s40, s43, {SLOTB*c}"), I(f"s_add_u32 s41, s42, {CH*(c0+c)}")] + dma_chunk()
    if TRI and 'trilate' not in EXP: o += tri; tri = []
    o += stamp(4)
    o += [I("v_bfe_u32 v2, v1, 4, 1"), I("v_lshlrev_b32 v2, 1, v2"),
          I("v_and_b32 v3, 1, v1"), I("v_add_u32 v3, v2, v3"), I("v_mul_u32_u24 v3, 320, v3"),
          I("v_bfe_u32 v4, v1, 1, 1"), I("v_lshl_add_u32 v3, v4, 3, v3"),
          I("v_bfe_u32 v5, v1, 2, 2"), I("v_lshlrev_b32 v5, 4, v5"),
          I("v_lshrrev_b32 v6, 5, v1"),
          I(f"v_add_u32 v{LKB}, v3, v5"), I(f"v_lshl_add_u32 v{LKA}, v6, 7, v{LKB}"), I(f"v_add_u32 v{LKB}, 256, v{LKB}"),
          I("v_mul_u32_u24 v7, 320, v6"), I("v_and_b32 v8, 31, v1"), I("v_lshl_add_u32 v7, v8, 4, v7"), I(f"v_add_u32 v{LVA}, 10240, v7"),
          I("v_cmp_gt_u32 s[44:45], 32, v1"),
          I("s_mov_b32 s56, 0xfffff"), I("s_mov_b32 s57, 0xfffff")]
    for b in range(2):
        o += [I(f"v_mov_b32 v{KF+8*b+6}, 0x3f80"), I(f"v_mov_b32 v{KF+8*b+7}, 0")]
    for r in range(16): o.append(I(f"v_mov_b32 v{VF+r}, 0"))
    nxt = [I(f"s_add_u32 s40, s43, {SLOTB}"), I(f"s_add_u32 s41, s42, {CH*(c0+1)}")] + dma_chunk()
    if TRI: nxt = tri
    if part == 1:
        o += [I("v_add_u32 v2, v2, v4"), I("v_mul_u32_u24 v2, 320, v2"), I("v_and_b32 v3, 1, v1"), I("v_lshl_add_u32 v2, v3, 3, v2"),
              I(f"v_add3_u32 v{T0}, v2, v5, s33"), I(f"v_lshl_add_u32 v{T0+1}, v6, 7, v{T0}")]
        o += [I("s_load_dwordx2 s[36:37], s[0:1], 16"), I("s_load_dwordx2 s[38:39], s[0:1], 56"),
              ] + ([I("v_and_b32 v228, 15, v1"), I("v_lshlrev_b32 v228, 6, v228"), I("v_lshrrev_b32 v229, 4, v1"), I("v_lshl_add_u32 v228, v229, 12, v228"),
              I("v_mov_b32 v229, 0x7f000000"), I("v_cndmask_b32 v228, v229, v228, s[44:45]"), I("v_lshlrev_b32 v227, 6, v1")] if 't64' in EXP else
              [I("v_and_b32 v228, 7, v1"), I("v_lshlrev_b32 v228, 7, v228"), I("v_lshrrev_b32 v229, 3, v1"), I("v_lshl_add_u32 v228, v229, 12, v228"),
              I("v_mov_b32 v229, 0x7f000000"), I("v_cmp_gt_u32 vcc, 16, v1"), I("v_cndmask_b32 v228, v229, v228, vcc"),
              I("v_lshlrev_b32 v227, 7, v1"), I("v_cndmask_b32 v227, v229, v227, s[44:45]")]) + [
              I("s_lshl_b32 s51, s2, 2"), I("s_add_u32 s51, s51, s32"), I("s_lshl_b32 s52, s51, 13"),
              I("s_mov_b32 s16, s24"), I("s_mov_b32 s17, s25"), I(f"s_mov_b32 s18, {2048*4096}"), I("s_mov_b32 s19, 0x00020000"),
              I("s_sub_u32 s50, s51, 648"), I(f"s_mov_b32 s22, {576*1152}"), I("s_mov_b32 s23, 0x00020000"), I("s_waitcnt lgkmcnt(0)"),
              I("s_cmp_lt_u32 s51, 648"), I("s_cselect_b32 s20, s38, s36"), I("s_cselect_b32 s21, s39, s37"), I(f"s_cselect_b32 s22, {2304*1152}, s22"),
              I("s_cselect_b32 s50, s51, s50"), I("s_lshl_b32 s50, s50, 12")]
        for q in range(2): o += [I(f"v_mov_b32 v{QF+8*q+6}, 0"), I(f"v_mov_b32 v{QF+8*q+7}, 0")]
        for r in range(32): o.append(I(f"v_mov_b32 v{OO+r}, 0"))
        o += [I(f"v_mov_b32 v{VKA}, v{LKA}"), I(f"v_mov_b32 v{VKB}, v{LKB}"), WAITVM("Q")]
        for q in range(2):
            o += [I(f"ds_read_b64_tr_b16 v[{QF+8*q}:{QF+8*q+1}], v{T0+1} offset:{1280*q}"),
                  I(f"ds_read_b64_tr_b16 v[{QF+8*q+2}:{QF+8*q+3}], v{T0+1} offset:{1280*q+64}"),
                  I(f"ds_read_b64_tr_b16 v[{QF+8*q+4}:{QF+8*q+5}], v{T0} offset:{1280*q+256}")]
        o += [I("s_barrier")] + k_reads(0) + nxt
        for q in range(2):
            o += [I(f"v_cndmask_b32 v{QF+8*q+4}, 0, v{QF+8*q+4}, s[44:45]"), I(f"v_mov_b32 v{QF+8*q+5}, 0")]
        o += qk(0, 0) + qk(0, 1)
        o += max16(T0, S(0, 0), True) + max16(T0+1, S(0, 1), True) + xhalf_max(T0, T0+2) + xhalf_max(T0+1, T0+3)
        o += set_m(T0, 0, T0+4) + set_m(T0+1, 1, T0+8) + [I("s_mov_b32 s34, 0")]
    else:
        o += [I("s_lshl_b32 s46, s31, 2"), I("s_add_u32 s46, s46, s32"), I("s_lshl_b32 s47, s46, 8"), I(f"s_add_u32 s47, s47, {WS_G}"),
              I("v_lshlrev_b32 v3, 2, v8"),
              I("buffer_load_dword v230, v3, s[8:11], s47 offen"), I("buffer_load_dword v231, v3, s[8:11], s47 offen offset:128")]
        o += epi_addr()
        for q in range(2):
            for r in range(12, 16): o.append(I(f"v_mov_b32 v{OO+16*q+r}, 0"))
        o += [I("s_mov_b32 s34, 0"), WAITVM("KV0"), I("s_barrier")] + nxt + [I("s_waitcnt vmcnt(7)")]
    lo = c0 + (1 if TRI else 0)
    o += [I(f"s_mov_b32 s55, {lo}"), I(f"s_mov_b32 s58, {max(0, cend - 2 - lo)}")]
    o += [I(f"s_mov_b32 s35, {c0}"), I(f"s_add_u32 s41, s42, {CH*(c0+2)}"), I(f"s_setprio {PRIO_A[part]}"), I("s_nop 1"), RAW(f"{P}_main:")]
    a, st = finalize(o)
    txt = text_of(a) + "\n"
    o = [I(f"v_mov_b32 v{VKA}, v{LKA}"), I(f"v_mov_b32 v{VKB}, v{LKB}"), I(f"v_mov_b32 v{VVA}, v{LVA}")]
    o += k_reads(0) + k_reads(1) + [I("s_mov_b64 exec, s[56:57]")] + v_reads(0) + [I("s_mov_b64 exec, -1")]
    o += [I(f"v_add_u32 v{NKA}, {SLOTB}, v{LKA}"), I(f"v_add_u32 v{NKB}, {SLOTB}, v{LKB}"), I(f"v_add_u32 v{NVA}, {SLOTB}, v{LVA}"),
          I(f"s_mov_b32 s36, {2*SLOTB}")]
    for r in range(4): o += [I(f"v_mov_b32 v{PP+12+r}, 0"), I(f"v_mov_b32 v{VF+12+r}, 0")]
    o += stamp(2) + qk(0, 0) + qk(0, 1)
    o += [I("s_nop 7"), RAW(f"{P}_loop:")]
    a, st = finalize(o, st)
    txt += text_of(a) + "\n"
    body = []
    if STAMPS and 'cst' in EXP:
        body += [I(f"s_mov_b32 s{SB+2*(5+i)}, s{SB+2*(6+i)}") for i in range(7)] + stamp(12) + [I("s_waitcnt lgkmcnt(0)")]
    for kt in range(8):
        V, M, R = tile_body(kt)
        X = {0: [I("s_waitcnt lgkmcnt(0)"), R[0]], 1: [R[1]], 2: [R[2]],
             3: [I("s_mov_b64 exec, s[56:57]"), R[3], R[4], I("s_mov_b64 exec, -1")]}
        if 'novmask' in EXP: X[3] = [R[3], R[4]]
        if kt == 4:
            X[6] = [I("s_waitcnt vmcnt(0)")]
            X[7] = [I("s_barrier")]
        def gd(i, txt): return RAW(f"    s_cbranch_scc1 {P}_nd{i}\n    {txt}\n{P}_nd{i}:")
        if kt == 4:
            X[4] = [I("s_add_u32 s40, s43, s36")]
            X[5] = [I("s_add_u32 s59, s40, 4096")]
        if kt == 5:
            X[4] = [I("s_sub_u32 s37, s35, s55")]
            X[5] = [I("s_cmp_ge_u32 s37, s58"), I("s_mov_b32 m0, s40")]
            X[6] = [gd(0, f"buffer_load_dwordx4 v{VG+0}, s[8:11], s41 offen lds")]
            X[7] = [gd(1, f"buffer_load_dwordx4 v{VG+1}, s[8:11], s41 offen offset:1024 lds")]
        if kt == 6:
            X[4] = [gd(2, f"buffer_load_dwordx4 v{VG+2}, s[8:11], s41 offen offset:2048 lds")]
            X[5] = [gd(3, f"buffer_load_dwordx4 v{VG+3}, s[8:11], s41 offen offset:3072 lds")]
            X[6] = [I("s_mov_b32 m0, s59")]
            X[7] = [gd(4, f"buffer_load_dwordx4 v{VG+4}, s[8:11], s41 offen lds")]
        if kt == 1 and part == 1 and 'notouch' not in EXP:
            X[4] = [I("s_sub_u32 s37, s35, 1")]
            X[5] = [I("s_cmp_ge_u32 s37, 3")]
            X[6] = [RAW(f"    s_cbranch_scc1 {P}_nt0\n    buffer_load_dword v229, v228, s[16:19], s52 offen\n{P}_nt0:")]
            X[7] = [I("s_add_u32 s52, s52, 1024")]
        if kt == 2 and part == 1 and 'notouch' not in EXP:
            X[5] = [I("s_cmp_lg_u32 s35, 2")]
            X[6] = [RAW(f"    s_cbranch_scc1 {P}_nt1\n    buffer_load_dword v229, v227, s[20:23], s50 offen\n{P}_nt1:")]
        if kt == 7:
            X[4] = [I(f"s_add_u32 s41, s41, {CH}"), I(f"v_mov_b32 v{VKA}, v{NKA}"), I(f"v_mov_b32 v{VKB}, v{NKB}"), I(f"v_mov_b32 v{VVA}, v{NVA}"),
                    I(f"v_add_u32 v{NKA}, s36, v{LKA}"), I(f"v_add_u32 v{NKB}, s36, v{LKB}"), I(f"v_add_u32 v{NVA}, s36, v{LVA}")]
            X[5] = [I(f"s_add_u32 s36, s36, {SLOTB}"), I(f"s_cmp_eq_u32 s36, {3*SLOTB}")]
            X[6] = [I("s_cselect_b32 s36, 0, s36"), I("s_add_u32 s35, s35, 1")]
            X[7] = [I(f"s_cmp_lt_u32 s35, {cend}")]
        for i in range(8):
            body += V[6*i:6*i+2] + [M[i]] + X.get(i, []) + V[6*i+2:6*i+6]
    body += [I(f"s_cbranch_scc1 {P}_loop")]
    a, st = finalize_loop(body, st)
    txt += text_of(a) + "\n"
    o = [I("s_nop 0"), pv(7, 1, 1)] + stamp(3)
    if FULL:
        o += [I("s_lshl_b32 s46, s31, 2"), I("s_add_u32 s46, s46, s32")] + epi_addr()
    if part == 1 and not FULL:
        for i, r in enumerate(state_regs()):
            o.append(I(f"buffer_store_dwordx4 v[{r}:{r+3}], v{VD4 if 4 <= i < 8 else VD}, s[8:11], {'s54' if i >= 8 else 's53'} offen offset:{1024*(i%4)}"))
        o += [I("s_setprio 0")] + wf_loads() + wf_store()
        if 'nocp2' not in EXP: o += [RAW(code_prefetch("k34_out_kernel", 3072, 32, 1, 2, 46))]
        o.append(I("s_endpgm"))
        a, _ = finalize(o, st)
        return txt + text_of(a) + "\n"
    o += [I("s_setprio 3")]
    for q in range(2):
        O = OO + 16*q; t = T0 + 8 + 16*q
        o += [I(f"v_mov_b32 v{t}, v{O+10}"), I(f"v_mov_b32 v{t+1}, v{O+10}"),
              I(f"v_add_f32 v{T0+q}, abs(v{O}), abs(v{O+1})")]
        o.append(I(f"v_permlane32_swap_b32 v{t}, v{t+1}"))
        for r in range(2, 11): o.append(I(f"v_add_f32 v{T0+q}, v{T0+q}, abs(v{O+r})"))
        o += [I(f"v_rcp_f32 v{t}, v{t}")] + ([] if FULL else [I(f"v_mul_f32 v{t}, v{t}, v{230+q}")])
        for r in range(10): o.append(I(f"v_mul_f32 v{O+r}, v{O+r}, v{t}"))
        for r in range(5): o.append(I(f"v_cvt_pk_bf16_f32 v{t+4+r}, v{O+2*r}, v{O+2*r+1}"))
        o.append(I(f"buffer_store_dwordx4 v[{t+4}:{t+7}], v233, s[8:11], s{59+q} offen sc1" if False else f"buffer_store_dwordx4 v[{t+4}:{t+7}], v{233+2*q}, s[8:11], s50 offen sc1"))
        o += [I("s_mov_b64 exec, s[44:45]"), I(f"buffer_store_dword v{t+8}, v{232+2*q}, s[8:11], s51 offen" + ("" if FULL else " sc1")), I("s_mov_b64 exec, -1")]
    o += [I(f"v_add_f32 v{T0}, v{T0}, v{T0+1}"), I(f"v_mov_b32 v{T0+2}, {f32(2.0**100)}"),
          I(f"v_cmp_nlt_f32 vcc, v{T0}, v{T0+2}"), I("s_cmp_lg_u64 vcc, 0"), I("s_cselect_b32 s48, 1, 0"),
          I(f"v_mov_b32 v{T0+3}, s48"), I("s_lshl_b32 s49, s32, 2"), I("v_mov_b32 v4, s49"),
          I(f"ds_write_b32 v4, v{T0+3} offset:{L_MISC+256}"),
          I("s_lshl_b32 s46, s31, 7"), I(f"s_add_u32 s46, s46, {WS_CNT2}"), I("s_lshl_b32 s47, s31, 12"), I(f"s_add_u32 s47, s47, {WS_FLG2}"),
          I("v_mov_b32 v2, 0"), I("v_mov_b32 v3, 1"), I("v_mov_b32 v5, 1"), I("v_lshlrev_b32 v4, 7, v1"),
          I("s_waitcnt vmcnt(0) lgkmcnt(0)"), I("s_barrier"),
          I(f"ds_read_b128 v[{T0+4}:{T0+7}], v2 offset:{L_MISC+256}"),
          I(f"v_or3_b32 v{T0+4}, v{T0+4}, v{T0+5}, v{T0+6}"), I(f"v_or_b32 v{T0+4}, v{T0+4}, v{T0+7}"),
          I(f"v_readfirstlane_b32 s48, v{T0+4}"),
          I("s_andn2_b32 s48, s48, s34"), I("s_cmp_lg_u32 s48, 0"), I(f"s_cbranch_scc1 {P}_fallback")]
    if FULL:
        if 'wfb' not in EXP: o += [I("s_setprio 0")] + wf_loads() + wf_store()
        if 'nocp2' not in EXP: o += [RAW(code_prefetch("k4_out_kernel", 1024, 32, 1, 2, 46))]
    elif DIRECT:
        o += [RAW(f"    s_cmp_lg_u32 s32, 0\n    s_cbranch_scc1 {P}_done\n    s_mov_b32 exec_hi, 0\n    buffer_atomic_add v5, v4, s[8:11], s47 offen sc1\n{P}_done:")]
    else:
        o += [RAW(f"    s_cmp_lg_u32 s32, 0\n    s_cbranch_scc1 {P}_done\n    s_mov_b64 exec, 1\n    buffer_atomic_add v3, v2, s[8:11], s46 offen sc0 sc1\n    s_waitcnt vmcnt(0)\n"
              f"    v_readfirstlane_b32 s48, v3\n    s_cmp_lg_u32 s48, 31\n    s_cbranch_scc1 {P}_done\n    s_mov_b32 exec_lo, -1\n"
              f"    buffer_store_dword v5, v4, s[8:11], s47 offen sc1\n{P}_done:")]
    o += [I("s_endpgm")]
    a, _ = finalize(o, st)
    txt += text_of(a) + "\n"
    o = [RAW(f"{P}_fallback:"), I("s_waitcnt vmcnt(0) lgkmcnt(0)"), I("s_nop 15"),
         I("s_mov_b32 s18, 0"), I("s_mov_b32 s22, 0"), I("s_mov_b32 s34, 1"), I("s_mov_b32 s35, 0"), I("s_mov_b32 s41, s42"), I("s_mov_b32 s40, s43"),
         I(f"v_mov_b32 v{T0}, 0xff7fffff"), I(f"v_mov_b32 v{T0+1}, 0xff7fffff")]
    for q in range(2): o += [I(f"v_mov_b32 v{QF+8*q+5}, 0"), I(f"v_mov_b32 v{QF+8*q+6}, 0")]
    o += [RAW(f"{P}_fb_chunk:"), I("s_barrier")] + dma_chunk() + [I("s_waitcnt vmcnt(0)"), I("s_barrier"),
          I(f"v_mov_b32 v{VKA}, v{LKA}"), I(f"v_mov_b32 v{VKB}, v{LKB}"), I("s_mov_b32 s36, 0"), RAW(f"{P}_fb_tile:")]
    o += k_reads(0) + qk(0, 0) + qk(0, 1) + max16(T0, S(0, 0)) + max16(T0+1, S(0, 1))
    o += [I(f"v_add_u32 v{VKA}, 1280, v{VKA}"), I(f"v_add_u32 v{VKB}, 1280, v{VKB}"),
          I("s_add_u32 s36, s36, 1"), I("s_cmp_lt_u32 s36, 8"), I(f"s_cbranch_scc1 {P}_fb_tile"),
          I(f"s_add_u32 s41, s41, {CH}"), I("s_add_u32 s35, s35, 1"), I("s_cmp_lt_u32 s35, 8"), I(f"s_cbranch_scc1 {P}_fb_chunk")]
    o += xhalf_max(T0, T0+2) + xhalf_max(T0+1, T0+3) + set_m(T0, 0, T0+4) + set_m(T0+1, 1, T0+8)
    for r in range(32): o.append(I(f"v_mov_b32 v{OO+r}, 0"))
    o += [I("s_barrier"), I("s_mov_b32 s41, s42")] + dma_chunk()
    o += [I(f"s_add_u32 s40, s43, {SLOTB}"), I(f"s_add_u32 s41, s42, {CH}")] + dma_chunk()
    o += [I("s_mov_b32 s55, 0"), I("s_mov_b32 s58, 6"), I("s_mov_b32 s35, 0"), I(f"s_add_u32 s41, s42, {2*CH}"), I("s_waitcnt vmcnt(0)"), I("s_barrier"), I("s_nop 7"), I(f"s_branch {P}_main")]
    a, _ = finalize(o)
    txt += text_of(a) + "\n"
    return txt
```

```python
from common import *
EXP = os.environ.get('EXP', '').split(',')
LDS_BYTES = 61440
ACC = 16
BUF = 96
VA = 4
VW = 8; VW4 = 9
MAP = os.environ.get('K4MAP', '4x8')

ROT = int(os.environ.get('K4ROT', '0'))
NEXT = ("    s_add_u32 s36, s36, 4\n    s_sub_u32 s37, s36, 92\n    s_cmp_ge_u32 s36, 92\n    s_cselect_b32 s36, s37, s36\n"
        "    s_lshl_b32 s40, s36, 10\n    s_add_u32 s40, s40, s42\n    s_mul_i32 s41, s36, 5120\n    s_add_u32 s41, s41, s43\n"
        "    s_cmp_lt_u32 s36, 90\n    s_cselect_b32 s40, s40, 0x7f000000\n    s_cselect_b32 s41, s41, 0x7f000000")
def loads(b):
    r = BUF + 36*b
    o = []
    for i in range(4):
        o.append(I(f"buffer_load_dwordx4 v[{r+4*i}:{r+4*i+3}], v{VA+i}, s[8:11], s40 offen"))
        o.append(I(f"buffer_load_dwordx4 v[{r+16+4*i}:{r+19+4*i}], v{VW}, s[8:11], s41 offen offset:{1024*i}"))
    if 'k4now4' not in EXP: o.append(I(f"buffer_load_dwordx4 v[{r+32}:{r+35}], v{VW4}, s[8:11], s41 offen"))
    if 'k4noact' in EXP: o = [x for x in o if 's40' not in x.text]
    if 'k4now' in EXP: o = [x for x in o if 's41' not in x.text]
    if ROT: o.append(Ins(pseudo='raw', arg=NEXT))
    else: o += [I("s_add_u32 s40, s40, 4096"), I("s_add_u32 s41, s41, 20480")]
    return o
def mfmas(b, zero=False):
    r = BUF + 36*b
    if 'k4nomfma' in EXP: return [I(f"v_mov_b32 v{ACC+4*k}, v{r+4*(k%9)}") for k in range(20)]
    order = sorted([(n, t) for n in range(5) for t in range(4)], key=lambda x: (max(x), x))
    return [I(f"v_mfma_f32_16x16x32_bf16 v[{ACC+16*n+4*t}:{ACC+16*n+4*t+3}], v[{r+16+4*n}:{r+19+4*n}], v[{r+4*t}:{r+4*t+3}], " + ("0" if zero else f"v[{ACC+16*n+4*t}:{ACC+16*n+4*t+3}]"))
            for n, t in order]

def build():
    HALF = 'k4half' in EXP
    o = [RAW("    s_cmp_ge_u32 s2, 256\n    s_cbranch_scc1 K4_exit" if not HALF else "    s_lshr_b32 s59, s2, 8\n    s_and_b32 s2, s2, 255"),
         I("s_load_dwordx2 s[4:5], s[0:1], 88"), I("s_load_dwordx2 s[6:7], s[0:1], 72"),
         I("v_and_b32 v1, 63, v0"), I("v_lshrrev_b32 v2, 6, v0"), I(f"v_lshlrev_b32 v{VW}, 4, v1"), I("v_readfirstlane_b32 s32, v2")]
    if MAP == '8x4':
        o += [I("s_bfe_u32 s30, s2, 0x20001"), I("s_lshl_b32 s30, s30, 3"), I("s_bfe_u32 s46, s2, 0x30003"), I("s_add_u32 s30, s30, s46"),
              I("s_and_b32 s31, s2, 1"), I("s_lshl_b32 s31, s31, 2"), I("s_lshr_b32 s46, s2, 6"), I("s_add_u32 s31, s31, s46")]
    else:
        o += [I("s_and_b32 s30, s2, 7"), I("s_lshl_b32 s30, s30, 2"), I("s_lshr_b32 s46, s2, 6"), I("s_add_u32 s30, s30, s46"),
              I("s_bfe_u32 s31, s2, 0x30003")]
    if 'k4same' in EXP: o += [I("s_mov_b32 s30, 0"), I("s_mov_b32 s31, 0")]
    if 'k4samer' in EXP: o += [I("s_mov_b32 s30, 0")]
    if 'k4samec' in EXP: o += [I("s_mov_b32 s31, 0")]
    o += [I(f"s_mul_i32 s40, s30, {4*92160}"), I("s_lshl_b32 s46, s32, 10"), I("s_add_u32 s40, s40, s46"), I(f"s_add_u32 s40, s40, {WS_ACT}"),
          I(f"s_mul_i32 s41, s31, {450*1024}"), I("s_mul_i32 s46, s32, 5120"), I("s_add_u32 s41, s41, s46"), I(f"s_add_u32 s41, s41, {WS_WF}")]
    if ROT:
        o += [I(f"s_mul_i32 s42, s30, {4*92160}"), I(f"s_add_u32 s42, s42, {WS_ACT}"), I(f"s_mul_i32 s43, s31, {450*1024}"), I(f"s_add_u32 s43, s43, {WS_WF}"),
              I("s_and_b32 s36, s30, 3"), I(f"s_mul_i32 s36, s36, {max(1, ROT//4)}"), I("s_add_u32 s36, s36, s31"), I(f"s_and_b32 s36, s36, {ROT-1}"),
              I("s_mul_i32 s36, s36, 23"), I(f"s_lshr_b32 s36, s36, {ROT.bit_length()-1}"), I("s_lshl_b32 s36, s36, 2"), I("s_add_u32 s36, s36, s32"),
              I("s_sub_u32 s36, s36, 4"), RAW(NEXT)]
    if HALF: o += [I("s_mul_i32 s46, s59, 45056"), I("s_add_u32 s40, s40, s46"), I("s_mul_i32 s46, s59, 225280"), I("s_add_u32 s41, s41, s46")]
    for i in range(4):
        o += [I(f"s_add_u32 s46, s32, {i}"), I("s_and_b32 s46, s46, 3"), I(f"s_mul_i32 s{50+i}, s46, 15360"), I("s_mul_i32 s46, s46, 92160"), I(f"v_add_u32 v{VA+i}, s46, v{VW}")]
    o += [I("v_bfe_u32 v2, v1, 3, 1"), I("v_lshlrev_b32 v2, 30, v2"), I(f"v_add_u32 v{VW4}, v{VW}, v2"), I(f"v_add_u32 v{VW4}, 4096, v{VW4}"),
          I("s_waitcnt lgkmcnt(0)")]
    o += srd(8, 4, 5, WS_USED)
    o += loads(0) + loads(1) + loads(2)
    o += srd(12, 6, 7, 2048*1152)
    for i in range(1, 4): o.append(I(f"v_add_u32 v{9+i}, s{50+i}, v{VW}"))
    o += [I(f"v_add_u32 v13, s50, v{VW}"),
          I("v_and_b32 v2, 15, v1"), I("v_mul_u32_u24 v2, 1152, v2"), I("v_lshrrev_b32 v3, 4, v1"), I("v_lshl_add_u32 v14, v3, 4, v2"), I("v_lshl_add_u32 v15, v3, 3, v2"),
          I("s_lshl_b32 s46, s30, 2"), I("s_add_u32 s46, s46, s32"), I(f"s_mul_i32 s46, s46, {16*1152}"), I("s_mul_i32 s47, s31, 144"), I("s_add_u32 s46, s46, s47"),
          I("s_mov_b32 s35, 0")] + stamp(2)
    gl = [I("v_and_b32 v2, 15, v1"), I("v_lshlrev_b32 v2, 2, v2"), I("s_lshl_b32 s47, s30, 8"), I(f"s_add_u32 s47, s47, {WS_G}")]
    for i in range(4):
        gl += [I(f"s_add_u32 s48, s32, {i}"), I("s_and_b32 s48, s48, 3"), I("s_lshl_b32 s48, s48, 6"), I("s_add_u32 s48, s48, s47"),
               I(f"buffer_load_dword v{240+i}, v2, s[8:11], s48 offen")]
    o += gl
    def scale(first):
        x = [I("s_cmp_lt_u32 s32, 2"), I("s_cselect_b64 vcc, -1, 0" if not first else "s_cselect_b64 vcc, 0, -1")]
        x += [I(f"v_cndmask_b32 v{244+i}, 1.0, v{240+i}, vcc") for i in range(4)]
        x += [I(f"v_mul_f32 v{ACC+16*n+4*i+r}, v{ACC+16*n+4*i+r}, v{244+i}") for n in range(5) for i in range(4) for r in range(4)]
        return x
    o += merge(mfmas(0, True), loads(3), start=1, end=14)
    for b in (1, 2, 3): o += merge(mfmas(b), loads((b + 3) % 4), start=1, end=14)
    o += scale(True) + merge(mfmas(0), loads(3), start=1, end=14) + scale(False)
    o += [RAW("K4_loop:")]
    a, st = finalize(o); txt = text_of(a) + "\n"
    body = []
    for b in (1, 2, 3, 0):
        body += merge(mfmas(b), loads((b + 3) % 4), start=1, end=14)
    body += [I("s_add_u32 s35, s35, 1"), I("s_cmp_lt_u32 s35, 3" if not HALF else "s_cmp_lt_u32 s35, 1"), I("s_cbranch_scc1 K4_loop")]
    a, st = finalize_loop(body, st); txt += text_of(a) + "\n"
    o = merge(mfmas(1), loads(0), start=1, end=14) + merge(mfmas(2), loads(1), start=1, end=14)
    if not ROT: o += [I("s_cmp_lt_u32 s32, 2"), I("s_cselect_b32 s40, s40, 0x7f000000"), I("s_cselect_b32 s41, s41, 0x7f000000")]
    o += merge(mfmas(3), loads(2), start=1, end=14) + mfmas(0) + mfmas(1)
    last = mfmas(2)
    last.sort(key=lambda x: ((x.wr[0][1] - ACC) % 16 == 0))
    wr = [I(f"ds_write_b128 v{9+i}, v[{ACC+16*n+4*i}:{ACC+16*n+4*i+3}] offset:{5120*(i-1) + 1024*n}") for n in range(5) for i in range(1, 4)]
    wr.sort(key=lambda w: next(k for k, m in enumerate(last) if m.wr[0] == w.rd[1]))
    o += last[:8]
    for k, m in enumerate(last[8:]): o += [m, wr[k]]
    o += wr[12:]
    o += stamp(3) + [WAITDS(), I("s_barrier")]
    for n in range(5):
        for i in range(3):
            r = BUF + 12*n + 4*i
            o.append(I(f"ds_read_b128 v[{r}:{r+3}], v13 offset:{5120*i + 1024*n}"))
    P = BUF + 64
    for n in range(5):
        r = BUF + 12*n; a_ = ACC + 16*n
        for j in range(4): o.append(I(f"v_add_f32 v{a_+j}, v{a_+j}, v{r+j}"))
        for j in range(4): o.append(I(f"v_add_f32 v{r+4+j}, v{r+4+j}, v{r+8+j}"))
        for j in range(4): o.append(I(f"v_add_f32 v{a_+j}, v{a_+j}, v{r+4+j}"))
        o += [I(f"v_cvt_pk_bf16_f32 v{P+2*n}, v{a_}, v{a_+1}"), I(f"v_cvt_pk_bf16_f32 v{P+2*n+1}, v{a_+2}, v{a_+3}")]
        if n in (1, 3): o.append(I(f"buffer_store_dwordx4 v[{P+2*n-2}:{P+2*n+1}], v14, s[12:15], s46 offen offset:{32*(n-1)}"))
        if n == 4: o += [I("s_mov_b32 exec_hi, 0"), I(f"buffer_store_dwordx2 v[{P+8}:{P+9}], v15, s[12:15], s46 offen offset:128")]
    a, st = finalize(o, st); txt += text_of(a) + "\nK4_exit:\n"
    return kernel_text("k4_out_kernel", txt, 248, kidx=2)

def launch(): return ("k4_out_kernel", 512 if 'k4half' in EXP else 256, 256, LDS_BYTES, build())
```

```python
import sys, importlib
from common import *
HEADER = open("cdna_kernels/%s.s.ref" % NAME).read().split("; Override launch geometry")[0]
def build(kernels, path):
    txt = HEADER
    for name, grid, block, lds, _ in kernels:
        txt += f"; @launch kernel={name} grid=({grid},1,1) block=({block},1,1) lds={lds}\n"
    txt += '.amdgcn_target "amdgcn-amd-amdhsa--gfx950"\n'
    seen = set()
    for name, _, _, _, code in kernels:
        if name in seen: continue
        seen.add(name); txt += code
    fl = os.environ.get("STFLAG", "sc1")
    which = os.environ.get("STK", "k1_,k23_").split(",")
    out = []; cur = ""
    for line in txt.split("\n"):
        if line.endswith("_kernel:"): cur = line
        if line.startswith("KC_start:"): cur = "plain"
        if line.startswith("K1_LT:") and os.environ.get("LPLAIN", "0") == "1": cur = "plain"
        if fl and "buffer_store_dwordx4" in line and " sc1" not in line and any(cur.startswith(w) for w in which): line += " " + fl
        al = os.environ.get("ALIGN", "")
        for lab, spec in zip(("A1_loop:", "KB_loop:", "K4_loop:" if not MERGE else "KC_loop:"), al.split(",")):
            if line == lab and spec != "":
                out.append("    .p2align 6, , 60" if False else "    .p2alignl 6, 0xbf800000")
                out += ["    s_nop 0"] * int(spec)
        out.append(line)
    open(path, "w").write("\n".join(out))
if __name__ == "__main__":
    import k23, k34
    k1 = importlib.import_module(os.environ.get('K1MOD', 'k1'))
    import k4
    ks = [k1.launch(), k23.launch(), k34.launch() if os.environ.get('NC1', '8') != '8' else k4.launch()]
    if MERGE: ks = ks[:2]
    out = sys.argv[1] if len(sys.argv) > 1 else "cdna_kernels/%s.s" % NAME
    build(ks, out)
```

```python
from common import *
import k2
from k2 import (S, k_reads, v_reads, qk, pv, softmax_half, dma_chunk, set_m, max16, xhalf_max, dpp_reduce,
                SLOTB, L_Q, L_MISC, QF, KF, VF, SS, PP, OO, VKA, VKB, VVA, NKA, NKB, NVA, LKA, LKB, LVA, VD, VD4, T0)
EXP = os.environ.get('EXP', '').split(',')
LDS_BYTES = 74240
PRIO_A = int(os.environ.get('PRIO_A', '2')); PRIO_B = int(os.environ.get('PRIO_B', '0'))

import attn
def role_a(): return attn.role_a(1)

ZG = 2432; ZSLOT = 4*ZG; ZBASE = 32768
ACC = 16
ZF = [88, 124]
WFr = [160, 176]
Z1P = 192
VA = 228
VZ = 232
RB = 233
RA = 235
VT = 236
TB = 238
VX1 = 244
VA1 = 248
RT1 = 251; RT8 = 252
VP = 253
LB_MISC = 71680
BURST = int(os.environ.get('BURST', '0'))
def accr(T, tt): return ACC + 16*(T >> 1) + 8*tt + 4*(T & 1) if T < 8 else ACC + 64 + 4*tt

def dma_rows(slot, vo, srdn, so):
    g = [[I(f"s_add_u32 m0, s40, {slot*16384}")]]
    for p in range(4): g.append([I(f"buffer_load_dwordx4 v{vo+p}, {srdn}, {so} offen offset:{1024*p} lds", tag=f"W{slot}")])
    g[-1].append(I(f"s_add_u32 {so}, {so}, 128"))
    return g
def gdma_w(slot): return dma_rows(slot, VA, "s[12:15]", "s42")
def pdma_x(slot): return dma_rows(slot, VX1, "s[36:39]", "s34")
def dma_img(slot, vos, srdn, so, step, fl):
    return [[I(f"s_add_u32 m0, s41, {slot*ZSLOT}")],
            [I(f"buffer_load_dwordx4 v{vos[0]}, {srdn}, {so} offen{fl} lds", tag=f"D{slot}")],
            [I(f"buffer_load_dwordx4 v{vos[1]}, {srdn}, {so} offen offset:1024{fl} lds", tag=f"D{slot}")],
            [I("s_mov_b64 exec, 0xffff"), I(f"buffer_load_dwordx4 v{vos[2]}, {srdn}, {so} offen offset:2048{fl} lds", tag=f"D{slot}"), I("s_mov_b64 exec, -1"),
             I(f"s_add_u32 {so}, {so}, {step}")]]
def gdma_z(slot): return dma_img(slot, [VZ]*3, "s[8:11]", "s43", 4*36864, " sc1")
def pdma_a(slot): return dma_img(slot, [VA1, VA1+1, VA1+2], "s[20:23]", "s49", 32*9216, "")
if 'p1lin' in EXP:
    def pdma_a(slot): return dma_img(slot, [VZ]*3, "s[20:23]", "s49", 9216, "")
def flat(g): return [x for l in g for x in l]
def areads(slot, st_, tr):
    z = ZF[st_]
    if not tr: return [I(f"ds_read_b128 v[{z+4*i}:{z+4*i+3}], v{RA if i < 8 else RT8} offset:{slot*ZSLOT + (512*(i>>1) + 128*(i&1) if i < 8 else 0)}") for i in range(9)]
    o = []
    for T in range(9):
        for h in range(2):
            if T < 8: o.append(I(f"ds_read_b64_tr_b16 v[{z+4*T+2*h}:{z+4*T+2*h+1}], v{RT1} offset:{slot*ZSLOT + 4608*h + 64*(T>>1) + 16*(T&1)}"))
            else: o.append(I(f"ds_read_b64_tr_b16 v[{z+4*T+2*h}:{z+4*T+2*h+1}], v{RT8} offset:{slot*ZSLOT + 4608*h}"))
    return o
def wreads(slot):
    w = WFr[slot]
    return [I(f"ds_read_b128 v[{w+8*ks+4*tt}:{w+8*ks+4*tt+3}], v{RB+ks} offset:{slot*16384 + 2048*tt}") for ks in range(2) for tt in range(2)]
def gmfmas(s, zero=False):
    z = ZF[s % 2]; w = WFr[(s >> 1) & 1] + 8*(s & 1)
    return [I(f"v_mfma_f32_16x16x32_bf16 v[{accr(T,tt)}:{accr(T,tt)+3}], v[{z+4*T}:{z+4*T+3}], v[{w+4*tt}:{w+4*tt+3}], " + ("0" if zero else f"v[{accr(T,tt)}:{accr(T,tt)+3}]"))
            for T in range(9) for tt in range(2)]
SYNC = int(os.environ.get('SYNC', '4'))
def gstage(s, dm, last=False, tr=False, zero=False, pre=()):
    ns = (s + 1) % 4
    mf = gmfmas(s, zero)
    if last: return mf
    tags = [f"D{ns}"] + ([f"W{(ns >> 1) & 1}"] if s & 1 else [])
    rd = areads(ns, ns % 2, tr)
    if 'halfz' in EXP: rd = rd[(s & 1)::2]
    if s & 1: rd = wreads((ns >> 1) & 1)[:2] + rd + wreads((ns >> 1) & 1)[2:]
    side = []
    rd = [[x] for x in rd]; dm = list(dm)
    while rd or dm:
        if dm: side.append(dm.pop(0))
        if rd: side.append(rd.pop(0))
        if rd and len(rd) > len(dm): side.append(rd.pop(0))
    o = mf[:SYNC] + [WAITDS()] + ([WAITVM(tags)] if 'novm' not in EXP else []) + list(pre) + ([I("s_barrier")] if 'nobar' not in EXP and not ('halfbar' in EXP and s & 1) else [])
    if 'nodma' in EXP: side = [g for g in side if not any(x.ldsdma for x in g)]
    rest = mf[SYNC:]; n = len(rest); m = len(side); j = 0
    if BURST: o.append(I("s_setprio 3"))
    for i, x in enumerate(rest):
        o.append(x)
        if BURST and i == BURST - 1: o.append(I("s_setprio 0"))
        tgt = min(m, -(-(i + 1) * m // n))
        o += flat(side[j:tgt]); j = tgt
    return o

def ln_loads():
    R = 64
    o = [I("v_lshlrev_b32 v15, 4, v0"),
         I("s_and_b32 s59, s2, 7"), I("s_lshl_b32 s59, s59, 5"), I("s_lshr_b32 s46, s2, 3"), I("s_add_u32 s59, s59, s46"),
         I("s_mul_i32 s58, s59, 36864"), I(f"s_add_u32 s58, s58, {WS_Z}"), I("s_mov_b32 s46, s58")]
    for i in range(9):
        o.append(I(f"buffer_load_dwordx4 v[{R+4*i}:{R+4*i+3}], v15, s[8:11], s46 offen"))
        if i < 8: o.append(I("s_add_u32 s46, s46, 4096"))
    return o

def ln_compute():
    R = 64; F = 100; A = 16; B = 32
    o = []
    for i in range(9):
        for d in range(4):
            k = 4*i + d
            o += [I(f"v_lshlrev_b32 v{F+2*k}, 16, v{R+k}"), I(f"v_and_b32 v{F+2*k+1}, 0xffff0000, v{R+k}")]
        if i == 0:
            for j in range(8): o.append(I(f"v_mul_f32 v{A+8+j}, v{F+j}, v{F+j}"))
        else:
            for j in range(8): o.append(I(f"v_add_f32 v{A+j}, v{F+j if i == 1 else A+j}, v{F+8*i+j}"))
            for j in range(8): o.append(I(f"v_fmac_f32 v{A+8+j}, v{F+8*i+j}, v{F+8*i+j}"))
    o += [I("v_and_b32 v2, 1, v1"), I("v_cmp_eq_u32 s[50:51], 0, v2"), I("v_and_b32 v2, 2, v1"), I("v_cmp_eq_u32 s[52:53], 0, v2"),
          I("v_and_b32 v2, 4, v1"), I("v_cmp_eq_u32 s[54:55], 0, v2"), I("v_and_b32 v2, 8, v1"), I("v_cmp_eq_u32 s[56:57], 0, v2")]
    n = 16
    for step, (msk, dpp) in enumerate((("s[56:57]", "row_mirror"), ("s[54:55]", "row_half_mirror"), ("s[52:53]", "quad_perm:[2,3,0,1]"), ("s[50:51]", "quad_perm:[1,0,3,2]"))):
        h = n // 2
        for i in range(h): o.append(I(f"v_cndmask_b32 v{B+i}, v{A+i}, v{A+h+i}, {msk}"))
        for i in range(h): o.append(I(f"v_cndmask_b32 v{A+i}, v{A+h+i}, v{A+i}, {msk}"))
        for i in range(h): o.append(I(f"v_add_f32_dpp v{A+i}, v{B+i}, v{A+i} {dpp} row_mask:0xf bank_mask:0xf"))
        n = h
    o += [I(f"v_lshlrev_b32 v2, 2, v0"), I(f"v_add_u32 v2, {LB_MISC}, v2"), I(f"ds_write_b32 v2, v{A}"),
          I("v_and_b32 v3, 15, v1"), I("v_lshlrev_b32 v3, 2, v3"), I(f"v_add_u32 v3, {LB_MISC}, v3"),
          WAITDS(), I("s_barrier")]
    for r in range(8): o.append(I(f"ds_read2_b32 v[{B+2*r}:{B+2*r+1}], v3 offset0:{32*r} offset1:{32*r+16}"))
    for r in range(8): o.append(I(f"v_add_f32 v{B+r}, v{B+r}, v{B+8+r}"))
    for r in range(4): o.append(I(f"v_add_f32 v{B+r}, v{B+r}, v{B+4+r}"))
    o += [I(f"v_add_f32 v{B}, v{B}, v{B+2}"), I(f"v_add_f32 v{B+1}, v{B+1}, v{B+3}"), I(f"v_add_f32 v{B}, v{B}, v{B+1}"),
          I(f"v_mul_f32 v{B}, {f32(1.0/2304)}, v{B}"),
          I(f"v_mov_b32_dpp v{B+1}, v{B} row_ror:8 row_mask:0xf bank_mask:0xf"),
          I(f"v_fma_f32 v{B+1}, -v{B}, v{B}, v{B+1}"), I(f"v_max_f32 v{B+1}, 0, v{B+1}"), I(f"v_add_f32 v{B+1}, {f32(1e-5)}, v{B+1}"),
          I(f"v_rsq_f32 v{B+1}, v{B+1}"), I(f"v_mul_f32 v{B}, -v{B}, v{B+1}" if False else f"v_mul_f32_e64 v{B}, -v{B}, v{B+1}")]
    for j in range(8): o.append(I(f"v_readlane_b32 s{50+j}, v{B}, {j}"))
    for j in range(8): o.append(I(f"v_mov_b32 v{A+j}, s{50+j}"))
    for j in range(8): o.append(I(f"v_readlane_b32 s{50+j}, v{B+1}, {j}"))
    for i in range(9):
        for j in range(8): o.append(I(f"v_fma_f32 v{F+8*i+j}, v{F+8*i+j}, s{50+j}, v{A+j}"))
        for j in range(4): o.append(I(f"v_cvt_pk_bf16_f32 v{R+4*i+j}, v{F+8*i+2*j}, v{F+8*i+2*j+1}"))
        o.append(I(f"buffer_store_dwordx4 v[{R+4*i}:{R+4*i+3}], v15, s[8:11], s58 offen sc1", tag="LNST"))
        o.append(I("s_add_u32 s58, s58, 4096"))
    return o
def gate_loads():
    o = [I("s_load_dwordx2 s[36:37], s[0:1], 0"), I("s_load_dwordx2 s[20:21], s[0:1], 64"),
         I(f"s_mov_b32 s38, {2048*1152}"), I("s_mov_b32 s39, 0x00020000"), I("s_mov_b32 s22, 1152"), I("s_mov_b32 s23, 0x00020000"),
         I("v_and_b32 v191, 31, v0"), I("v_lshlrev_b32 v191, 4, v191"), I("v_lshrrev_b32 v190, 5, v0"), I("v_mul_u32_u24 v190, 1152, v190"), I("v_add_u32 v190, v190, v191"),
         I("v_mov_b32 v189, 0x7f000000"), I("v_cmp_gt_u32 vcc, 128, v191"), I("v_cndmask_b32 v189, v189, v190, vcc"),
         I("s_mul_i32 s46, s59, 9216"), I("s_waitcnt lgkmcnt(0)")]
    for i in range(3):
        o += [I(f"buffer_load_dwordx4 v[{192+4*i}:{195+4*i}], v{190 if i < 2 else 189}, s[36:39], s46 offen offset:{512*i}"),
              I(f"buffer_load_dwordx4 v[{204+4*i}:{207+4*i}], v191, s[20:23], 0 offen offset:{512*i}")]
    return o
def gate_compute():
    o = [I("v_mov_b32 v190, 0"), I("v_mov_b32 v191, 0")]
    for k in range(12):
        a, b = 192 + k, 204 + k
        o += [I(f"v_lshlrev_b32 v4, 16, v{a}"), I(f"v_lshlrev_b32 v5, 16, v{b}"), I(f"v_and_b32 v6, 0xffff0000, v{a}"), I(f"v_and_b32 v7, 0xffff0000, v{b}"),
              I("v_fmac_f32 v190, v4, v5"), I("v_fmac_f32 v191, v6, v7")]
    o.append(I("v_add_f32 v190, v190, v191"))
    for m in ("row_shr:1", "row_shr:2", "row_shr:4", "row_shr:8"): o.append(I(f"v_add_f32_dpp v190, v190, v190 {m} bound_ctrl:0"))
    o += [I("v_add_f32_dpp v190, v190, v190 row_bcast:15 row_mask:0xa"),
          I(f"v_mul_f32 v190, {f32(-LOG2E)}, v190"), I("v_exp_f32 v190, v190"), I("v_add_f32 v190, 1.0, v190"), I("v_rcp_f32 v190, v190"),
          I("v_lshrrev_b32 v4, 5, v0"), I("v_lshlrev_b32 v4, 2, v4"), I("s_lshl_b32 s46, s59, 5"), I(f"s_add_u32 s46, s46, {WS_G}"),
          I("s_mov_b32 exec_lo, 0x80000000"), I("s_mov_b32 exec_hi, 0x80000000"),
          I("buffer_store_dword v190, v4, s[8:11], s46 offen sc1", tag="LNST"), I("s_mov_b64 exec, -1")]
    return o

def role_b():
    LATE = 'lnearly' not in EXP
    o = [I("s_setprio 3" if not LATE else "s_setprio 1"), I("s_sub_u32 s2, s2, 256")] + ([] if LATE else ln_loads() + gate_loads())
    o += [
          I("s_and_b32 s30, s2, 1"), I("s_lshl_b32 s30, s30, 3"), I("s_bfe_u32 s46, s2, 0x30003"), I("s_add_u32 s30, s30, s46"),
          I("s_bfe_u32 s31, s2, 0x20001"), I("s_lshl_b32 s31, s31, 2"), I("s_lshr_b32 s46, s2, 6"), I("s_add_u32 s31, s31, s46"),
          I("s_lshl_b32 s33, s30, 2"), I("s_add_u32 s33, s33, s32"),
          I("s_lshl_b32 s42, s33, 17"),
          I(f"v_lshlrev_b32 v{VZ}, 4, v1"),
          I("s_lshl_b32 s40, s32, 12"), I(f"s_mul_i32 s41, s32, {ZG}"), I(f"s_add_u32 s41, s41, {ZBASE}"), I("s_mul_i32 s44, s32, 36864"),
          I("v_lshrrev_b32 v7, 3, v1"),
          I("v_lshrrev_b32 v3, 4, v1"), I("v_and_b32 v4, 7, v1"), I("v_xor_b32 v4, v4, v3"), I("v_lshlrev_b32 v4, 4, v4"), I("v_xor_b32 v8, 64, v4")]
    o += srd(12, 24, 25, 2048*4096) + srd(16, 26, 27, 4096)
    o += [I("s_mul_i32 s48, s31, 2304"), I(f"s_add_u32 s48, s48, {WS_Z}"), I("s_add_u32 s43, s48, s44"),
          I("v_lshlrev_b32 v2, 12, v7"),
          I(f"v_add_u32 v{VA}, v2, v4"), I(f"v_add_u32 v{VA+1}, v2, v8"), I(f"v_add_u32 v{VA+1}, {32768-1024}, v{VA+1}"),
          I(f"v_add_u32 v{VA+2}, {65536-2048}, v{VA}"), I(f"v_add_u32 v{VA+3}, {65536-2048}, v{VA+1}"),
          I("v_and_b32 v2, 15, v1"), I("v_bfe_u32 v9, v1, 1, 3"), I("v_xor_b32 v4, v9, v3"), I("v_lshlrev_b32 v4, 4, v4"),
          I("v_lshl_add_u32 v4, v2, 7, v4"), I(f"v_add_u32 v{RB}, s40, v4"), I(f"v_xor_b32 v{RB+1}, 64, v{RB}"),
          I(f"v_mul_u32_u24 v4, {ZG}, v3"), I("v_lshl_add_u32 v4, v2, 4, v4"), I("s_and_b32 s46, s31, 1"),
          I("s_lshl_b32 s47, s46, 11"), I(f"s_sub_u32 s47, {ZBASE + 2048}, s47"), I(f"v_add_u32 v{RT8}, s47, v4"),
          I("v_and_b32 v9, 8, v1"), I("v_lshl_add_u32 v4, v9, 4, v4"), I("s_lshl_b32 s47, s46, 8"), I(f"s_add_u32 s47, s47, {ZBASE}"), I(f"v_add_u32 v{RA}, s47, v4"),
          I("v_lshlrev_b32 v10, 1, v2"), I("v_lshlrev_b32 v11, 2, v2"),
          I("s_lshr_b32 s44, s2, 4"), I("s_lshl_b32 s44, s44, 7"), I(f"s_add_u32 s44, s44, {WS_CNT}"), I("s_and_b32 s45, s2, 63"), I("s_lshl_b32 s45, s45, 7"), I(f"s_add_u32 s45, s45, {WS_CNT + 4096}"),
          I(f"v_lshlrev_b32 v{VP}, 7, v1"), I(f"v_mov_b32 v{VT}, 0"), I(f"v_mov_b32 v{VT+1}, 1"),
          I("s_mul_i32 s46, s33, 184320"), I(f"s_add_u32 s46, s46, {WS_ACT + 18*1024}"),
          I("s_mul_i32 s34, s31, 9"), I("s_add_u32 s34, s34, 1"), I("s_lshr_b32 s34, s34, 1"), I("s_lshl_b32 s34, s34, 10"), I("s_add_u32 s34, s34, s46"),
          I("s_lshr_b32 s49, s31, 1"), I("s_mul_i32 s49, s49, 9216"), I("s_add_u32 s49, s49, 4096"), I("s_and_b32 s47, s31, 1"), I("s_lshl_b32 s47, s47, 9"),
          I("s_add_u32 s49, s49, s47"), I("s_add_u32 s49, s49, s46"),
          I(f"v_add_u32 v{VX1}, 92160, v{VZ}"),
          I("v_and_b32 v4, 31, v1"), I("v_lshlrev_b32 v4, 4, v4"), I("v_lshrrev_b32 v9, 5, v1"), I(f"v_lshl_add_u32 v{VX1+1}, v9, 3, v4"),
          I(f"v_add_u32 v{VX1+2}, 92160, v{VX1+1}")]
    if LATE: o += ln_loads() + gate_loads() + [I("s_setprio 3")]
    early = flat(gdma_w(0)) + flat(gdma_w(1))
    early += [I("s_lshl_b32 s46, s33, 6"),
          I(f"buffer_load_ushort v{TB}, v10, s[16:19], s46 offen"), I(f"buffer_load_ushort v{TB+1}, v10, s[16:19], s46 offen offset:32")]
    o += stamp(7)
    ln = ln_compute()
    cut = next(i for i, x in enumerate(ln) if x.mn == "s_barrier")
    WLATE = 'wlate' in EXP
    if WLATE:
        o += ln[:cut-1] + gate_compute() + ln[cut-1:]
        etxt = text_of(finalize(early)[0])
        o += [RAW("    s_cmp_eq_u32 s32, 0\n    s_cbranch_scc1 KB_w0\n" + etxt + "\n    s_waitcnt vmcnt(10)\n    s_branch KB_w1\nKB_w0:\n    s_waitcnt vmcnt(0)\nKB_w1:"), I("s_waitcnt vmcnt(63)")]
    else: o += ln[:cut-1] + early + gate_compute() + ln[cut-1:]
    o += stamp(2)
    o += [I("s_lshl_b32 s59, s33, 7"), I(f"s_add_u32 s59, s59, {WS_G}"),
          ] + ([] if WLATE else [WAITVM("LNST")]) + [I("s_barrier")] + stamp(6)
    o += [RAW("    s_cmp_lg_u32 s32, 0\n    s_cbranch_scc1 KB_pubd\n    s_mov_b64 exec, 1\n"
              f"    v_mov_b32 v{VP+1}, 1\n"
              f"    buffer_atomic_add v{VP+1}, v{VT}, s[8:11], s44 offen sc0 sc1\n    s_waitcnt vmcnt(0)\n"
              f"    v_readfirstlane_b32 s47, v{VP+1}\n    s_cmp_lg_u32 s47, 15\n    s_cbranch_scc1 KB_notlast\n"
              f"    s_mov_b64 exec, -1\n    s_mov_b32 s47, {WS_CNT + 4096}\n    buffer_atomic_add v{VT+1}, v{VP}, s[8:11], s47 offen sc1\n    s_mov_b64 exec, 1\n"
              f"KB_notlast:\n    s_mov_b64 exec, -1\nKB_pubd:")]
    o += [RAW("    s_cmp_lg_u32 s32, 0\n    s_cbranch_scc1 KB_polled\n    s_mov_b64 exec, 1\n    s_mov_b32 s47, 0\nKB_poll:\n"
              f"    buffer_load_dword v{VP+1}, v{VT}, s[8:11], s45 offen sc1\n    s_add_u32 s47, s47, 1\n    s_waitcnt vmcnt(0)\n"
              f"    v_cmp_ne_u32 vcc, 16, v{VP+1}\n    s_cmp_gt_u32 s47, 0x10000\n    s_cbranch_scc1 KB_pdone\n    s_cbranch_vccz KB_pdone\n    s_sleep 1\n    s_branch KB_poll\n"
              "KB_pdone:\n    s_mov_b64 exec, -1\n" + (etxt + "\n" if WLATE else "") + "KB_polled:"),
          I("s_barrier")] + stamp(3)
    for k in range(4): o += flat(gdma_z(k))
    o += [I(f"buffer_load_dword v{TB+2}, v11, s[8:11], s59 offen sc1"), I(f"buffer_load_dword v{TB+3}, v11, s[8:11], s59 offen offset:64 sc1")]
    o += [WAITVM(["D0", "W0"]), I("s_barrier")] + wreads(0) + areads(0, 0, False)
    o += [I("s_setprio 0"), I("s_mov_b32 s35, 0")] + stamp(4)
    def dm2(k):
        s_ = k % 4
        return (gdma_w(s_ >> 1) if s_ % 2 == 0 else []) + gdma_z(s_)
    for k in range(4): o += gstage(k, dm2(k), zero=(k == 0))
    o += [RAW("KB_loop:")]
    a, st = finalize(o); txt = text_of(a) + "\n"
    body = []
    HI = os.environ.get('BHI', '')
    if HI:
        lo, hi = map(int, HI.split('-'))
        body += [RAW(f"    s_setprio 0\n    s_sub_u32 s46, s35, {lo}\n    s_cmp_ge_u32 s46, {hi-lo}\n    s_cbranch_scc1 KB_lo\n    s_setprio 3\nKB_lo:")]
    for k in range(4): body += gstage(k, dm2(k))
    body += [I("s_add_u32 s35, s35, 1"), I("s_cmp_lt_u32 s35, 14"), I("s_cbranch_scc1 KB_loop")]
    a, st = finalize_loop(body, st); txt += text_of(a) + "\n"
    z1 = []
    for c in range(8):
        j, tt = divmod(c, 2)
        z1.append([I(f"buffer_load_dwordx4 v[{Z1P+4*c}:{Z1P+4*c+3}], v{VZ if tt == 0 else VX1}, s[8:11], s34 offen offset:{1024*j}")])
    for tt in range(2): z1.append([I(f"buffer_load_dwordx2 v[{Z1P+32+2*tt}:{Z1P+33+2*tt}], v{VX1+1+tt}, s[8:11], s49 offen")])
    prep = [I(f"v_lshlrev_b32 v{TB}, 16, v{TB}"), I(f"v_lshlrev_b32 v{TB+1}, 16, v{TB+1}"),
          I(f"v_sub_f32 v{TB+2}, 1.0, v{TB+2}"), I(f"v_sub_f32 v{TB+3}, 1.0, v{TB+3}"),
          I(f"v_mul_f32 v{TB}, v{TB}, v{TB+2}"), I(f"v_mul_f32 v{TB+1}, v{TB+1}, v{TB+3}")]
    o = gstage(0, z1[:5]) + gstage(1, z1[5:]) + gstage(2, [[x] for x in prep])
    def quad(a_, z, sc, bi, t, dst):
        x = [I(f"v_lshlrev_b32 v{t}, 16, v{z}"), I(f"v_and_b32 v{t+1}, 0xffff0000, v{z}"),
             I(f"v_lshlrev_b32 v{t+2}, 16, v{z+1}"), I(f"v_and_b32 v{t+3}, 0xffff0000, v{z+1}")]
        for r in range(4): x.append(I(f"v_fma_f32 v{a_+r}, v{a_+r}, v{sc}, v{bi}"))
        for r in range(4): x.append(I(f"v_mul_f32 v{a_+r}, v{a_+r}, v{t+r}"))
        x += [I(f"v_cvt_pk_bf16_f32 v{dst}, v{a_}, v{a_+1}"), I(f"v_cvt_pk_bf16_f32 v{dst+1}, v{a_+2}, v{a_+3}")]
        return x
    D = ZF[0]
    ep = []
    for c in range(8):
        j, tt = divmod(c, 2)
        for q in range(2):
            g = 2*c + q
            ep += quad(ACC + 4*g, Z1P + 2*g, TB+2+tt, TB+tt, 2 + 4*q, D + 4*c + 2*q)
        ep.append(I(f"buffer_store_dwordx4 v[{D+4*c}:{D+4*c+3}], v{VZ if tt == 0 else VX1}, s[8:11], s34 offen offset:{1024*j}"))
    for tt in range(2):
        g = 16 + tt
        ep += quad(ACC + 4*g, Z1P + 2*g, TB+2+tt, TB+tt, 2 + 4*tt, D + 32 + 2*tt)
        ep.append(I(f"buffer_store_dwordx2 v[{D+32+2*tt}:{D+33+2*tt}], v{VX1+1+tt}, s[8:11], s49 offen"))
    mf = gstage(3, [], last=True)
    o += [I("s_setprio 3")] + mf[:6]
    k = 0
    for m in mf[6:]:
        o += [m] + ep[k:k+2]; k += 2
    o += stamp(5) + ep[k:]
    if 'wfb' in EXP:
        o += [I("s_setprio 0"), I(f"v_mov_b32 v{attn.VD}, v{VZ}")] + attn.wf_loads() + attn.wf_store()
    a, st = finalize(o, st); txt += text_of(a) + "\n"
    return txt

def build():
    o = [RAW("    s_cmp_ge_u32 s2, 512\n    s_cbranch_scc1 K23_exit"),
         I("s_load_dwordx2 s[4:5], s[0:1], 88"), I("s_load_dwordx4 s[24:27], s[0:1], 40"),
         I("v_and_b32 v1, 63, v0"), I("v_lshrrev_b32 v2, 6, v0"), I("s_nop 0"), I("v_readfirstlane_b32 s32, v2"),
         I("s_waitcnt lgkmcnt(0)")]
    o += srd(8, 4, 5, WS_USED)
    a, st = finalize(o)
    txt = text_of(a) + "\n    s_cmp_ge_u32 s2, 256\n    s_cbranch_scc1 K23_B\n"
    if 'noA' in EXP: txt += "    s_branch K23_exit\n"
    txt += role_a() + "K23_B:\n" + ("    s_branch K23_exit\n" if 'noB' in EXP else "") + role_b() + "K23_exit:\n"
    return kernel_text("k23_fused_kernel", txt, 256, kidx=1)

def launch(): return ("k23_fused_kernel", 512, 256, LDS_BYTES, build())
```

```python
from common import *
from k2 import (S, k_reads, v_reads, qk, pv, softmax_half, set_m, max16, xhalf_max,
                SLOTB, L_Q, L_MISC, QF, KF, VF, SS, PP, OO, VKA, VKB, VVA, NKA, NKB, NVA, LKA, LKB, LVA, VD, VD4, T0)
EXP = os.environ.get('EXP', '').split(',')
DIRECT = 'direct' in EXP
NC1 = int(os.environ.get('NC1', '8'))
PRIO_A = [0, int(os.environ.get('PRIO_A1', '2')), int(os.environ.get('PRIO_A2', '2'))]

VG = 220
CH = 32 * QROW
def dma_chunk():
    o = [I("s_mov_b32 m0, s40")]
    for p in range(4): o.append(I(f"buffer_load_dwordx4 v{VG+p}, s[8:11], s41 offen offset:{1024*p} lds", tag="KV"))
    o += [I("s_add_u32 m0, s40, 4096"), I(f"buffer_load_dwordx4 v{VG+4}, s[8:11], s41 offen lds", tag="KV")]
    return o

def tile_body(kt):
    n1 = kt + 1; n2 = kt + 2
    V = softmax_half(kt, 0, 0) + softmax_half(kt, 0, 1) + softmax_half(kt, 1, 0) + softmax_half(kt, 1, 1)
    qa = qk(n1, 0); qb = qk(n1, 1)
    R = k_reads(n2 % 8, n2 >= 8) + v_reads(n1 % 8, n1 >= 8)
    M = [pv(kt - 1, 1, 1), qa[0], qa[1], pv(kt, 0, 0), qb[0], pv(kt, 0, 1), qb[1], pv(kt, 1, 0)]
    return V, M, R

def state_regs():
    return [QF + 4*i for i in range(4)] + [OO + 16*q + 4*i for q in range(2) for i in range(3)]

def wf_loads():
    b = [I("s_load_dwordx2 s[36:37], s[0:1], 16"), I("s_load_dwordx2 s[38:39], s[0:1], 56"),
         I("s_lshl_b32 s48, s2, 2"), I("s_add_u32 s48, s48, s32"), I("s_mov_b32 s23, 0x00020000"),
         I("s_mul_i32 s51, s48, 729"), I("s_lshr_b32 s51, s51, 16"),
         I("s_mul_i32 s52, s51, 90"), I("s_sub_u32 s52, s48, s52"),
         I("s_mul_i32 s51, s51, 144"),
         I("s_sub_u32 s53, s52, 18"), I("s_lshl_b32 s53, s53, 5"),
         I("s_mov_b32 s54, 8"), I("s_mov_b32 s55, 2"), I("s_mov_b32 s56, 16"), I("s_mov_b32 s57, 4"),
         I("s_sub_u32 s47, s52, 16"), I("s_mul_i32 s47, s47, 288"), I("s_add_u32 s47, s47, 16"),
         I(f"s_mov_b32 s22, {2304*1152}"), I("s_waitcnt lgkmcnt(0)"),
         I("s_cmp_lt_u32 s52, 18"),
         I("s_cselect_b32 s20, s36, s38"), I("s_cselect_b32 s21, s37, s39"), I(f"s_cselect_b32 s22, {576*1152}, s22"),
         I("s_cselect_b32 s53, s47, s53"), I("s_cselect_b32 s54, 36, s54"), I("s_cselect_b32 s55, 18, s55"),
         I("s_cselect_b32 s56, 144, s56"), I("s_cselect_b32 s57, 72, s57"),
         I("s_mul_i32 s47, s52, 36"),
         I("s_cmp_lt_u32 s52, 16"),
         I("s_cselect_b32 s53, s47, s53"), I("s_cselect_b32 s54, 8, s54"), I("s_cselect_b32 s55, 2, s55"),
         I("s_cselect_b32 s56, 18, s56"), I("s_cselect_b32 s57, 4, s57"),
         I("s_mulk_i32 s53, 1152"), I("s_mulk_i32 s54, 1152"), I("s_mulk_i32 s55, 1152"), I("s_mulk_i32 s56, 1152"), I("s_mulk_i32 s57, 1152"),
         I("s_add_u32 s53, s53, s51"),
         I("v_lshrrev_b32 v4, 5, v1"), I("v_mul_lo_u32 v4, v4, s55"), I("v_bfe_u32 v5, v1, 4, 1"), I("v_mul_u32_u24 v5, 1152, v5"),
         I("v_and_b32 v7, 15, v1"), I("v_cmp_lt_u32 vcc, 8, v7"), I("v_lshlrev_b32 v7, 4, v7"), I("v_add3_u32 v4, v4, v5, v7"),
         I("v_mov_b32 v5, 0x7f000000"), I("v_cndmask_b32 v6, v4, v5, vcc"),
         I("s_cmp_lt_u32 s48, 720"), I("s_cselect_b32 s22, s22, 0"),
         I("s_mul_i32 s58, s48, 5120"), I(f"s_add_u32 s58, s58, {WS_WF}"), I("s_cmp_lt_u32 s48, 720"), I("s_cselect_b32 s58, s58, 0x7f000000"),
         I("s_lshl_b32 s50, s32, 13"), I("s_barrier")]
    for p in range(8):
        b.append(I(f"s_add_u32 m0, s50, {1024*p}"))
        if p == 0: src = "s53"
        else:
            src = "s47"
            terms = (["s56"] if p & 4 else []) + (["s57"] if p & 2 else []) + (["s54"] if p & 1 else [])
            b.append(I(f"s_add_u32 s47, s53, {terms[0]}"))
            for t in terms[1:]: b.append(I(f"s_add_u32 s47, s47, {t}"))
        b.append(I(f"buffer_load_dwordx4 v6, s[20:23], {src} offen lds", tag="WFD"))
    return b
def wf_store():
    P = 100
    b = [I("v_lshrrev_b32 v4, 4, v1"), I("v_lshlrev_b32 v4, 11, v4"), I("v_bfe_u32 v5, v1, 2, 2"), I("v_lshl_add_u32 v4, v5, 8, v4"),
         I("v_and_b32 v5, 3, v1"), I("v_lshl_add_u32 v4, v5, 3, v4"), I("v_add_u32 v4, s50, v4"), I("v_lshl_add_u32 v7, v5, 3, v4"), WAITVM("WFD")]
    for nt in range(5):
        for h in range(2):
            if nt < 4: b.append(I(f"ds_read_b64_tr_b16 v[{P+4*nt+2*h}:{P+4*nt+2*h+1}], v7 offset:{1024*h + 64*(nt>>1) + 8*(nt&1)}"))
            else: b.append(I(f"ds_read_b64_tr_b16 v[{P+4*nt+2*h}:{P+4*nt+2*h+1}], v4 offset:{1024*h + 128}"))
    for nt in range(5):
        if nt == 4: b.append(I("s_add_u32 s58, s58, 4096"))
        b.append(I(f"buffer_store_dwordx4 v[{P+4*nt}:{P+4*nt+3}], v{VD}, s[8:11], s58 offen offset:{1024*(nt%4)}"))
    return b

def epi_addr():
    o = [I("v_lshrrev_b32 v6, 5, v1")]
    o += [I("s_lshl_b32 s46, s46, 2"), I("s_mul_i32 s46, s46, 92160"), I(f"s_add_u32 s46, s46, {WS_ACT}"),
          I("s_lshr_b32 s50, s30, 1"), I("s_lshl_b32 s50, s50, 10"), I("s_and_b32 s49, s30, 1"), I("s_lshl_b32 s49, s49, 9"),
          I("s_add_u32 s50, s50, s49"), I("s_add_u32 s50, s50, s46"),
          I("s_lshr_b32 s51, s30, 4"), I("s_add_u32 s51, s51, 16"), I("s_lshl_b32 s51, s51, 10"),
          I("s_bfe_u32 s49, s30, 0x20002"), I("s_lshl_b32 s49, s49, 8"), I("s_add_u32 s51, s51, s49"),
          I("s_and_b32 s49, s30, 3"), I("s_lshl_b32 s49, s49, 2"), I("s_add_u32 s51, s51, s49"), I("s_add_u32 s51, s51, s46"),
          I("v_bfe_u32 v3, v1, 4, 1"), I("s_mov_b32 s49, 92160"), I("v_mul_lo_u32 v3, v3, s49"),
          I("v_and_b32 v4, 15, v1"), I("v_lshl_add_u32 v232, v4, 4, v3"), I("v_lshl_add_u32 v233, v6, 8, v232"),
          I(f"v_add_u32 v234, {2*92160}, v232"), I(f"v_add_u32 v235, {2*92160}, v233")]
    return o

MIDC = int(os.environ.get('MIDC', '5'))
def wf_mid(P):
    import re
    smap = {36: 12, 37: 13, 38: 14, 39: 15, 50: 24, 51: 25, 52: 26, 53: 27, 54: 28, 55: 29, 56: 96, 57: 97, 58: 98}
    vmap = {4: 238, 5: 239, 6: 240, 7: 241}
    def rm(t):
        t = re.sub(r"s\[(\d+):(\d+)\]", lambda m: f"s[{smap.get(int(m.group(1)), m.group(1))}:{smap.get(int(m.group(2)), m.group(2))}]", t)
        t = re.sub(r"\bs(\d+)\b", lambda m: f"s{smap.get(int(m.group(1)), m.group(1))}", t)
        t = re.sub(r"\bv(\d+)\b", lambda m: f"v{vmap.get(int(m.group(1)), m.group(1))}", t)
        return t
    slot = ((MIDC - 1) % 3) * SLOTB
    o = []
    for x in wf_loads():
        t = rm(x.text)
        if t.startswith("s_lshl_b32 s24, s32, 13"):
            o += [I(f"s_add_u32 s24, s43, {slot}"), I("s_mul_i32 s99, s32, 3072"), I(f"s_add_u32 s99, s99, {L_Q - 5120}")]; continue
        m = re.match(r"s_add_u32 m0, s24, (\d+)", t)
        if m and int(m.group(1)) >= 5120: t = f"s_add_u32 m0, s99, {m.group(1)}"
        o.append(I(t, x.tag))
    Pk = 100
    o += [I("v_lshrrev_b32 v238, 4, v1"), I("v_lshlrev_b32 v238, 11, v238"), I("v_bfe_u32 v239, v1, 2, 2"), I("v_lshl_add_u32 v238, v239, 8, v238"),
          I("v_and_b32 v239, 3, v1"), I("v_lshl_add_u32 v238, v239, 3, v238"),
          I("v_mov_b32 v240, s24"), I("v_mov_b32 v241, s99"),
          I("v_cmp_gt_u32 vcc, 48, v1"), I("v_cndmask_b32 v242, v241, v240, vcc"), I("v_add_u32 v242, v242, v238"),
          I("v_cndmask_b32 v243, v241, v240, s[44:45]"), I("v_add_u32 v243, v243, v238"),
          I("v_lshl_add_u32 v244, v239, 3, v242"), I("v_lshl_add_u32 v245, v239, 3, v243"), WAITVM("WFD")]
    for nt in range(5):
        for h in range(2):
            if nt < 4: o.append(I(f"ds_read_b64_tr_b16 v[{Pk+4*nt+2*h}:{Pk+4*nt+2*h+1}], v{244+h} offset:{1024*h + 64*(nt>>1) + 8*(nt&1)}"))
            else: o.append(I(f"ds_read_b64_tr_b16 v[{Pk+4*nt+2*h}:{Pk+4*nt+2*h+1}], v{242+h} offset:{1024*h + 128}"))
    for nt in range(5):
        if nt == 4: o.append(I("s_add_u32 s98, s98, 4096"))
        o.append(I(f"buffer_store_dwordx4 v[{Pk+4*nt}:{Pk+4*nt+3}], v{VD}, s[8:11], s98 offen offset:{1024*(nt%4)} sc1"))
    o += [I("s_lshr_b32 s46, s2, 4"), I("s_lshl_b32 s46, s46, 7"), I(f"s_add_u32 s46, s46, {WS_CNT + 2048}"), I(f"s_mov_b32 s47, {WS_CNT + 4096}"),
          I("v_mov_b32 v238, 0"), I("v_mov_b32 v239, 1"), I("v_mov_b32 v240, 0x100"), I("v_lshlrev_b32 v241, 7, v1"),
          I("s_waitcnt vmcnt(0)"), I("s_barrier"),
          RAW(f"    s_cmp_lg_u32 s32, 0\n    s_cbranch_scc1 {P}_wfd\n    s_mov_b64 exec, 1\n    buffer_atomic_add v239, v238, s[8:11], s46 offen sc0 sc1\n    s_waitcnt vmcnt(0)\n"
              f"    v_readfirstlane_b32 s48, v239\n    s_mov_b64 exec, -1\n    s_cmp_lg_u32 s48, 15\n    s_cbranch_scc1 {P}_wfd\n"
              f"    buffer_atomic_add v240, v241, s[8:11], s47 offen sc1\n{P}_wfd:")]
    return o

def role_a(part):
    FULL = (part == 1 and NC1 == 8)
    P = f"A{part}"
    c0 = 0 if part == 1 else NC1
    cend = NC1 if part == 1 else 8
    o = [I("s_setprio 2" if part == 1 else "s_setprio 3"),
         I("s_and_b32 s30, s2, 7"), I("s_lshl_b32 s30, s30, 2"), I("s_lshr_b32 s46, s2, 6"), I("s_add_u32 s30, s30, s46"),
         I("s_bfe_u32 s31, s2, 0x30003"),
         I(f"v_lshlrev_b32 v{VD}, 4, v1"), I(f"v_add_u32 v{VD4}, 4096, v{VD}"),
         I("s_lshr_b32 s46, s32, 1"), I("s_add_u32 s46, s46, 1"), I(f"s_mul_i32 s42, s46, {QPART}"),
         I("s_and_b32 s46, s32, 1"), I(f"s_mul_i32 s46, s46, {16*QROW}"), I("s_add_u32 s42, s42, s46"),
         I("s_mul_i32 s47, s30, 288"), I("v_mov_b32 v5, 9216"), I(f"v_mov_b32 v7, {QROW}")]
    for p in range(5):
        o += [I(f"v_add_u32 v2, {64*p}, v1"), I("v_mul_u32_u24 v3, 3277, v2"), I("v_lshrrev_b32 v3, 16, v3"),
              I("v_mul_u32_u24 v4, 20, v3"), I("v_sub_u32 v2, v2, v4"), I("v_cmp_gt_u32 vcc, 18, v2"),
              I("v_lshl_add_u32 v2, v2, 4, s47"),
              I(f"v_mad_u32_u24 v2, v3, v7, v2"), I(f"v_cndmask_b32 v{VG+p}, v5, v2, vcc")]
        if 0 < p < 4: o.append(I(f"v_subrev_u32 v{VG+p}, {1024*p}, v{VG+p}"))
    o += [
         I("s_mul_i32 s43, s32, 5120"),
         I("s_mov_b32 s40, s43"), I(f"s_add_u32 s41, s42, {CH*c0}")]
    o += [Ins(x.text, "KV0") for x in dma_chunk()]
    o += [I("s_lshl_b32 s53, s2, 2"), I("s_add_u32 s53, s53, s32"), I("s_mul_i32 s53, s53, 10240"), I(f"s_add_u32 s53, s53, {WS_ST}"),
          I("s_add_u32 s54, s53, 8192")]
    if part == 1:
        o += [I("s_lshl_b32 s46, s31, 2"), I("s_add_u32 s46, s46, s32"), I(f"s_mul_i32 s47, s46, {8*QROW}"),
              I("s_mul_i32 s33, s32, 3072"), I(f"s_add_u32 s33, s33, {L_Q}"), I("s_mov_b32 m0, s33")]
        for p in range(3): o.append(I(f"buffer_load_dwordx4 v{VG+p}, s[8:11], s47 offen offset:{1024*p} lds", tag="Q"))
    else:
        for i, r in enumerate(state_regs()):
            o.append(I(f"buffer_load_dwordx4 v[{r}:{r+3}], v{VD4 if 4 <= i < 8 else VD}, s[8:11], {'s54' if i >= 8 else 's53'} offen offset:{1024*(i%4)}"))
    TRI = (part == 1 and 'notri' not in EXP)
    tri = []
    for c in (1, 2): tri += [I(f"s_add_u32 s40, s43, {SLOTB*c}"), I(f"s_add_u32 s41, s42, {CH*(c0+c)}")] + dma_chunk()
    if TRI and 'trilate' not in EXP: o += tri; tri = []
    o += stamp(4)
    o += [I("v_bfe_u32 v2, v1, 4, 1"), I("v_lshlrev_b32 v2, 1, v2"),
          I("v_and_b32 v3, 1, v1"), I("v_add_u32 v3, v2, v3"), I("v_mul_u32_u24 v3, 320, v3"),
          I("v_bfe_u32 v4, v1, 1, 1"), I("v_lshl_add_u32 v3, v4, 3, v3"),
          I("v_bfe_u32 v5, v1, 2, 2"), I("v_lshlrev_b32 v5, 4, v5"),
          I("v_lshrrev_b32 v6, 5, v1"),
          I(f"v_add_u32 v{LKB}, v3, v5"), I(f"v_lshl_add_u32 v{LKA}, v6, 7, v{LKB}"), I(f"v_add_u32 v{LKB}, 256, v{LKB}"),
          I("v_mul_u32_u24 v7, 320, v6"), I("v_and_b32 v8, 31, v1"), I("v_lshl_add_u32 v7, v8, 4, v7"), I(f"v_add_u32 v{LVA}, 10240, v7"),
          I("v_cmp_gt_u32 s[44:45], 32, v1"),
          I("s_mov_b32 s56, 0xfffff"), I("s_mov_b32 s57, 0xfffff")]
    for b in range(2):
        o += [I(f"v_mov_b32 v{KF+8*b+6}, 0x3f80"), I(f"v_mov_b32 v{KF+8*b+7}, 0")]
    for r in range(16): o.append(I(f"v_mov_b32 v{VF+r}, 0"))
    nxt = [I(f"s_add_u32 s40, s43, {SLOTB}"), I(f"s_add_u32 s41, s42, {CH*(c0+1)}")] + dma_chunk()
    if TRI: nxt = tri
    if part == 1:
        o += [I("v_add_u32 v2, v2, v4"), I("v_mul_u32_u24 v2, 320, v2"), I("v_and_b32 v3, 1, v1"), I("v_lshl_add_u32 v2, v3, 3, v2"),
              I(f"v_add3_u32 v{T0}, v2, v5, s33"), I(f"v_lshl_add_u32 v{T0+1}, v6, 7, v{T0}")]
        o += [I("s_load_dwordx2 s[36:37], s[0:1], 16"), I("s_load_dwordx2 s[38:39], s[0:1], 56"),
              ] + ([I("v_and_b32 v228, 15, v1"), I("v_lshlrev_b32 v228, 6, v228"), I("v_lshrrev_b32 v229, 4, v1"), I("v_lshl_add_u32 v228, v229, 12, v228"),
              I("v_mov_b32 v229, 0x7f000000"), I("v_cndmask_b32 v228, v229, v228, s[44:45]"), I("v_lshlrev_b32 v227, 6, v1")] if 't64' in EXP else
              [I("v_and_b32 v228, 7, v1"), I("v_lshlrev_b32 v228, 7, v228"), I("v_lshrrev_b32 v229, 3, v1"), I("v_lshl_add_u32 v228, v229, 12, v228"),
              I("v_mov_b32 v229, 0x7f000000"), I("v_cmp_gt_u32 vcc, 16, v1"), I("v_cndmask_b32 v228, v229, v228, vcc"),
              I("v_lshlrev_b32 v227, 7, v1"), I("v_cndmask_b32 v227, v229, v227, s[44:45]")]) + [
              I("s_lshl_b32 s51, s2, 2"), I("s_add_u32 s51, s51, s32"), I("s_lshl_b32 s52, s51, 13"),
              I("s_mov_b32 s16, s24"), I("s_mov_b32 s17, s25"), I(f"s_mov_b32 s18, {2048*4096}"), I("s_mov_b32 s19, 0x00020000"),
              I("s_sub_u32 s50, s51, 648"), I(f"s_mov_b32 s22, {576*1152}"), I("s_mov_b32 s23, 0x00020000"), I("s_waitcnt lgkmcnt(0)"),
              I("s_cmp_lt_u32 s51, 648"), I("s_cselect_b32 s20, s38, s36"), I("s_cselect_b32 s21, s39, s37"), I(f"s_cselect_b32 s22, {2304*1152}, s22"),
              I("s_cselect_b32 s50, s51, s50"), I("s_lshl_b32 s50, s50, 12")]
        for q in range(2): o += [I(f"v_mov_b32 v{QF+8*q+6}, 0"), I(f"v_mov_b32 v{QF+8*q+7}, 0")]
        for r in range(32): o.append(I(f"v_mov_b32 v{OO+r}, 0"))
        o += [I(f"v_mov_b32 v{VKA}, v{LKA}"), I(f"v_mov_b32 v{VKB}, v{LKB}"), WAITVM("Q")]
        for q in range(2):
            o += [I(f"ds_read_b64_tr_b16 v[{QF+8*q}:{QF+8*q+1}], v{T0+1} offset:{1280*q}"),
                  I(f"ds_read_b64_tr_b16 v[{QF+8*q+2}:{QF+8*q+3}], v{T0+1} offset:{1280*q+64}"),
                  I(f"ds_read_b64_tr_b16 v[{QF+8*q+4}:{QF+8*q+5}], v{T0} offset:{1280*q+256}")]
        o += [I("s_barrier")] + k_reads(0) + nxt
        for q in range(2):
            o += [I(f"v_cndmask_b32 v{QF+8*q+4}, 0, v{QF+8*q+4}, s[44:45]"), I(f"v_mov_b32 v{QF+8*q+5}, 0")]
        o += qk(0, 0) + qk(0, 1)
        o += max16(T0, S(0, 0), True) + max16(T0+1, S(0, 1), True) + xhalf_max(T0, T0+2) + xhalf_max(T0+1, T0+3)
        o += set_m(T0, 0, T0+4) + set_m(T0+1, 1, T0+8) + [I("s_mov_b32 s34, 0")]
    else:
        o += [I("s_lshl_b32 s46, s31, 2"), I("s_add_u32 s46, s46, s32"), I("s_lshl_b32 s47, s46, 8"), I(f"s_add_u32 s47, s47, {WS_G}"),
              I("v_lshlrev_b32 v3, 2, v8"),
              I("buffer_load_dword v230, v3, s[8:11], s47 offen"), I("buffer_load_dword v231, v3, s[8:11], s47 offen offset:128")]
        o += epi_addr()
        for q in range(2):
            for r in range(12, 16): o.append(I(f"v_mov_b32 v{OO+16*q+r}, 0"))
        o += [I("s_mov_b32 s34, 0"), WAITVM("KV0"), I("s_barrier")] + nxt + [I("s_waitcnt vmcnt(7)")]
    lo = c0 + (1 if TRI else 0)
    o += [I(f"s_mov_b32 s55, {lo}"), I(f"s_mov_b32 s58, {max(0, cend - 2 - lo)}")]
    if FULL and MERGE: o += [I(f"s_mov_b32 s33, {MIDC}")] + [I(f"v_mov_b32 v{r}, 0x7f000000") for r in range(232, 236)]
    o += [I(f"s_mov_b32 s35, {c0}"), I(f"s_add_u32 s41, s42, {CH*(c0+2)}"), I(f"s_setprio {PRIO_A[part]}"), I("s_nop 1"), RAW(f"{P}_main:")]
    a, st = finalize(o)
    txt = text_of(a) + "\n"
    o = [I(f"v_mov_b32 v{VKA}, v{LKA}"), I(f"v_mov_b32 v{VKB}, v{LKB}"), I(f"v_mov_b32 v{VVA}, v{LVA}")]
    o += k_reads(0) + k_reads(1) + [I("s_mov_b64 exec, s[56:57]")] + v_reads(0) + [I("s_mov_b64 exec, -1")]
    o += [I(f"v_add_u32 v{NKA}, {SLOTB}, v{LKA}"), I(f"v_add_u32 v{NKB}, {SLOTB}, v{LKB}"), I(f"v_add_u32 v{NVA}, {SLOTB}, v{LVA}"),
          I(f"s_mov_b32 s36, {2*SLOTB}")]
    for r in range(4): o += [I(f"v_mov_b32 v{PP+12+r}, 0"), I(f"v_mov_b32 v{VF+12+r}, 0")]
    o += stamp(2) + qk(0, 0) + qk(0, 1)
    o += [I("s_nop 7"), RAW(f"{P}_loop:")]
    a, st = finalize(o, st)
    txt += text_of(a) + "\n"
    body = []
    if STAMPS and 'cst' in EXP:
        body += [I(f"s_mov_b32 s{SB+2*(5+i)}, s{SB+2*(6+i)}") for i in range(7)] + stamp(12) + [I("s_waitcnt lgkmcnt(0)")]
    for kt in range(8):
        V, M, R = tile_body(kt)
        X = {0: [I("s_waitcnt lgkmcnt(0)"), R[0]], 1: [R[1]], 2: [R[2]],
             3: [I("s_mov_b64 exec, s[56:57]"), R[3], R[4], I("s_mov_b64 exec, -1")]}
        if 'novmask' in EXP: X[3] = [R[3], R[4]]
        if kt == 4:
            X[6] = [I("s_waitcnt vmcnt(0)")]
            X[7] = [I("s_barrier")]
        def gd(i, txt): return RAW(f"    s_cbranch_scc1 {P}_nd{i}\n    {txt}\n{P}_nd{i}:")
        if kt == 4:
            X[4] = [I("s_add_u32 s40, s43, s36")]
            X[5] = [I("s_add_u32 s59, s40, 4096")]
        if kt == 5:
            X[4] = [I("s_sub_u32 s37, s35, s55")]
            X[5] = [I("s_cmp_ge_u32 s37, s58"), I("s_mov_b32 m0, s40")]
            X[6] = [gd(0, f"buffer_load_dwordx4 v{VG+0}, s[8:11], s41 offen lds")]
            X[7] = [gd(1, f"buffer_load_dwordx4 v{VG+1}, s[8:11], s41 offen offset:1024 lds")]
        if kt == 6:
            X[4] = [gd(2, f"buffer_load_dwordx4 v{VG+2}, s[8:11], s41 offen offset:2048 lds")]
            X[5] = [gd(3, f"buffer_load_dwordx4 v{VG+3}, s[8:11], s41 offen offset:3072 lds")]
            X[6] = [I("s_mov_b32 m0, s59")]
            X[7] = [gd(4, f"buffer_load_dwordx4 v{VG+4}, s[8:11], s41 offen lds")]
        if kt == 1 and part == 1 and 'notouch' not in EXP:
            X[4] = [I("s_sub_u32 s37, s35, 1")]
            X[5] = [I("s_cmp_ge_u32 s37, 3")]
            X[6] = [RAW(f"    s_cbranch_scc1 {P}_nt0\n    buffer_load_dword v229, v228, s[16:19], s52 offen\n{P}_nt0:")]
            X[7] = [I("s_add_u32 s52, s52, 1024")]
        if kt == 2 and part == 1 and 'notouch' not in EXP:
            X[5] = [I("s_cmp_lg_u32 s35, 2")]
            X[6] = [RAW(f"    s_cbranch_scc1 {P}_nt1\n    buffer_load_dword v229, v227, s[20:23], s50 offen\n{P}_nt1:")]
        if kt == 7:
            X[4] = [I(f"s_add_u32 s41, s41, {CH}"), I(f"v_mov_b32 v{VKA}, v{NKA}"), I(f"v_mov_b32 v{VKB}, v{NKB}"), I(f"v_mov_b32 v{VVA}, v{NVA}"),
                    I(f"v_add_u32 v{NKA}, s36, v{LKA}"), I(f"v_add_u32 v{NKB}, s36, v{LKB}"), I(f"v_add_u32 v{NVA}, s36, v{LVA}")]
            X[5] = [I(f"s_add_u32 s36, s36, {SLOTB}"), I(f"s_cmp_eq_u32 s36, {3*SLOTB}")]
            X[6] = [I("s_cselect_b32 s36, 0, s36"), I("s_add_u32 s35, s35, 1")]
            X[7] = [I("s_cmp_lt_u32 s35, s33" if (FULL and MERGE) else f"s_cmp_lt_u32 s35, {cend}")]
        for i in range(8):
            body += V[6*i:6*i+2] + [M[i]] + X.get(i, []) + V[6*i+2:6*i+6]
    body += [I(f"s_cbranch_scc1 {P}_loop")]
    a, st = finalize_loop(body, st)
    txt += text_of(a) + "\n"
    if FULL and MERGE:
        mid = [RAW(f"    s_cmp_eq_u32 s35, 8\n    s_cbranch_scc1 {P}_fin"),
              I("s_mov_b32 s33, 8"),
              I("s_and_b32 s47, s2, 63"), I("s_lshl_b32 s47, s47, 7"), I(f"s_add_u32 s47, s47, {WS_CNT + 4096}"), I("v_mov_b32 v2, 0"), I("s_mov_b32 s48, 0"),
              RAW(f"{P}_gpoll:\n    buffer_load_dword v3, v2, s[8:11], s47 offen sc1\n    s_add_u32 s48, s48, 1\n    s_waitcnt vmcnt(0)\n    v_and_b32 v3, 0xff, v3\n    v_cmp_ne_u32 vcc, 16, v3\n"
                  f"    s_cmp_gt_u32 s48, 0x10000\n    s_cbranch_scc1 {P}_gok\n    s_cbranch_vccz {P}_gok\n    s_sleep 2\n    s_branch {P}_gpoll\n{P}_gok:"),
              I("s_lshl_b32 s46, s31, 2"), I("s_add_u32 s46, s46, s32"), I("s_lshl_b32 s47, s46, 8"), I(f"s_add_u32 s47, s47, {WS_G}"),
              I("v_and_b32 v3, 31, v1"), I("v_lshlrev_b32 v3, 2, v3"),
              I("buffer_load_dword v230, v3, s[8:11], s47 offen sc1"), I("buffer_load_dword v231, v3, s[8:11], s47 offen offset:128 sc1")]
        mid += [I(x.text.replace("v6", "v236").replace("v4", "v237")) for x in epi_addr()]
        if 'wfb' not in EXP and 'wfk1' not in EXP: mid += wf_mid(P)
        mid += [I(f"s_branch {P}_loop"), RAW(f"{P}_fin:")]
        txt += text_of(finalize(mid)[0]) + "\n"
    o = [I("s_nop 0"), pv(7, 1, 1)] + stamp(3)
    if FULL and MERGE: FULL = False; part = 2
    if FULL:
        o += [I("s_lshl_b32 s46, s31, 2"), I("s_add_u32 s46, s46, s32")] + epi_addr()
    if part == 1 and not FULL:
        for i, r in enumerate(state_regs()):
            o.append(I(f"buffer_store_dwordx4 v[{r}:{r+3}], v{VD4 if 4 <= i < 8 else VD}, s[8:11], {'s54' if i >= 8 else 's53'} offen offset:{1024*(i%4)}"))
        o += [I("s_setprio 0")] + wf_loads() + wf_store()
        if 'nocp2' not in EXP: o += [RAW(code_prefetch("k34_out_kernel", 3072, 32, 1, 2, 46))]
        o.append(I("s_endpgm"))
        a, _ = finalize(o, st)
        return txt + text_of(a) + "\n"
    o += [I("s_setprio 3")]
    for q in range(2):
        O = OO + 16*q; t = T0 + 8 + 16*q
        o += [I(f"v_mov_b32 v{t}, v{O+10}"), I(f"v_mov_b32 v{t+1}, v{O+10}"),
              I(f"v_add_f32 v{T0+q}, abs(v{O}), abs(v{O+1})")]
        o.append(I(f"v_permlane32_swap_b32 v{t}, v{t+1}"))
        for r in range(2, 11): o.append(I(f"v_add_f32 v{T0+q}, v{T0+q}, abs(v{O+r})"))
        o += [I(f"v_rcp_f32 v{t}, v{t}")] + ([] if FULL else [I(f"v_mul_f32 v{t}, v{t}, v{230+q}")])
        for r in range(10): o.append(I(f"v_mul_f32 v{O+r}, v{O+r}, v{t}"))
        for r in range(5): o.append(I(f"v_cvt_pk_bf16_f32 v{t+4+r}, v{O+2*r}, v{O+2*r+1}"))
        o.append(I(f"buffer_store_dwordx4 v[{t+4}:{t+7}], v233, s[8:11], s{59+q} offen sc1" if False else f"buffer_store_dwordx4 v[{t+4}:{t+7}], v{233+2*q}, s[8:11], s50 offen sc1"))
        o += [I("s_mov_b64 exec, s[44:45]"), I(f"buffer_store_dword v{t+8}, v{232+2*q}, s[8:11], s51 offen" + ("" if FULL else " sc1")), I("s_mov_b64 exec, -1")]
    o += [I(f"v_add_f32 v{T0}, v{T0}, v{T0+1}"), I(f"v_mov_b32 v{T0+2}, {f32(2.0**100)}"),
          I(f"v_cmp_nlt_f32 vcc, v{T0}, v{T0+2}"), I("s_cmp_lg_u64 vcc, 0"), I("s_cselect_b32 s48, 1, 0"),
          I(f"v_mov_b32 v{T0+3}, s48"), I("s_lshl_b32 s49, s32, 2"), I("v_mov_b32 v4, s49"),
          I(f"ds_write_b32 v4, v{T0+3} offset:{L_MISC+256}"),
          I("s_lshl_b32 s46, s31, 7"), I(f"s_add_u32 s46, s46, {WS_CNT2}"), I("s_lshl_b32 s47, s31, 12"), I(f"s_add_u32 s47, s47, {WS_FLG2}"),
          I("v_mov_b32 v2, 0"), I("v_mov_b32 v3, 1"), I("v_mov_b32 v5, 1"), I("v_lshlrev_b32 v4, 7, v1"),
          I("s_waitcnt vmcnt(0) lgkmcnt(0)"), I("s_barrier"),
          I(f"ds_read_b128 v[{T0+4}:{T0+7}], v2 offset:{L_MISC+256}"),
          I(f"v_or3_b32 v{T0+4}, v{T0+4}, v{T0+5}, v{T0+6}"), I(f"v_or_b32 v{T0+4}, v{T0+4}, v{T0+7}"),
          I(f"v_readfirstlane_b32 s48, v{T0+4}"),
          I("s_andn2_b32 s48, s48, s34"), I("s_cmp_lg_u32 s48, 0"), I(f"s_cbranch_scc1 {P}_fallback")]
    if FULL:
        if 'wfb' not in EXP: o += [I("s_setprio 0")] + wf_loads() + wf_store()
        if 'nocp2' not in EXP: o += [RAW(code_prefetch("k4_out_kernel", 1024, 32, 1, 2, 46))]
    elif DIRECT:
        o += [RAW(f"    s_cmp_lg_u32 s32, 0\n    s_cbranch_scc1 {P}_done\n    s_mov_b32 exec_hi, 0\n    buffer_atomic_add v5, v4, s[8:11], s47 offen sc1\n{P}_done:")]
    else:
        o += [RAW(f"    s_cmp_lg_u32 s32, 0\n    s_cbranch_scc1 {P}_done\n    s_mov_b64 exec, 1\n    buffer_atomic_add v3, v2, s[8:11], s46 offen sc0 sc1\n    s_waitcnt vmcnt(0)\n"
              f"    v_readfirstlane_b32 s48, v3\n    s_cmp_lg_u32 s48, 31\n    s_cbranch_scc1 {P}_done\n    s_mov_b32 exec_lo, -1\n"
              f"    buffer_store_dword v5, v4, s[8:11], s47 offen sc1\n{P}_done:")]
    o += [I("s_endpgm")]
    a, _ = finalize(o, st)
    txt += text_of(a) + "\n"
    o = [RAW(f"{P}_fallback:"), I("s_waitcnt vmcnt(0) lgkmcnt(0)"), I("s_nop 15"),
         I("s_mov_b32 s18, 0"), I("s_mov_b32 s22, 0"), I("s_mov_b32 s34, 1"), I("s_mov_b32 s35, 0"), I("s_mov_b32 s41, s42"), I("s_mov_b32 s40, s43"),
         I(f"v_mov_b32 v{T0}, 0xff7fffff"), I(f"v_mov_b32 v{T0+1}, 0xff7fffff")]
    for q in range(2): o += [I(f"v_mov_b32 v{QF+8*q+5}, 0"), I(f"v_mov_b32 v{QF+8*q+6}, 0")]
    o += [RAW(f"{P}_fb_chunk:"), I("s_barrier")] + dma_chunk() + [I("s_waitcnt vmcnt(0)"), I("s_barrier"),
          I(f"v_mov_b32 v{VKA}, v{LKA}"), I(f"v_mov_b32 v{VKB}, v{LKB}"), I("s_mov_b32 s36, 0"), RAW(f"{P}_fb_tile:")]
    o += k_reads(0) + qk(0, 0) + qk(0, 1) + max16(T0, S(0, 0)) + max16(T0+1, S(0, 1))
    o += [I(f"v_add_u32 v{VKA}, 1280, v{VKA}"), I(f"v_add_u32 v{VKB}, 1280, v{VKB}"),
          I("s_add_u32 s36, s36, 1"), I("s_cmp_lt_u32 s36, 8"), I(f"s_cbranch_scc1 {P}_fb_tile"),
          I(f"s_add_u32 s41, s41, {CH}"), I("s_add_u32 s35, s35, 1"), I("s_cmp_lt_u32 s35, 8"), I(f"s_cbranch_scc1 {P}_fb_chunk")]
    o += xhalf_max(T0, T0+2) + xhalf_max(T0+1, T0+3) + set_m(T0, 0, T0+4) + set_m(T0+1, 1, T0+8)
    for r in range(32): o.append(I(f"v_mov_b32 v{OO+r}, 0"))
    o += [I("s_barrier"), I("s_mov_b32 s41, s42")] + dma_chunk()
    o += [I(f"s_add_u32 s40, s43, {SLOTB}"), I(f"s_add_u32 s41, s42, {CH}")] + dma_chunk()
    o += [I("s_mov_b32 s55, 0"), I("s_mov_b32 s58, 6"), I("s_mov_b32 s35, 0"), I(f"s_add_u32 s41, s42, {2*CH}"), I("s_waitcnt vmcnt(0)"), I("s_barrier"), I("s_nop 7"), I(f"s_branch {P}_main")]
    a, _ = finalize(o)
    txt += text_of(a) + "\n"
    return txt
```

```python
from common import *
import k2
from k2 import (S, k_reads, v_reads, qk, pv, softmax_half, dma_chunk, set_m, max16, xhalf_max, dpp_reduce,
                SLOTB, L_Q, L_MISC, QF, KF, VF, SS, PP, OO, VKA, VKB, VVA, NKA, NKB, NVA, LKA, LKB, LVA, VD, VD4, T0)
EXP = os.environ.get('EXP', '').split(',')
LDS_BYTES = 74240
PRIO_A = int(os.environ.get('PRIO_A', '2')); PRIO_B = int(os.environ.get('PRIO_B', '0'))

import attn
def role_a(): return attn.role_a(1)

ZG = 2432; ZSLOT = 4*ZG; ZBASE = 32768
ACC = 16
ZF = [88, 124]
WFr = [160, 176]
Z1P = 192
VA = 228
VZ = 232
RB = 233
RA = 235
VT = 236
TB = 238
VX1 = 244
VA1 = 248
RT1 = 251; RT8 = 252
VP = 253
LB_MISC = 71680
BURST = int(os.environ.get('BURST', '0'))
def accr(T, tt): return ACC + 16*(T >> 1) + 8*tt + 4*(T & 1) if T < 8 else ACC + 64 + 4*tt

def dma_rows(slot, vo, srdn, so):
    g = [[I(f"s_add_u32 m0, s40, {slot*16384}")]]
    for p in range(4): g.append([I(f"buffer_load_dwordx4 v{vo+p}, {srdn}, {so} offen offset:{1024*p} lds", tag=f"W{slot}")])
    g[-1].append(I(f"s_add_u32 {so}, {so}, 128"))
    return g
def gdma_w(slot): return dma_rows(slot, VA, "s[12:15]", "s42")
def pdma_x(slot): return dma_rows(slot, VX1, "s[36:39]", "s34")
def dma_img(slot, vos, srdn, so, step, fl):
    return [[I(f"s_add_u32 m0, s41, {slot*ZSLOT}")],
            [I(f"buffer_load_dwordx4 v{vos[0]}, {srdn}, {so} offen{fl} lds", tag=f"D{slot}")],
            [I(f"buffer_load_dwordx4 v{vos[1]}, {srdn}, {so} offen offset:1024{fl} lds", tag=f"D{slot}")],
            [I("s_mov_b64 exec, 0xffff"), I(f"buffer_load_dwordx4 v{vos[2]}, {srdn}, {so} offen offset:2048{fl} lds", tag=f"D{slot}"), I("s_mov_b64 exec, -1"),
             I(f"s_add_u32 {so}, {so}, {step}")]]
def gdma_z(slot): return dma_img(slot, [VZ]*3, "s[8:11]", "s43", 4*36864, " sc1")
def pdma_a(slot): return dma_img(slot, [VA1, VA1+1, VA1+2], "s[20:23]", "s49", 32*9216, "")
if 'p1lin' in EXP:
    def pdma_a(slot): return dma_img(slot, [VZ]*3, "s[20:23]", "s49", 9216, "")
def flat(g): return [x for l in g for x in l]
def areads(slot, st_, tr):
    z = ZF[st_]
    if not tr: return [I(f"ds_read_b128 v[{z+4*i}:{z+4*i+3}], v{RA if i < 8 else RT8} offset:{slot*ZSLOT + (512*(i>>1) + 128*(i&1) if i < 8 else 0)}") for i in range(9)]
    o = []
    for T in range(9):
        for h in range(2):
            if T < 8: o.append(I(f"ds_read_b64_tr_b16 v[{z+4*T+2*h}:{z+4*T+2*h+1}], v{RT1} offset:{slot*ZSLOT + 4608*h + 64*(T>>1) + 16*(T&1)}"))
            else: o.append(I(f"ds_read_b64_tr_b16 v[{z+4*T+2*h}:{z+4*T+2*h+1}], v{RT8} offset:{slot*ZSLOT + 4608*h}"))
    return o
def wreads(slot):
    w = WFr[slot]
    return [I(f"ds_read_b128 v[{w+8*ks+4*tt}:{w+8*ks+4*tt+3}], v{RB+ks} offset:{slot*16384 + 2048*tt}") for ks in range(2) for tt in range(2)]
def gmfmas(s, zero=False):
    z = ZF[s % 2]; w = WFr[(s >> 1) & 1] + 8*(s & 1)
    return [I(f"v_mfma_f32_16x16x32_bf16 v[{accr(T,tt)}:{accr(T,tt)+3}], v[{z+4*T}:{z+4*T+3}], v[{w+4*tt}:{w+4*tt+3}], " + ("0" if zero else f"v[{accr(T,tt)}:{accr(T,tt)+3}]"))
            for T in range(9) for tt in range(2)]
SYNC = int(os.environ.get('SYNC', '4'))
def gstage(s, dm, last=False, tr=False, zero=False, pre=()):
    ns = (s + 1) % 4
    mf = gmfmas(s, zero)
    if last: return mf
    tags = [f"D{ns}"] + ([f"W{(ns >> 1) & 1}"] if s & 1 else [])
    rd = areads(ns, ns % 2, tr)
    if 'halfz' in EXP: rd = rd[(s & 1)::2]
    if s & 1: rd = wreads((ns >> 1) & 1)[:2] + rd + wreads((ns >> 1) & 1)[2:]
    side = []
    rd = [[x] for x in rd]; dm = list(dm)
    while rd or dm:
        if dm: side.append(dm.pop(0))
        if rd: side.append(rd.pop(0))
        if rd and len(rd) > len(dm): side.append(rd.pop(0))
    o = mf[:SYNC] + [WAITDS()] + ([WAITVM(tags)] if 'novm' not in EXP else []) + list(pre) + ([I("s_barrier")] if 'nobar' not in EXP and not ('halfbar' in EXP and s & 1) else [])
    if 'nodma' in EXP: side = [g for g in side if not any(x.ldsdma for x in g)]
    rest = mf[SYNC:]; n = len(rest); m = len(side); j = 0
    if BURST: o.append(I("s_setprio 3"))
    for i, x in enumerate(rest):
        o.append(x)
        if BURST and i == BURST - 1: o.append(I("s_setprio 0"))
        tgt = min(m, -(-(i + 1) * m // n))
        o += flat(side[j:tgt]); j = tgt
    return o

def ln_loads():
    R = 64
    o = [I("v_lshlrev_b32 v15, 4, v0"),
         I("s_and_b32 s59, s2, 7"), I("s_lshl_b32 s59, s59, 5"), I("s_lshr_b32 s46, s2, 3"), I("s_add_u32 s59, s59, s46"),
         I("s_mul_i32 s58, s59, 36864"), I(f"s_add_u32 s58, s58, {WS_Z}"), I("s_mov_b32 s46, s58")]
    for i in range(9):
        o.append(I(f"buffer_load_dwordx4 v[{R+4*i}:{R+4*i+3}], v15, s[8:11], s46 offen"))
        if i < 8: o.append(I("s_add_u32 s46, s46, 4096"))
    return o

def ln_compute():
    R = 64; F = 100; A = 16; B = 32
    o = []
    for i in range(9):
        for d in range(4):
            k = 4*i + d
            o += [I(f"v_lshlrev_b32 v{F+2*k}, 16, v{R+k}"), I(f"v_and_b32 v{F+2*k+1}, 0xffff0000, v{R+k}")]
        if i == 0:
            for j in range(8): o.append(I(f"v_mul_f32 v{A+8+j}, v{F+j}, v{F+j}"))
        else:
            for j in range(8): o.append(I(f"v_add_f32 v{A+j}, v{F+j if i == 1 else A+j}, v{F+8*i+j}"))
            for j in range(8): o.append(I(f"v_fmac_f32 v{A+8+j}, v{F+8*i+j}, v{F+8*i+j}"))
    o += [I("v_and_b32 v2, 1, v1"), I("v_cmp_eq_u32 s[50:51], 0, v2"), I("v_and_b32 v2, 2, v1"), I("v_cmp_eq_u32 s[52:53], 0, v2"),
          I("v_and_b32 v2, 4, v1"), I("v_cmp_eq_u32 s[54:55], 0, v2"), I("v_and_b32 v2, 8, v1"), I("v_cmp_eq_u32 s[56:57], 0, v2")]
    n = 16
    for step, (msk, dpp) in enumerate((("s[56:57]", "row_mirror"), ("s[54:55]", "row_half_mirror"), ("s[52:53]", "quad_perm:[2,3,0,1]"), ("s[50:51]", "quad_perm:[1,0,3,2]"))):
        h = n // 2
        for i in range(h): o.append(I(f"v_cndmask_b32 v{B+i}, v{A+i}, v{A+h+i}, {msk}"))
        for i in range(h): o.append(I(f"v_cndmask_b32 v{A+i}, v{A+h+i}, v{A+i}, {msk}"))
        for i in range(h): o.append(I(f"v_add_f32_dpp v{A+i}, v{B+i}, v{A+i} {dpp} row_mask:0xf bank_mask:0xf"))
        n = h
    o += [I(f"v_lshlrev_b32 v2, 2, v0"), I(f"v_add_u32 v2, {LB_MISC}, v2"), I(f"ds_write_b32 v2, v{A}"),
          I("v_and_b32 v3, 15, v1"), I("v_lshlrev_b32 v3, 2, v3"), I(f"v_add_u32 v3, {LB_MISC}, v3"),
          WAITDS(), I("s_barrier")]
    for r in range(8): o.append(I(f"ds_read2_b32 v[{B+2*r}:{B+2*r+1}], v3 offset0:{32*r} offset1:{32*r+16}"))
    for r in range(8): o.append(I(f"v_add_f32 v{B+r}, v{B+r}, v{B+8+r}"))
    for r in range(4): o.append(I(f"v_add_f32 v{B+r}, v{B+r}, v{B+4+r}"))
    o += [I(f"v_add_f32 v{B}, v{B}, v{B+2}"), I(f"v_add_f32 v{B+1}, v{B+1}, v{B+3}"), I(f"v_add_f32 v{B}, v{B}, v{B+1}"),
          I(f"v_mul_f32 v{B}, {f32(1.0/2304)}, v{B}"),
          I(f"v_mov_b32_dpp v{B+1}, v{B} row_ror:8 row_mask:0xf bank_mask:0xf"),
          I(f"v_fma_f32 v{B+1}, -v{B}, v{B}, v{B+1}"), I(f"v_max_f32 v{B+1}, 0, v{B+1}"), I(f"v_add_f32 v{B+1}, {f32(1e-5)}, v{B+1}"),
          I(f"v_rsq_f32 v{B+1}, v{B+1}"), I(f"v_mul_f32 v{B}, -v{B}, v{B+1}" if False else f"v_mul_f32_e64 v{B}, -v{B}, v{B+1}")]
    for j in range(8): o.append(I(f"v_readlane_b32 s{50+j}, v{B}, {j}"))
    for j in range(8): o.append(I(f"v_mov_b32 v{A+j}, s{50+j}"))
    for j in range(8): o.append(I(f"v_readlane_b32 s{50+j}, v{B+1}, {j}"))
    for i in range(9):
        for j in range(8): o.append(I(f"v_fma_f32 v{F+8*i+j}, v{F+8*i+j}, s{50+j}, v{A+j}"))
        for j in range(4): o.append(I(f"v_cvt_pk_bf16_f32 v{R+4*i+j}, v{F+8*i+2*j}, v{F+8*i+2*j+1}"))
        o.append(I(f"buffer_store_dwordx4 v[{R+4*i}:{R+4*i+3}], v15, s[8:11], s58 offen sc1", tag="LNST"))
        o.append(I("s_add_u32 s58, s58, 4096"))
    return o
def gate_loads():
    o = [I("s_load_dwordx2 s[36:37], s[0:1], 0"), I("s_load_dwordx2 s[20:21], s[0:1], 64"),
         I(f"s_mov_b32 s38, {2048*1152}"), I("s_mov_b32 s39, 0x00020000"), I("s_mov_b32 s22, 1152"), I("s_mov_b32 s23, 0x00020000"),
         I("v_and_b32 v191, 31, v0"), I("v_lshlrev_b32 v191, 4, v191"), I("v_lshrrev_b32 v190, 5, v0"), I("v_mul_u32_u24 v190, 1152, v190"), I("v_add_u32 v190, v190, v191"),
         I("v_mov_b32 v189, 0x7f000000"), I("v_cmp_gt_u32 vcc, 128, v191"), I("v_cndmask_b32 v189, v189, v190, vcc"),
         I("s_mul_i32 s46, s59, 9216"), I("s_waitcnt lgkmcnt(0)")]
    for i in range(3):
        o += [I(f"buffer_load_dwordx4 v[{192+4*i}:{195+4*i}], v{190 if i < 2 else 189}, s[36:39], s46 offen offset:{512*i}"),
              I(f"buffer_load_dwordx4 v[{204+4*i}:{207+4*i}], v191, s[20:23], 0 offen offset:{512*i}")]
    return o
def gate_compute():
    o = [I("v_mov_b32 v190, 0"), I("v_mov_b32 v191, 0")]
    for k in range(12):
        a, b = 192 + k, 204 + k
        o += [I(f"v_lshlrev_b32 v4, 16, v{a}"), I(f"v_lshlrev_b32 v5, 16, v{b}"), I(f"v_and_b32 v6, 0xffff0000, v{a}"), I(f"v_and_b32 v7, 0xffff0000, v{b}"),
              I("v_fmac_f32 v190, v4, v5"), I("v_fmac_f32 v191, v6, v7")]
    o.append(I("v_add_f32 v190, v190, v191"))
    for m in ("row_shr:1", "row_shr:2", "row_shr:4", "row_shr:8"): o.append(I(f"v_add_f32_dpp v190, v190, v190 {m} bound_ctrl:0"))
    o += [I("v_add_f32_dpp v190, v190, v190 row_bcast:15 row_mask:0xa"),
          I(f"v_mul_f32 v190, {f32(-LOG2E)}, v190"), I("v_exp_f32 v190, v190"), I("v_add_f32 v190, 1.0, v190"), I("v_rcp_f32 v190, v190"),
          I("v_lshrrev_b32 v4, 5, v0"), I("v_lshlrev_b32 v4, 2, v4"), I("s_lshl_b32 s46, s59, 5"), I(f"s_add_u32 s46, s46, {WS_G}"),
          I("s_mov_b32 exec_lo, 0x80000000"), I("s_mov_b32 exec_hi, 0x80000000"),
          I("buffer_store_dword v190, v4, s[8:11], s46 offen sc1", tag="LNST"), I("s_mov_b64 exec, -1")]
    return o

def role_b():
    LATE = 'lnearly' not in EXP
    o = [I("s_setprio 3" if not LATE else "s_setprio 1"), I("s_sub_u32 s2, s2, 256")] + ([] if LATE else ln_loads() + gate_loads())
    o += [
          I("s_and_b32 s30, s2, 1"), I("s_lshl_b32 s30, s30, 3"), I("s_bfe_u32 s46, s2, 0x30003"), I("s_add_u32 s30, s30, s46"),
          I("s_bfe_u32 s31, s2, 0x20001"), I("s_lshl_b32 s31, s31, 2"), I("s_lshr_b32 s46, s2, 6"), I("s_add_u32 s31, s31, s46"),
          I("s_lshl_b32 s33, s30, 2"), I("s_add_u32 s33, s33, s32"),
          I("s_lshl_b32 s42, s33, 17"),
          I(f"v_lshlrev_b32 v{VZ}, 4, v1"),
          I("s_lshl_b32 s40, s32, 12"), I(f"s_mul_i32 s41, s32, {ZG}"), I(f"s_add_u32 s41, s41, {ZBASE}"), I("s_mul_i32 s44, s32, 36864"),
          I("v_lshrrev_b32 v7, 3, v1"),
          I("v_lshrrev_b32 v3, 4, v1"), I("v_and_b32 v4, 7, v1"), I("v_xor_b32 v4, v4, v3"), I("v_lshlrev_b32 v4, 4, v4"), I("v_xor_b32 v8, 64, v4")]
    o += srd(12, 24, 25, 2048*4096) + srd(16, 26, 27, 4096)
    o += [I("s_mul_i32 s48, s31, 2304"), I(f"s_add_u32 s48, s48, {WS_Z}"), I("s_add_u32 s43, s48, s44"),
          I("v_lshlrev_b32 v2, 12, v7"),
          I(f"v_add_u32 v{VA}, v2, v4"), I(f"v_add_u32 v{VA+1}, v2, v8"), I(f"v_add_u32 v{VA+1}, {32768-1024}, v{VA+1}"),
          I(f"v_add_u32 v{VA+2}, {65536-2048}, v{VA}"), I(f"v_add_u32 v{VA+3}, {65536-2048}, v{VA+1}"),
          I("v_and_b32 v2, 15, v1"), I("v_bfe_u32 v9, v1, 1, 3"), I("v_xor_b32 v4, v9, v3"), I("v_lshlrev_b32 v4, 4, v4"),
          I("v_lshl_add_u32 v4, v2, 7, v4"), I(f"v_add_u32 v{RB}, s40, v4"), I(f"v_xor_b32 v{RB+1}, 64, v{RB}"),
          I(f"v_mul_u32_u24 v4, {ZG}, v3"), I("v_lshl_add_u32 v4, v2, 4, v4"), I("s_and_b32 s46, s31, 1"),
          I("s_lshl_b32 s47, s46, 11"), I(f"s_sub_u32 s47, {ZBASE + 2048}, s47"), I(f"v_add_u32 v{RT8}, s47, v4"),
          I("v_and_b32 v9, 8, v1"), I("v_lshl_add_u32 v4, v9, 4, v4"), I("s_lshl_b32 s47, s46, 8"), I(f"s_add_u32 s47, s47, {ZBASE}"), I(f"v_add_u32 v{RA}, s47, v4"),
          I("v_lshlrev_b32 v10, 1, v2"), I("v_lshlrev_b32 v11, 2, v2"),
          I("s_lshr_b32 s44, s2, 4"), I("s_lshl_b32 s44, s44, 7"), I(f"s_add_u32 s44, s44, {WS_CNT}"), I("s_and_b32 s45, s2, 63"), I("s_lshl_b32 s45, s45, 7"), I(f"s_add_u32 s45, s45, {WS_CNT + 4096}"),
          I(f"v_lshlrev_b32 v{VP}, 7, v1"), I(f"v_mov_b32 v{VT}, 0"), I(f"v_mov_b32 v{VT+1}, 1"),
          I("s_mul_i32 s46, s33, 184320"), I(f"s_add_u32 s46, s46, {WS_ACT + 18*1024}"),
          I("s_mul_i32 s34, s31, 9"), I("s_add_u32 s34, s34, 1"), I("s_lshr_b32 s34, s34, 1"), I("s_lshl_b32 s34, s34, 10"), I("s_add_u32 s34, s34, s46"),
          I("s_lshr_b32 s49, s31, 1"), I("s_mul_i32 s49, s49, 9216"), I("s_add_u32 s49, s49, 4096"), I("s_and_b32 s47, s31, 1"), I("s_lshl_b32 s47, s47, 9"),
          I("s_add_u32 s49, s49, s47"), I("s_add_u32 s49, s49, s46"),
          I(f"v_add_u32 v{VX1}, 92160, v{VZ}"),
          I("v_and_b32 v4, 31, v1"), I("v_lshlrev_b32 v4, 4, v4"), I("v_lshrrev_b32 v9, 5, v1"), I(f"v_lshl_add_u32 v{VX1+1}, v9, 3, v4"),
          I(f"v_add_u32 v{VX1+2}, 92160, v{VX1+1}")]
    if LATE: o += ln_loads() + gate_loads() + [I("s_setprio 3")]
    early = flat(gdma_w(0)) + flat(gdma_w(1))
    early += [I("s_lshl_b32 s46, s33, 6"),
          I(f"buffer_load_ushort v{TB}, v10, s[16:19], s46 offen"), I(f"buffer_load_ushort v{TB+1}, v10, s[16:19], s46 offen offset:32")]
    WFB = MERGE and 'wfb' in EXP
    def remap(items):
        out = []
        for x in items:
            if x.text is None: out.append(x); continue
            t = x.text
            if t == "s_barrier": out.append(I(f"s_add_u32 s28, s28, {ZBASE}")); continue
            t = t.replace("s58", "s29").replace("s50", "s28").replace(f"v{attn.VD},", f"v{VZ},")
            if "buffer_store" in t: out.append(I(t + " sc1", "LNST"))
            else: out.append(I(t, x.tag))
        return out
    if WFB: o += remap(attn.wf_loads())
    o += stamp(7)
    ln = ln_compute()
    if WFB: ln = ln + remap(attn.wf_store())
    cut = next(i for i, x in enumerate(ln) if x.mn == "s_barrier")
    WLATE = 'wlate' in EXP
    if WLATE:
        o += ln[:cut-1] + gate_compute() + ln[cut-1:]
        etxt = text_of(finalize(early)[0])
        o += [RAW("    s_cmp_eq_u32 s32, 0\n    s_cbranch_scc1 KB_w0\n" + etxt + "\n    s_waitcnt vmcnt(10)\n    s_branch KB_w1\nKB_w0:\n    s_waitcnt vmcnt(0)\nKB_w1:"), I("s_waitcnt vmcnt(63)")]
    else: o += ln[:cut-1] + early + gate_compute() + ln[cut-1:]
    o += stamp(2)
    o += [I("s_lshl_b32 s59, s33, 7"), I(f"s_add_u32 s59, s59, {WS_G}"),
          ] + ([] if WLATE else [WAITVM("LNST")]) + [I("s_barrier")] + stamp(6)
    o += [RAW("    s_cmp_lg_u32 s32, 0\n    s_cbranch_scc1 KB_pubd\n    s_mov_b64 exec, 1\n"
              f"    v_mov_b32 v{VP+1}, 1\n"
              f"    buffer_atomic_add v{VP+1}, v{VT}, s[8:11], s44 offen sc0 sc1\n    s_waitcnt vmcnt(0)\n"
              f"    v_readfirstlane_b32 s47, v{VP+1}\n    s_cmp_lg_u32 s47, 15\n    s_cbranch_scc1 KB_notlast\n"
              f"    s_mov_b64 exec, -1\n    s_mov_b32 s47, {WS_CNT + 4096}\n    buffer_atomic_add v{VT+1}, v{VP}, s[8:11], s47 offen sc1\n    s_mov_b64 exec, 1\n"
              f"KB_notlast:\n    s_mov_b64 exec, -1\nKB_pubd:")]
    o += [RAW("    s_cmp_lg_u32 s32, 0\n    s_cbranch_scc1 KB_polled\n    s_mov_b64 exec, 1\n    s_mov_b32 s47, 0\nKB_poll:\n"
              f"    buffer_load_dword v{VP+1}, v{VT}, s[8:11], s45 offen sc1\n    s_add_u32 s47, s47, 1\n    s_waitcnt vmcnt(0)\n"
              f"    v_and_b32 v{VP+1}, 0xff, v{VP+1}\n    v_cmp_ne_u32 vcc, 16, v{VP+1}\n    s_cmp_gt_u32 s47, 0x10000\n    s_cbranch_scc1 KB_pdone\n    s_cbranch_vccz KB_pdone\n    s_sleep 1\n    s_branch KB_poll\n"
              "KB_pdone:\n    s_mov_b64 exec, -1\n" + (etxt + "\n" if WLATE else "") + "KB_polled:"),
          I("s_barrier")] + stamp(3)
    for k in range(4): o += flat(gdma_z(k))
    o += [I(f"buffer_load_dword v{TB+2}, v11, s[8:11], s59 offen sc1"), I(f"buffer_load_dword v{TB+3}, v11, s[8:11], s59 offen offset:64 sc1")]
    o += [WAITVM(["D0", "W0"]), I("s_barrier")] + wreads(0) + areads(0, 0, False)
    o += [I("s_setprio 0"), I("s_mov_b32 s35, 0")] + stamp(4)
    def dm2(k):
        s_ = k % 4
        return (gdma_w(s_ >> 1) if s_ % 2 == 0 else []) + gdma_z(s_)
    for k in range(4): o += gstage(k, dm2(k), zero=(k == 0))
    o += [RAW("KB_loop:")]
    a, st = finalize(o); txt = text_of(a) + "\n"
    body = []
    HI = os.environ.get('BHI', '0-14' if MERGE else '')
    if HI:
        lo, hi = map(int, HI.split('-'))
        body += [RAW(f"    s_setprio 0\n    s_sub_u32 s46, s35, {lo}\n    s_cmp_ge_u32 s46, {hi-lo}\n    s_cbranch_scc1 KB_lo\n    s_setprio 3\nKB_lo:")]
    for k in range(4): body += gstage(k, dm2(k))
    body += [I("s_add_u32 s35, s35, 1"), I("s_cmp_lt_u32 s35, 14"), I("s_cbranch_scc1 KB_loop")]
    a, st = finalize_loop(body, st); txt += text_of(a) + "\n"
    z1 = []
    for c in range(8):
        j, tt = divmod(c, 2)
        z1.append([I(f"buffer_load_dwordx4 v[{Z1P+4*c}:{Z1P+4*c+3}], v{VZ if tt == 0 else VX1}, s[8:11], s34 offen offset:{1024*j}")])
    for tt in range(2): z1.append([I(f"buffer_load_dwordx2 v[{Z1P+32+2*tt}:{Z1P+33+2*tt}], v{VX1+1+tt}, s[8:11], s49 offen")])
    prep = [I(f"v_lshlrev_b32 v{TB}, 16, v{TB}"), I(f"v_lshlrev_b32 v{TB+1}, 16, v{TB+1}"),
          I(f"v_sub_f32 v{TB+2}, 1.0, v{TB+2}"), I(f"v_sub_f32 v{TB+3}, 1.0, v{TB+3}"),
          I(f"v_mul_f32 v{TB}, v{TB}, v{TB+2}"), I(f"v_mul_f32 v{TB+1}, v{TB+1}, v{TB+3}")]
    o = gstage(0, z1[:5]) + gstage(1, z1[5:]) + gstage(2, [[x] for x in prep])
    def quad(a_, z, sc, bi, t, dst):
        x = [I(f"v_lshlrev_b32 v{t}, 16, v{z}"), I(f"v_and_b32 v{t+1}, 0xffff0000, v{z}"),
             I(f"v_lshlrev_b32 v{t+2}, 16, v{z+1}"), I(f"v_and_b32 v{t+3}, 0xffff0000, v{z+1}")]
        for r in range(4): x.append(I(f"v_fma_f32 v{a_+r}, v{a_+r}, v{sc}, v{bi}"))
        for r in range(4): x.append(I(f"v_mul_f32 v{a_+r}, v{a_+r}, v{t+r}"))
        x += [I(f"v_cvt_pk_bf16_f32 v{dst}, v{a_}, v{a_+1}"), I(f"v_cvt_pk_bf16_f32 v{dst+1}, v{a_+2}, v{a_+3}")]
        return x
    D = ZF[0]
    ep = []
    for c in range(8):
        j, tt = divmod(c, 2)
        for q in range(2):
            g = 2*c + q
            ep += quad(ACC + 4*g, Z1P + 2*g, TB+2+tt, TB+tt, 2 + 4*q, D + 4*c + 2*q)
        ep.append(I(f"buffer_store_dwordx4 v[{D+4*c}:{D+4*c+3}], v{VZ if tt == 0 else VX1}, s[8:11], s34 offen offset:{1024*j}"))
    for tt in range(2):
        g = 16 + tt
        ep += quad(ACC + 4*g, Z1P + 2*g, TB+2+tt, TB+tt, 2 + 4*tt, D + 32 + 2*tt)
        ep.append(I(f"buffer_store_dwordx2 v[{D+32+2*tt}:{D+33+2*tt}], v{VX1+1+tt}, s[8:11], s49 offen" + (" sc1" if MERGE else "")))
    mf = gstage(3, [], last=True)
    o += [I("s_setprio 3")] + mf[:6]
    k = 0
    for m in mf[6:]:
        o += [m] + ep[k:k+2]; k += 2
    o += stamp(5) + ep[k:]
    if 'wfb' in EXP and not MERGE:
        o += [I("s_setprio 0"), I(f"v_mov_b32 v{attn.VD}, v{VZ}")] + attn.wf_loads() + attn.wf_store()
    a, st = finalize(o, st); txt += text_of(a) + "\n"
    if MERGE:
        import k34
        txt += "KC_start:\n" + k34.role_c(True, st)
    return txt

def build():
    o = [RAW("    s_cmp_ge_u32 s2, 512\n    s_cbranch_scc1 K23_exit"),
         I("s_load_dwordx2 s[4:5], s[0:1], 88"), I("s_load_dwordx4 s[24:27], s[0:1], 40"),
         I("v_and_b32 v1, 63, v0"), I("v_lshrrev_b32 v2, 6, v0"), I("s_nop 0"), I("v_readfirstlane_b32 s32, v2"),
         I("s_waitcnt lgkmcnt(0)")]
    o += srd(8, 4, 5, WS_USED)
    a, st = finalize(o)
    txt = text_of(a) + "\n    s_cmp_ge_u32 s2, 256\n    s_cbranch_scc1 K23_B\n"
    if 'noA' in EXP: txt += "    s_branch K23_exit\n"
    txt += role_a() + "K23_B:\n" + ("    s_branch K23_exit\n" if 'noB' in EXP else "") + role_b() + "K23_exit:\n"
    return kernel_text("k23_fused_kernel", txt, 256, sgpr=102, kidx=1)

def launch(): return ("k23_fused_kernel", 512, 256, LDS_BYTES, build())
```

```python
from common import *
import attn
EXP = os.environ.get('EXP', '').split(',')
LDS_BYTES = 74240
ACC = 16
BUF = 96
VA = 4; VW = 8; VW4 = 9
FLAGV = '32' if attn.DIRECT else '1'
PRIO_C = int(os.environ.get('PRIO_C', '0'))

def loads_a(b, fl=""):
    r = BUF + 36*b
    return [I(f"buffer_load_dwordx4 v[{r+4*i}:{r+4*i+3}], v{VA+i}, s[8:11], s40 offen{fl}") for i in range(4)] + [I("s_add_u32 s40, s40, 4096")]
def loads_w(b):
    r = BUF + 36*b; fl = " sc1" if MERGE and 'wplain' not in EXP else ""
    return ([I(f"buffer_load_dwordx4 v[{r+16+4*i}:{r+19+4*i}], v{VW}, s[8:11], s41 offen offset:{1024*i}{fl}") for i in range(4)] +
            [I(f"buffer_load_dwordx4 v[{r+32}:{r+35}], v{VW4}, s[8:11], s41 offen{fl}"), I("s_add_u32 s41, s41, 20480")])
def loads(b, fl=""): return zipmerge(loads_a(b, fl), loads_w(b))
def mfmas(b, zero=False):
    r = BUF + 36*b
    order = sorted([(n, t) for n in range(5) for t in range(4)], key=lambda x: (max(x), x))
    return [I(f"v_mfma_f32_16x16x32_bf16 v[{ACC+16*n+4*t}:{ACC+16*n+4*t+3}], v[{r+16+4*n}:{r+19+4*n}], v[{r+4*t}:{r+4*t+3}], " + ("0" if zero else f"v[{ACC+16*n+4*t}:{ACC+16*n+4*t+3}]"))
            for n, t in order]
def mg(m, l): return merge(m, l, start=1, end=14)

def role_c(merged=False, st0=None):
    HF = " sc1" if merged and 'hplain' not in EXP else ""
    if merged:
        o = [I("s_load_dwordx2 s[6:7], s[0:1], 72"), I(f"v_lshlrev_b32 v{VW}, 4, v1"),
             I("s_lshl_b32 s44, s30, 7"), I(f"s_add_u32 s44, s44, {WS_CNT3}"),
             I("s_lshl_b32 s30, s30, 1"), I("s_and_b32 s46, s31, 1"), I("s_add_u32 s30, s30, s46"), I("s_lshr_b32 s31, s31, 1")]
    else:
        o = [I("s_setprio 1"), I("s_sub_u32 s2, s2, 256"), I("s_load_dwordx2 s[6:7], s[0:1], 72"), I(f"v_lshlrev_b32 v{VW}, 4, v1"),
         I("s_and_b32 s30, s2, 7"), I("s_lshl_b32 s30, s30, 2"), I("s_lshr_b32 s46, s2, 6"), I("s_add_u32 s30, s30, s46"),
         I("s_bfe_u32 s31, s2, 0x30003")]
    o += [I(f"s_mul_i32 s42, s30, {4*92160}"), I("s_lshl_b32 s46, s32, 10"), I("s_add_u32 s42, s42, s46"), I(f"s_add_u32 s42, s42, {WS_ACT}"),
         I(f"s_mul_i32 s43, s31, {450*1024}"), I("s_mul_i32 s46, s32, 5120"), I("s_add_u32 s43, s43, s46"), I(f"s_add_u32 s43, s43, {WS_WF}"),
         I(f"s_add_u32 s40, s42, {18*1024}"), I(f"s_add_u32 s41, s43, {18*5120}")]
    for i in range(4):
        o += [I(f"s_add_u32 s46, s32, {i}"), I("s_and_b32 s46, s46, 3"), I(f"s_mul_i32 s{50+i}, s46, 15360"), I("s_mul_i32 s46, s46, 92160"), I(f"v_add_u32 v{VA+i}, s46, v{VW}")]
    o += [I("v_bfe_u32 v2, v1, 3, 1"), I("v_lshlrev_b32 v2, 30, v2"), I(f"v_add_u32 v{VW4}, v{VW}, v2"), I(f"v_add_u32 v{VW4}, 4096, v{VW4}")]
    for i in range(1, 4): o.append(I(f"v_add_u32 v{9+i}, s{50+i}, v{VW}"))
    o += [I(f"v_add_u32 v13, s50, v{VW}"),
          I("v_and_b32 v2, 15, v1"), I("v_mul_u32_u24 v2, 1152, v2"), I("v_lshrrev_b32 v3, 4, v1"), I("v_lshl_add_u32 v14, v3, 4, v2"), I("v_lshl_add_u32 v15, v3, 3, v2"),
          I("s_lshl_b32 s46, s30, 2"), I("s_add_u32 s46, s46, s32"), I(f"s_mul_i32 s46, s46, {16*1152}"), I("s_mul_i32 s47, s31, 144"), I("s_add_u32 s46, s46, s47"),
          I("s_lshl_b32 s45, s30, 3"), I("s_add_u32 s45, s45, s31"), I("s_lshl_b32 s45, s45, 7"), I(f"s_add_u32 s45, s45, {WS_FLG2}"),
          I("v_mov_b32 v2, 0"), I("v_mov_b32 v3, 1"), I("s_mov_b32 s35, 0"), I("s_waitcnt lgkmcnt(0)")]
    o += srd(12, 6, 7, 2048*1152)
    if merged:
        o += [I("s_and_b32 s48, s2, 63"), I("s_lshl_b32 s48, s48, 7"), I(f"s_add_u32 s48, s48, {WS_CNT + 4096}"), I("s_mov_b32 s47, 0")]
        if 'wfb' not in EXP and 'wfk1' not in EXP:
            o += [RAW("    s_cmp_lg_u32 s32, 0\n    s_cbranch_scc1 KC_wok\nKC_wpoll:\n    buffer_load_dword v240, v2, s[8:11], s48 offen sc1\n    s_add_u32 s47, s47, 1\n    s_waitcnt vmcnt(0)\n"
                  "    v_lshrrev_b32 v240, 8, v240\n    v_cmp_ne_u32 vcc, 16, v240\n    s_cmp_gt_u32 s47, 0x40000\n    s_cbranch_scc1 KC_wok\n    s_cbranch_vccz KC_wok\n    s_sleep 2\n    s_branch KC_wpoll\nKC_wok:")]
        o += [I("s_waitcnt vmcnt(0)"), I("s_barrier")] + stamp(8)
        wtxt = text_of(finalize(loads_w(0) + loads_w(1) + loads_w(2))[0])
        o += [RAW("    s_cmp_lg_u32 s32, 0\n    s_cbranch_scc1 KC_arr\n    s_mov_b64 exec, 1\n    buffer_atomic_add v3, v2, s[8:11], s44 offen sc1\n"
                  "    s_mov_b32 s47, 0\nKC_hpoll:\n    buffer_load_dword v3, v2, s[8:11], s44 offen sc1\n    s_add_u32 s47, s47, 1\n    s_waitcnt vmcnt(0)\n"
                  "    v_cmp_ne_u32 vcc, 16, v3\n    s_cmp_gt_u32 s47, 0x40000\n    s_cbranch_scc1 KC_hok\n    s_cbranch_vccz KC_hok\n    s_sleep 1\n    s_branch KC_hpoll\n"
                  "KC_hok:\n    s_mov_b64 exec, -1\n    s_barrier\n" + wtxt + "\n    s_branch KC_go\nKC_arr:")]
        o += loads_w(0) + loads_w(1) + loads_w(2) + [I("s_barrier"), RAW("KC_go:")] + stamp(9)
        o += loads_a(0, HF) + loads_a(1, HF) + loads_a(2, HF) + [I(f"s_setprio {PRIO_C}")]
        o += mg(mfmas(0, True), loads(3, HF)) + mg(mfmas(1), loads(0, HF)) + mg(mfmas(2), loads(1, HF)) + mg(mfmas(3), loads(2, HF)) + mg(mfmas(0), loads(3, HF))
        nloop = 2
    else:
        o += loads(0) + loads(1) + loads(2) + [I(f"s_setprio {PRIO_C}")] + stamp(2)
        o += mg(mfmas(0, True), loads(3))
        nloop = 3
    o += [RAW("KC_loop:")]
    a, st = finalize(o, st0); txt = text_of(a) + "\n"
    body = []
    for b in (1, 2, 3, 0): body += mg(mfmas(b), loads((b + 3) % 4, HF))
    body += [I("s_add_u32 s35, s35, 1"), I(f"s_cmp_lt_u32 s35, {nloop}"), I("s_cbranch_scc1 KC_loop")]
    a, st = finalize_loop(body, st); txt += text_of(a) + "\n"
    o = mg(mfmas(1), [I("buffer_load_dword v3, v2, s[8:11], s45 offen sc1", tag="POLL")] + loads(0, HF)) + mg(mfmas(2), loads(1, HF))
    o += [I("s_mov_b32 s40, s42"), I("s_mov_b32 s41, s43")] + stamp(10 if merged else 4)
    o += [WAITVM("POLL"),
          RAW("    s_mov_b32 s47, 0\nKC_poll:\n    v_cmp_ne_u32 vcc, " + FLAGV + ", v3\n    s_add_u32 s47, s47, 1\n    s_cmp_gt_u32 s47, 0x40000\n    s_cbranch_scc1 KC_polled\n    s_cbranch_vccz KC_polled\n"
              "    s_branch KC_slow\nKC_polled:")] + stamp(11 if merged else 5)
    st_slow = finalize(o, st.clone())[1]
    oob = [I("s_cmp_lt_u32 s32, 2"), I("s_cselect_b32 s40, s40, 0x7f000000"), I("s_cselect_b32 s41, s41, 0x7f000000")]
    o += mg(mfmas(3), loads(2, " sc1")) + mg(mfmas(0), loads(3, " sc1")) + mg(mfmas(1), loads(0, " sc1")) + mg(mfmas(2), loads(1, " sc1"))
    o += oob + mg(mfmas(3), loads(2, " sc1")) + mfmas(0) + mfmas(1) + [I("s_waitcnt vmcnt(0)"), RAW("KC_join:")]
    slow = [RAW("KC_slow:")] + mg(mfmas(3), loads_w(2)) + mg(mfmas(0), loads_w(3)) + mg(mfmas(1), loads_w(0)) + loads_w(1) + [I("s_setprio 3"),
            RAW("KC_spin:\n    buffer_load_dword v3, v2, s[8:11], s45 offen sc1\n    s_add_u32 s47, s47, 1\n    s_waitcnt vmcnt(0)\n"
                "    v_cmp_ne_u32 vcc, " + FLAGV + ", v3\n    s_cmp_gt_u32 s47, 0x40000\n    s_cbranch_scc1 KC_spun\n    s_cbranch_vccz KC_spun\n    s_sleep 1\n    s_branch KC_spin\nKC_spun:")]
    xa = [I(f"buffer_load_dwordx4 v[{240+4*i}:{243+4*i}], v{VA+i}, s[8:11], s40 offen sc1") for i in range(4)]
    slow += stamp(11 if merged else 5) + loads_a(2, " sc1") + loads_a(3, " sc1") + loads_a(0, " sc1") + loads_a(1, " sc1") + oob + xa
    slow += mfmas(2) + loads_w(2) + mfmas(3) + mfmas(0) + mfmas(1)
    slow += [I(f"v_mov_b32 v{BUF+72+r}, v{240+r}") for r in range(16)] + [I("s_waitcnt vmcnt(0)"), I("s_nop 1"), I("s_branch KC_join")]
    slow_txt = text_of(finalize(slow, st_slow)[0]) + "\n"
    last = mfmas(2)
    last.sort(key=lambda x: ((x.wr[0][1] - ACC) % 16 == 0))
    wr = [I(f"ds_write_b128 v{9+i}, v[{ACC+16*n+4*i}:{ACC+16*n+4*i+3}] offset:{5120*(i-1) + 1024*n}") for n in range(5) for i in range(1, 4)]
    wr.sort(key=lambda w: next(k for k, m in enumerate(last) if m.wr[0] == w.rd[1]))
    o += last[:8]
    for k, m in enumerate(last[8:]): o += [m, wr[k]]
    o += wr[12:]
    o += stamp(12 if merged else 3) + [WAITDS(), I("s_barrier")]
    for n in range(5):
        for i in range(3):
            r = BUF + 12*n + 4*i
            o.append(I(f"ds_read_b128 v[{r}:{r+3}], v13 offset:{5120*i + 1024*n}"))
    P = BUF + 64
    for n in range(5):
        r = BUF + 12*n; a_ = ACC + 16*n
        for j in range(4): o.append(I(f"v_add_f32 v{a_+j}, v{a_+j}, v{r+j}"))
        for j in range(4): o.append(I(f"v_add_f32 v{r+4+j}, v{r+4+j}, v{r+8+j}"))
        for j in range(4): o.append(I(f"v_add_f32 v{a_+j}, v{a_+j}, v{r+4+j}"))
        o += [I(f"v_cvt_pk_bf16_f32 v{P+2*n}, v{a_}, v{a_+1}"), I(f"v_cvt_pk_bf16_f32 v{P+2*n+1}, v{a_+2}, v{a_+3}")]
        if n in (1, 3): o.append(I(f"buffer_store_dwordx4 v[{P+2*n-2}:{P+2*n+1}], v14, s[12:15], s46 offen offset:{32*(n-1)}"))
        if n == 4: o += [I("s_mov_b32 exec_hi, 0"), I(f"buffer_store_dwordx2 v[{P+8}:{P+9}], v15, s[12:15], s46 offen offset:128")]
    a, st = finalize(o, st); txt += text_of(a) + "\n    s_endpgm\n" + slow_txt
    return txt

def build():
    o = [RAW("    s_cmp_ge_u32 s2, 512\n    s_cbranch_scc1 K34_exit"),
         I("s_load_dwordx2 s[4:5], s[0:1], 88"),
         I("v_and_b32 v1, 63, v0"), I("v_lshrrev_b32 v2, 6, v0"), I("s_nop 0"), I("v_readfirstlane_b32 s32, v2"),
         I("s_waitcnt lgkmcnt(0)")]
    o += srd(8, 4, 5, WS_USED)
    a, st = finalize(o)
    txt = text_of(a) + "\n    s_cmp_ge_u32 s2, 256\n    s_cbranch_scc1 K34_C\n"
    txt += attn.role_a(2) + "K34_C:\n" + role_c() + "K34_exit:\n"
    return kernel_text("k34_out_kernel", txt, 256, kidx=2)

def launch(): return ("k34_out_kernel", 512, 256, LDS_BYTES, build())
```

```python
from common import *
import k2
from k2 import (S, k_reads, v_reads, qk, pv, softmax_half, dma_chunk, set_m, max16, xhalf_max, dpp_reduce,
                SLOTB, L_Q, L_MISC, QF, KF, VF, SS, PP, OO, VKA, VKB, VVA, NKA, NKB, NVA, LKA, LKB, LVA, VD, VD4, T0)
EXP = os.environ.get('EXP', '').split(',')
LDS_BYTES = 74240
PRIO_A = int(os.environ.get('PRIO_A', '2')); PRIO_B = int(os.environ.get('PRIO_B', '0'))

import attn
def role_a(): return attn.role_a(1)

ZG = 2432; ZSLOT = 4*ZG; ZBASE = 32768
ACC = 16
ZF = [88, 124]
WFr = [160, 176]
Z1P = 192
VA = 228
VZ = 232
RB = 233
RA = 235
VT = 236
TB = 238
VX1 = 244
VA1 = 248
RT1 = 251; RT8 = 252
VP = 253
LB_MISC = 71680
BURST = int(os.environ.get('BURST', '0'))
def accr(T, tt): return ACC + 16*(T >> 1) + 8*tt + 4*(T & 1) if T < 8 else ACC + 64 + 4*tt

def dma_rows(slot, vo, srdn, so):
    g = [[I(f"s_add_u32 m0, s40, {slot*16384}")]]
    for p in range(4): g.append([I(f"buffer_load_dwordx4 v{vo+p}, {srdn}, {so} offen offset:{1024*p} lds", tag=f"W{slot}")])
    g[-1].append(I(f"s_add_u32 {so}, {so}, 128"))
    return g
def gdma_w(slot): return dma_rows(slot, VA, "s[12:15]", "s42")
def pdma_x(slot): return dma_rows(slot, VX1, "s[36:39]", "s34")
def dma_img(slot, vos, srdn, so, step, fl):
    return [[I(f"s_add_u32 m0, s41, {slot*ZSLOT}")],
            [I(f"buffer_load_dwordx4 v{vos[0]}, {srdn}, {so} offen{fl} lds", tag=f"D{slot}")],
            [I(f"buffer_load_dwordx4 v{vos[1]}, {srdn}, {so} offen offset:1024{fl} lds", tag=f"D{slot}")],
            [I("s_mov_b64 exec, 0xffff"), I(f"buffer_load_dwordx4 v{vos[2]}, {srdn}, {so} offen offset:2048{fl} lds", tag=f"D{slot}"), I("s_mov_b64 exec, -1"),
             I(f"s_add_u32 {so}, {so}, {step}")]]
def gdma_z(slot): return dma_img(slot, [VZ]*3, "s[8:11]", "s43", 4*36864, " sc1")
def pdma_a(slot): return dma_img(slot, [VA1, VA1+1, VA1+2], "s[20:23]", "s49", 32*9216, "")
if 'p1lin' in EXP:
    def pdma_a(slot): return dma_img(slot, [VZ]*3, "s[20:23]", "s49", 9216, "")
def flat(g): return [x for l in g for x in l]
def areads(slot, st_, tr):
    z = ZF[st_]
    if not tr: return [I(f"ds_read_b128 v[{z+4*i}:{z+4*i+3}], v{RA if i < 8 else RT8} offset:{slot*ZSLOT + (512*(i>>1) + 128*(i&1) if i < 8 else 0)}") for i in range(9)]
    o = []
    for T in range(9):
        for h in range(2):
            if T < 8: o.append(I(f"ds_read_b64_tr_b16 v[{z+4*T+2*h}:{z+4*T+2*h+1}], v{RT1} offset:{slot*ZSLOT + 4608*h + 64*(T>>1) + 16*(T&1)}"))
            else: o.append(I(f"ds_read_b64_tr_b16 v[{z+4*T+2*h}:{z+4*T+2*h+1}], v{RT8} offset:{slot*ZSLOT + 4608*h}"))
    return o
def wreads(slot):
    w = WFr[slot]
    return [I(f"ds_read_b128 v[{w+8*ks+4*tt}:{w+8*ks+4*tt+3}], v{RB+ks} offset:{slot*16384 + 2048*tt}") for ks in range(2) for tt in range(2)]
def gmfmas(s, zero=False):
    z = ZF[s % 2]; w = WFr[(s >> 1) & 1] + 8*(s & 1)
    return [I(f"v_mfma_f32_16x16x32_bf16 v[{accr(T,tt)}:{accr(T,tt)+3}], v[{z+4*T}:{z+4*T+3}], v[{w+4*tt}:{w+4*tt+3}], " + ("0" if zero else f"v[{accr(T,tt)}:{accr(T,tt)+3}]"))
            for T in range(9) for tt in range(2)]
SYNC = int(os.environ.get('SYNC', '4'))
def gstage(s, dm, last=False, tr=False, zero=False, pre=()):
    ns = (s + 1) % 4
    mf = gmfmas(s, zero)
    if last: return mf
    tags = [f"D{ns}"] + ([f"W{(ns >> 1) & 1}"] if s & 1 else [])
    rd = areads(ns, ns % 2, tr)
    if 'halfz' in EXP: rd = rd[(s & 1)::2]
    if s & 1: rd = wreads((ns >> 1) & 1)[:2] + rd + wreads((ns >> 1) & 1)[2:]
    side = []
    rd = [[x] for x in rd]; dm = list(dm)
    while rd or dm:
        if dm: side.append(dm.pop(0))
        if rd: side.append(rd.pop(0))
        if rd and len(rd) > len(dm): side.append(rd.pop(0))
    o = mf[:SYNC] + [WAITDS()] + ([WAITVM(tags)] if 'novm' not in EXP else []) + list(pre) + ([I("s_barrier")] if 'nobar' not in EXP and not ('halfbar' in EXP and s & 1) else [])
    if 'nodma' in EXP: side = [g for g in side if not any(x.ldsdma for x in g)]
    if 'dmablk' in EXP:
        d = [g for g in side if not any(x.kind == 'ds' for x in g)]; side = [g for g in side if any(x.kind == 'ds' for x in g)]
        o += flat(d)
    if 'dmaend' in EXP:
        d = [g for g in side if not any(x.kind == 'ds' for x in g)]; side = [g for g in side if any(x.kind == 'ds' for x in g)]
        tailx = flat(d)
    else: tailx = []
    rest = mf[SYNC:]; n = len(rest); m = len(side); j = 0
    if BURST: o.append(I("s_setprio 3"))
    for i, x in enumerate(rest):
        o.append(x)
        if BURST and i == BURST - 1: o.append(I("s_setprio 0"))
        tgt = min(m, -(-(i + 1) * m // n))
        o += flat(side[j:tgt]); j = tgt
    return o + tailx

def ln_loads():
    R = 64
    o = [I("v_lshlrev_b32 v15, 4, v0"),
         I("s_and_b32 s59, s2, 7"), I("s_lshl_b32 s59, s59, 5"), I("s_lshr_b32 s46, s2, 3"), I("s_add_u32 s59, s59, s46"),
         I("s_mul_i32 s58, s59, 36864"), I(f"s_add_u32 s58, s58, {WS_Z}"), I("s_mov_b32 s46, s58")]
    for i in range(9):
        o.append(I(f"buffer_load_dwordx4 v[{R+4*i}:{R+4*i+3}], v15, s[8:11], s46 offen"))
        if i < 8: o.append(I("s_add_u32 s46, s46, 4096"))
    return o

def ln_compute():
    R = 64; F = 100; A = 16; B = 32
    o = []
    for i in range(9):
        for d in range(4):
            k = 4*i + d
            o += [I(f"v_lshlrev_b32 v{F+2*k}, 16, v{R+k}"), I(f"v_and_b32 v{F+2*k+1}, 0xffff0000, v{R+k}")]
        if i == 0:
            for j in range(8): o.append(I(f"v_mul_f32 v{A+8+j}, v{F+j}, v{F+j}"))
        else:
            for j in range(8): o.append(I(f"v_add_f32 v{A+j}, v{F+j if i == 1 else A+j}, v{F+8*i+j}"))
            for j in range(8): o.append(I(f"v_fmac_f32 v{A+8+j}, v{F+8*i+j}, v{F+8*i+j}"))
    o += [I("v_and_b32 v2, 1, v1"), I("v_cmp_eq_u32 s[50:51], 0, v2"), I("v_and_b32 v2, 2, v1"), I("v_cmp_eq_u32 s[52:53], 0, v2"),
          I("v_and_b32 v2, 4, v1"), I("v_cmp_eq_u32 s[54:55], 0, v2"), I("v_and_b32 v2, 8, v1"), I("v_cmp_eq_u32 s[56:57], 0, v2")]
    n = 16
    for step, (msk, dpp) in enumerate((("s[56:57]", "row_mirror"), ("s[54:55]", "row_half_mirror"), ("s[52:53]", "quad_perm:[2,3,0,1]"), ("s[50:51]", "quad_perm:[1,0,3,2]"))):
        h = n // 2
        for i in range(h): o.append(I(f"v_cndmask_b32 v{B+i}, v{A+i}, v{A+h+i}, {msk}"))
        for i in range(h): o.append(I(f"v_cndmask_b32 v{A+i}, v{A+h+i}, v{A+i}, {msk}"))
        for i in range(h): o.append(I(f"v_add_f32_dpp v{A+i}, v{B+i}, v{A+i} {dpp} row_mask:0xf bank_mask:0xf"))
        n = h
    o += [I(f"v_lshlrev_b32 v2, 2, v0"), I(f"v_add_u32 v2, {LB_MISC}, v2"), I(f"ds_write_b32 v2, v{A}"),
          I("v_and_b32 v3, 15, v1"), I("v_lshlrev_b32 v3, 2, v3"), I(f"v_add_u32 v3, {LB_MISC}, v3"),
          WAITDS(), I("s_barrier")]
    for r in range(8): o.append(I(f"ds_read2_b32 v[{B+2*r}:{B+2*r+1}], v3 offset0:{32*r} offset1:{32*r+16}"))
    for r in range(8): o.append(I(f"v_add_f32 v{B+r}, v{B+r}, v{B+8+r}"))
    for r in range(4): o.append(I(f"v_add_f32 v{B+r}, v{B+r}, v{B+4+r}"))
    o += [I(f"v_add_f32 v{B}, v{B}, v{B+2}"), I(f"v_add_f32 v{B+1}, v{B+1}, v{B+3}"), I(f"v_add_f32 v{B}, v{B}, v{B+1}"),
          I(f"v_mul_f32 v{B}, {f32(1.0/2304)}, v{B}"),
          I(f"v_mov_b32_dpp v{B+1}, v{B} row_ror:8 row_mask:0xf bank_mask:0xf"),
          I(f"v_fma_f32 v{B+1}, -v{B}, v{B}, v{B+1}"), I(f"v_max_f32 v{B+1}, 0, v{B+1}"), I(f"v_add_f32 v{B+1}, {f32(1e-5)}, v{B+1}"),
          I(f"v_rsq_f32 v{B+1}, v{B+1}"), I(f"v_mul_f32 v{B}, -v{B}, v{B+1}" if False else f"v_mul_f32_e64 v{B}, -v{B}, v{B+1}")]
    for j in range(8): o.append(I(f"v_readlane_b32 s{50+j}, v{B}, {j}"))
    for j in range(8): o.append(I(f"v_mov_b32 v{A+j}, s{50+j}"))
    for j in range(8): o.append(I(f"v_readlane_b32 s{50+j}, v{B+1}, {j}"))
    for i in range(9):
        for j in range(8): o.append(I(f"v_fma_f32 v{F+8*i+j}, v{F+8*i+j}, s{50+j}, v{A+j}"))
        for j in range(4): o.append(I(f"v_cvt_pk_bf16_f32 v{R+4*i+j}, v{F+8*i+2*j}, v{F+8*i+2*j+1}"))
        o.append(I(f"buffer_store_dwordx4 v[{R+4*i}:{R+4*i+3}], v15, s[8:11], s58 offen sc1", tag="LNST"))
        o.append(I("s_add_u32 s58, s58, 4096"))
    return o
def gate_loads():
    o = [I("s_load_dwordx2 s[36:37], s[0:1], 0"), I("s_load_dwordx2 s[20:21], s[0:1], 64"),
         I(f"s_mov_b32 s38, {2048*1152}"), I("s_mov_b32 s39, 0x00020000"), I("s_mov_b32 s22, 1152"), I("s_mov_b32 s23, 0x00020000"),
         I("v_and_b32 v191, 31, v0"), I("v_lshlrev_b32 v191, 4, v191"), I("v_lshrrev_b32 v190, 5, v0"), I("v_mul_u32_u24 v190, 1152, v190"), I("v_add_u32 v190, v190, v191"),
         I("v_mov_b32 v189, 0x7f000000"), I("v_cmp_gt_u32 vcc, 128, v191"), I("v_cndmask_b32 v189, v189, v190, vcc"),
         I("s_mul_i32 s46, s59, 9216"), I("s_waitcnt lgkmcnt(0)")]
    for i in range(3):
        o += [I(f"buffer_load_dwordx4 v[{192+4*i}:{195+4*i}], v{190 if i < 2 else 189}, s[36:39], s46 offen offset:{512*i}"),
              I(f"buffer_load_dwordx4 v[{204+4*i}:{207+4*i}], v191, s[20:23], 0 offen offset:{512*i}")]
    return o
def gate_compute():
    o = [I("v_mov_b32 v190, 0"), I("v_mov_b32 v191, 0")]
    for k in range(12):
        a, b = 192 + k, 204 + k
        o += [I(f"v_lshlrev_b32 v4, 16, v{a}"), I(f"v_lshlrev_b32 v5, 16, v{b}"), I(f"v_and_b32 v6, 0xffff0000, v{a}"), I(f"v_and_b32 v7, 0xffff0000, v{b}"),
              I("v_fmac_f32 v190, v4, v5"), I("v_fmac_f32 v191, v6, v7")]
    o.append(I("v_add_f32 v190, v190, v191"))
    for m in ("row_shr:1", "row_shr:2", "row_shr:4", "row_shr:8"): o.append(I(f"v_add_f32_dpp v190, v190, v190 {m} bound_ctrl:0"))
    o += [I("v_add_f32_dpp v190, v190, v190 row_bcast:15 row_mask:0xa"),
          I(f"v_mul_f32 v190, {f32(-LOG2E)}, v190"), I("v_exp_f32 v190, v190"), I("v_add_f32 v190, 1.0, v190"), I("v_rcp_f32 v190, v190"),
          I("v_lshrrev_b32 v4, 5, v0"), I("v_lshlrev_b32 v4, 2, v4"), I("s_lshl_b32 s46, s59, 5"), I(f"s_add_u32 s46, s46, {WS_G}"),
          I("s_mov_b32 exec_lo, 0x80000000"), I("s_mov_b32 exec_hi, 0x80000000"),
          I("buffer_store_dword v190, v4, s[8:11], s46 offen sc1", tag="LNST"), I("s_mov_b64 exec, -1")]
    return o

def role_b():
    LATE = 'lnearly' not in EXP
    o = [I("s_setprio 3" if not LATE else "s_setprio 1"), I("s_sub_u32 s2, s2, 256")] + ([] if LATE else ln_loads() + gate_loads())
    o += [
          I("s_and_b32 s30, s2, 1"), I("s_lshl_b32 s30, s30, 3"), I("s_bfe_u32 s46, s2, 0x30003"), I("s_add_u32 s30, s30, s46"),
          I("s_bfe_u32 s31, s2, 0x20001"), I("s_lshl_b32 s31, s31, 2"), I("s_lshr_b32 s46, s2, 6"), I("s_add_u32 s31, s31, s46"),
          I("s_lshl_b32 s33, s30, 2"), I("s_add_u32 s33, s33, s32"),
          I("s_lshl_b32 s42, s33, 17"),
          I(f"v_lshlrev_b32 v{VZ}, 4, v1"),
          I("s_lshl_b32 s40, s32, 12"), I(f"s_mul_i32 s41, s32, {ZG}"), I(f"s_add_u32 s41, s41, {ZBASE}"), I("s_mul_i32 s44, s32, 36864"),
          I("v_lshrrev_b32 v7, 3, v1"),
          I("v_lshrrev_b32 v3, 4, v1"), I("v_and_b32 v4, 7, v1"), I("v_xor_b32 v4, v4, v3"), I("v_lshlrev_b32 v4, 4, v4"), I("v_xor_b32 v8, 64, v4")]
    o += srd(12, 24, 25, 2048*4096) + srd(16, 26, 27, 4096)
    o += [I("s_mul_i32 s48, s31, 2304"), I(f"s_add_u32 s48, s48, {WS_Z}"), I("s_add_u32 s43, s48, s44"),
          I("v_lshlrev_b32 v2, 12, v7"),
          I(f"v_add_u32 v{VA}, v2, v4"), I(f"v_add_u32 v{VA+1}, v2, v8"), I(f"v_add_u32 v{VA+1}, {32768-1024}, v{VA+1}"),
          I(f"v_add_u32 v{VA+2}, {65536-2048}, v{VA}"), I(f"v_add_u32 v{VA+3}, {65536-2048}, v{VA+1}"),
          I("v_and_b32 v2, 15, v1"), I("v_bfe_u32 v9, v1, 1, 3"), I("v_xor_b32 v4, v9, v3"), I("v_lshlrev_b32 v4, 4, v4"),
          I("v_lshl_add_u32 v4, v2, 7, v4"), I(f"v_add_u32 v{RB}, s40, v4"), I(f"v_xor_b32 v{RB+1}, 64, v{RB}"),
          I(f"v_mul_u32_u24 v4, {ZG}, v3"), I("v_lshl_add_u32 v4, v2, 4, v4"), I("s_and_b32 s46, s31, 1"),
          I("s_lshl_b32 s47, s46, 11"), I(f"s_sub_u32 s47, {ZBASE + 2048}, s47"), I(f"v_add_u32 v{RT8}, s47, v4"),
          I("v_and_b32 v9, 8, v1"), I("v_lshl_add_u32 v4, v9, 4, v4"), I("s_lshl_b32 s47, s46, 8"), I(f"s_add_u32 s47, s47, {ZBASE}"), I(f"v_add_u32 v{RA}, s47, v4"),
          I("v_lshlrev_b32 v10, 1, v2"), I("v_lshlrev_b32 v11, 2, v2"),
          I("s_lshr_b32 s44, s2, 4"), I("s_lshl_b32 s44, s44, 7"), I(f"s_add_u32 s44, s44, {WS_CNT}"), I("s_and_b32 s45, s2, 63"), I("s_lshl_b32 s45, s45, 7"), I(f"s_add_u32 s45, s45, {WS_CNT + 4096}"),
          I(f"v_lshlrev_b32 v{VP}, 7, v1"), I(f"v_mov_b32 v{VT}, 0"), I(f"v_mov_b32 v{VT+1}, 1"),
          I("s_mul_i32 s46, s33, 184320"), I(f"s_add_u32 s46, s46, {WS_ACT + 18*1024}"),
          I("s_mul_i32 s34, s31, 9"), I("s_add_u32 s34, s34, 1"), I("s_lshr_b32 s34, s34, 1"), I("s_lshl_b32 s34, s34, 10"), I("s_add_u32 s34, s34, s46"),
          I("s_lshr_b32 s49, s31, 1"), I("s_mul_i32 s49, s49, 9216"), I("s_add_u32 s49, s49, 4096"), I("s_and_b32 s47, s31, 1"), I("s_lshl_b32 s47, s47, 9"),
          I("s_add_u32 s49, s49, s47"), I("s_add_u32 s49, s49, s46"),
          I(f"v_add_u32 v{VX1}, 92160, v{VZ}"),
          I("v_and_b32 v4, 31, v1"), I("v_lshlrev_b32 v4, 4, v4"), I("v_lshrrev_b32 v9, 5, v1"), I(f"v_lshl_add_u32 v{VX1+1}, v9, 3, v4"),
          I(f"v_add_u32 v{VX1+2}, 92160, v{VX1+1}")]
    if LATE: o += ln_loads() + gate_loads() + [I("s_setprio 3")]
    early = flat(gdma_w(0)) + flat(gdma_w(1))
    early += [I("s_lshl_b32 s46, s33, 6"),
          I(f"buffer_load_ushort v{TB}, v10, s[16:19], s46 offen"), I(f"buffer_load_ushort v{TB+1}, v10, s[16:19], s46 offen offset:32")]
    WFB = MERGE and 'wfb' in EXP
    def remap(items):
        out = []
        for x in items:
            if x.text is None: out.append(x); continue
            t = x.text
            if t == "s_barrier": out.append(I(f"s_add_u32 s28, s28, {ZBASE}")); continue
            t = t.replace("s58", "s29").replace("s50", "s28").replace(f"v{attn.VD},", f"v{VZ},")
            if "buffer_store" in t: out.append(I(t + " sc1", "LNST"))
            else: out.append(I(t, x.tag))
        return out
    if WFB: o += remap(attn.wf_loads())
    o += stamp(7)
    ln = ln_compute()
    if WFB: ln = ln + remap(attn.wf_store())
    cut = next(i for i, x in enumerate(ln) if x.mn == "s_barrier")
    WLATE = 'wlate' in EXP
    if WLATE:
        o += ln[:cut-1] + gate_compute() + ln[cut-1:]
        etxt = text_of(finalize(early)[0])
        o += [RAW("    s_cmp_eq_u32 s32, 0\n    s_cbranch_scc1 KB_w0\n" + etxt + "\n    s_waitcnt vmcnt(10)\n    s_branch KB_w1\nKB_w0:\n    s_waitcnt vmcnt(0)\nKB_w1:"), I("s_waitcnt vmcnt(63)")]
    else: o += ln[:cut-1] + early + gate_compute() + ln[cut-1:]
    o += stamp(2)
    o += [I("s_lshl_b32 s59, s33, 7"), I(f"s_add_u32 s59, s59, {WS_G}"),
          ] + ([] if WLATE else [WAITVM("LNST")]) + [I("s_barrier")] + stamp(6)
    o += [RAW("    s_cmp_lg_u32 s32, 0\n    s_cbranch_scc1 KB_pubd\n    s_mov_b64 exec, 1\n"
              f"    v_mov_b32 v{VP+1}, 1\n"
              f"    buffer_atomic_add v{VP+1}, v{VT}, s[8:11], s44 offen sc0 sc1\n    s_waitcnt vmcnt(0)\n"
              f"    v_readfirstlane_b32 s47, v{VP+1}\n    s_cmp_lg_u32 s47, 15\n    s_cbranch_scc1 KB_notlast\n"
              f"    s_mov_b64 exec, -1\n    s_mov_b32 s47, {WS_CNT + 4096}\n    buffer_atomic_add v{VT+1}, v{VP}, s[8:11], s47 offen sc1\n    s_mov_b64 exec, 1\n"
              f"KB_notlast:\n    s_mov_b64 exec, -1\nKB_pubd:")]
    o += [RAW("    s_cmp_lg_u32 s32, 0\n    s_cbranch_scc1 KB_polled\n    s_mov_b64 exec, 1\n    s_mov_b32 s47, 0\nKB_poll:\n"
              f"    buffer_load_dword v{VP+1}, v{VT}, s[8:11], s45 offen sc1\n    s_add_u32 s47, s47, 1\n    s_waitcnt vmcnt(0)\n"
              f"    v_and_b32 v{VP+1}, 0xff, v{VP+1}\n    v_cmp_ne_u32 vcc, 16, v{VP+1}\n    s_cmp_gt_u32 s47, 0x10000\n    s_cbranch_scc1 KB_pdone\n    s_cbranch_vccz KB_pdone\n    s_sleep 1\n    s_branch KB_poll\n"
              "KB_pdone:\n    s_mov_b64 exec, -1\n" + (etxt + "\n" if WLATE else "") + "KB_polled:"),
          I("s_barrier")] + stamp(3)
    for k in range(4): o += flat(gdma_z(k))
    o += [I(f"buffer_load_dword v{TB+2}, v11, s[8:11], s59 offen sc1"), I(f"buffer_load_dword v{TB+3}, v11, s[8:11], s59 offen offset:64 sc1")]
    o += [WAITVM(["D0", "W0"]), I("s_barrier")] + wreads(0) + areads(0, 0, False)
    o += [I("s_setprio 0"), I("s_mov_b32 s35, 0")] + stamp(4)
    def dm2(k):
        s_ = k % 4
        return (gdma_w(s_ >> 1) if s_ % 2 == 0 else []) + gdma_z(s_)
    for k in range(4): o += gstage(k, dm2(k), zero=(k == 0))
    o += [RAW("KB_loop:")]
    a, st = finalize(o); txt = text_of(a) + "\n"
    body = []
    HI = os.environ.get('BHI', '0-14' if MERGE else '')
    if HI:
        lo, hi = map(int, HI.split('-'))
        body += [RAW(f"    s_setprio 0\n    s_sub_u32 s46, s35, {lo}\n    s_cmp_ge_u32 s46, {hi-lo}\n    s_cbranch_scc1 KB_lo\n    s_setprio 3\nKB_lo:")]
    for k in range(4): body += gstage(k, dm2(k))
    body += [I("s_add_u32 s35, s35, 1"), I("s_cmp_lt_u32 s35, 14"), I("s_cbranch_scc1 KB_loop")]
    a, st = finalize_loop(body, st); txt += text_of(a) + "\n"
    z1 = []
    for c in range(8):
        j, tt = divmod(c, 2)
        z1.append([I(f"buffer_load_dwordx4 v[{Z1P+4*c}:{Z1P+4*c+3}], v{VZ if tt == 0 else VX1}, s[8:11], s34 offen offset:{1024*j}")])
    for tt in range(2): z1.append([I(f"buffer_load_dwordx2 v[{Z1P+32+2*tt}:{Z1P+33+2*tt}], v{VX1+1+tt}, s[8:11], s49 offen")])
    prep = [I(f"v_lshlrev_b32 v{TB}, 16, v{TB}"), I(f"v_lshlrev_b32 v{TB+1}, 16, v{TB+1}"),
          I(f"v_sub_f32 v{TB+2}, 1.0, v{TB+2}"), I(f"v_sub_f32 v{TB+3}, 1.0, v{TB+3}"),
          I(f"v_mul_f32 v{TB}, v{TB}, v{TB+2}"), I(f"v_mul_f32 v{TB+1}, v{TB+1}, v{TB+3}")]
    o = gstage(0, z1[:5]) + gstage(1, z1[5:]) + gstage(2, [[x] for x in prep])
    def quad(a_, z, sc, bi, t, dst):
        x = [I(f"v_lshlrev_b32 v{t}, 16, v{z}"), I(f"v_and_b32 v{t+1}, 0xffff0000, v{z}"),
             I(f"v_lshlrev_b32 v{t+2}, 16, v{z+1}"), I(f"v_and_b32 v{t+3}, 0xffff0000, v{z+1}")]
        for r in range(4): x.append(I(f"v_fma_f32 v{a_+r}, v{a_+r}, v{sc}, v{bi}"))
        for r in range(4): x.append(I(f"v_mul_f32 v{a_+r}, v{a_+r}, v{t+r}"))
        x += [I(f"v_cvt_pk_bf16_f32 v{dst}, v{a_}, v{a_+1}"), I(f"v_cvt_pk_bf16_f32 v{dst+1}, v{a_+2}, v{a_+3}")]
        return x
    D = ZF[0]
    ep = []
    for c in range(8):
        j, tt = divmod(c, 2)
        for q in range(2):
            g = 2*c + q
            ep += quad(ACC + 4*g, Z1P + 2*g, TB+2+tt, TB+tt, 2 + 4*q, D + 4*c + 2*q)
        ep.append(I(f"buffer_store_dwordx4 v[{D+4*c}:{D+4*c+3}], v{VZ if tt == 0 else VX1}, s[8:11], s34 offen offset:{1024*j}"))
    for tt in range(2):
        g = 16 + tt
        ep += quad(ACC + 4*g, Z1P + 2*g, TB+2+tt, TB+tt, 2 + 4*tt, D + 32 + 2*tt)
        ep.append(I(f"buffer_store_dwordx2 v[{D+32+2*tt}:{D+33+2*tt}], v{VX1+1+tt}, s[8:11], s49 offen" + (" sc1" if MERGE else "")))
    mf = gstage(3, [], last=True)
    o += [I("s_setprio 3")] + mf[:6]
    k = 0
    for m in mf[6:]:
        o += [m] + ep[k:k+2]; k += 2
    o += stamp(5) + ep[k:]
    if 'wfb' in EXP and not MERGE:
        o += [I("s_setprio 0"), I(f"v_mov_b32 v{attn.VD}, v{VZ}")] + attn.wf_loads() + attn.wf_store()
    a, st = finalize(o, st); txt += text_of(a) + "\n"
    if MERGE:
        import k34
        txt += "KC_start:\n" + k34.role_c(True, st)
    return txt

def build():
    o = [RAW("    s_cmp_ge_u32 s2, 512\n    s_cbranch_scc1 K23_exit"),
         I("s_load_dwordx2 s[4:5], s[0:1], 88"), I("s_load_dwordx4 s[24:27], s[0:1], 40"),
         I("v_and_b32 v1, 63, v0"), I("v_lshrrev_b32 v2, 6, v0"), I("s_nop 0"), I("v_readfirstlane_b32 s32, v2"),
         I("s_waitcnt lgkmcnt(0)")]
    o += srd(8, 4, 5, WS_USED)
    a, st = finalize(o)
    txt = text_of(a) + "\n    s_cmp_ge_u32 s2, 256\n    s_cbranch_scc1 K23_B\n"
    if 'noA' in EXP: txt += "    s_branch K23_exit\n"
    txt += role_a() + "K23_B:\n" + ("    s_branch K23_exit\n" if 'noB' in EXP else "") + role_b() + "K23_exit:\n"
    return kernel_text("k23_fused_kernel", txt, 256, sgpr=102, kidx=1)

def launch(): return ("k23_fused_kernel", 512, 256, LDS_BYTES, build())
```

```python
from common import *
from k2 import (S, k_reads, v_reads, qk, pv, softmax_half, set_m, max16, xhalf_max,
                SLOTB, L_Q, L_MISC, QF, KF, VF, SS, PP, OO, VKA, VKB, VVA, NKA, NKB, NVA, LKA, LKB, LVA, VD, VD4, T0)
EXP = os.environ.get('EXP', '').split(',')
DIRECT = 'direct' in EXP
NC1 = int(os.environ.get('NC1', '8'))
PRIO_A = [0, int(os.environ.get('PRIO_A1', '2')), int(os.environ.get('PRIO_A2', '2'))]

VG = 220
CH = 32 * QROW
def dma_chunk():
    o = [I("s_mov_b32 m0, s40")]
    for p in range(4): o.append(I(f"buffer_load_dwordx4 v{VG+p}, s[8:11], s41 offen offset:{1024*p} lds", tag="KV"))
    o += [I("s_add_u32 m0, s40, 4096"), I(f"buffer_load_dwordx4 v{VG+4}, s[8:11], s41 offen lds", tag="KV")]
    return o

def tile_body(kt):
    n1 = kt + 1; n2 = kt + 2
    V = softmax_half(kt, 0, 0) + softmax_half(kt, 0, 1) + softmax_half(kt, 1, 0) + softmax_half(kt, 1, 1)
    qa = qk(n1, 0); qb = qk(n1, 1)
    R = k_reads(n2 % 8, n2 >= 8) + v_reads(n1 % 8, n1 >= 8)
    M = [pv(kt - 1, 1, 1), qa[0], qa[1], pv(kt, 0, 0), qb[0], pv(kt, 0, 1), qb[1], pv(kt, 1, 0)]
    return V, M, R

def state_regs():
    return [QF + 4*i for i in range(4)] + [OO + 16*q + 4*i for q in range(2) for i in range(3)]

def wf_loads():
    b = [I("s_load_dwordx2 s[36:37], s[0:1], 16"), I("s_load_dwordx2 s[38:39], s[0:1], 56"),
         I("s_lshl_b32 s48, s2, 2"), I("s_add_u32 s48, s48, s32"), I("s_mov_b32 s23, 0x00020000"),
         I("s_mul_i32 s51, s48, 729"), I("s_lshr_b32 s51, s51, 16"),
         I("s_mul_i32 s52, s51, 90"), I("s_sub_u32 s52, s48, s52"),
         I("s_mul_i32 s51, s51, 144"),
         I("s_sub_u32 s53, s52, 18"), I("s_lshl_b32 s53, s53, 5"),
         I("s_mov_b32 s54, 8"), I("s_mov_b32 s55, 2"), I("s_mov_b32 s56, 16"), I("s_mov_b32 s57, 4"),
         I("s_sub_u32 s47, s52, 16"), I("s_mul_i32 s47, s47, 288"), I("s_add_u32 s47, s47, 16"),
         I(f"s_mov_b32 s22, {2304*1152}"), I("s_waitcnt lgkmcnt(0)"),
         I("s_cmp_lt_u32 s52, 18"),
         I("s_cselect_b32 s20, s36, s38"), I("s_cselect_b32 s21, s37, s39"), I(f"s_cselect_b32 s22, {576*1152}, s22"),
         I("s_cselect_b32 s53, s47, s53"), I("s_cselect_b32 s54, 36, s54"), I("s_cselect_b32 s55, 18, s55"),
         I("s_cselect_b32 s56, 144, s56"), I("s_cselect_b32 s57, 72, s57"),
         I("s_mul_i32 s47, s52, 36"),
         I("s_cmp_lt_u32 s52, 16"),
         I("s_cselect_b32 s53, s47, s53"), I("s_cselect_b32 s54, 8, s54"), I("s_cselect_b32 s55, 2, s55"),
         I("s_cselect_b32 s56, 18, s56"), I("s_cselect_b32 s57, 4, s57"),
         I("s_mulk_i32 s53, 1152"), I("s_mulk_i32 s54, 1152"), I("s_mulk_i32 s55, 1152"), I("s_mulk_i32 s56, 1152"), I("s_mulk_i32 s57, 1152"),
         I("s_add_u32 s53, s53, s51"),
         I("v_lshrrev_b32 v4, 5, v1"), I("v_mul_lo_u32 v4, v4, s55"), I("v_bfe_u32 v5, v1, 4, 1"), I("v_mul_u32_u24 v5, 1152, v5"),
         I("v_and_b32 v7, 15, v1"), I("v_cmp_lt_u32 vcc, 8, v7"), I("v_lshlrev_b32 v7, 4, v7"), I("v_add3_u32 v4, v4, v5, v7"),
         I("v_mov_b32 v5, 0x7f000000"), I("v_cndmask_b32 v6, v4, v5, vcc"),
         I("s_cmp_lt_u32 s48, 720"), I("s_cselect_b32 s22, s22, 0"),
         I("s_mul_i32 s58, s48, 5120"), I(f"s_add_u32 s58, s58, {WS_WF}"), I("s_cmp_lt_u32 s48, 720"), I("s_cselect_b32 s58, s58, 0x7f000000"),
         I("s_lshl_b32 s50, s32, 13"), I("s_barrier")]
    for p in range(8):
        b.append(I(f"s_add_u32 m0, s50, {1024*p}"))
        if p == 0: src = "s53"
        else:
            src = "s47"
            terms = (["s56"] if p & 4 else []) + (["s57"] if p & 2 else []) + (["s54"] if p & 1 else [])
            b.append(I(f"s_add_u32 s47, s53, {terms[0]}"))
            for t in terms[1:]: b.append(I(f"s_add_u32 s47, s47, {t}"))
        b.append(I(f"buffer_load_dwordx4 v6, s[20:23], {src} offen lds", tag="WFD"))
    return b
def wf_store():
    P = 100
    b = [I("v_lshrrev_b32 v4, 4, v1"), I("v_lshlrev_b32 v4, 11, v4"), I("v_bfe_u32 v5, v1, 2, 2"), I("v_lshl_add_u32 v4, v5, 8, v4"),
         I("v_and_b32 v5, 3, v1"), I("v_lshl_add_u32 v4, v5, 3, v4"), I("v_add_u32 v4, s50, v4"), I("v_lshl_add_u32 v7, v5, 3, v4"), WAITVM("WFD")]
    for nt in range(5):
        for h in range(2):
            if nt < 4: b.append(I(f"ds_read_b64_tr_b16 v[{P+4*nt+2*h}:{P+4*nt+2*h+1}], v7 offset:{1024*h + 64*(nt>>1) + 8*(nt&1)}"))
            else: b.append(I(f"ds_read_b64_tr_b16 v[{P+4*nt+2*h}:{P+4*nt+2*h+1}], v4 offset:{1024*h + 128}"))
    for nt in range(5):
        if nt == 4: b.append(I("s_add_u32 s58, s58, 4096"))
        b.append(I(f"buffer_store_dwordx4 v[{P+4*nt}:{P+4*nt+3}], v{VD}, s[8:11], s58 offen offset:{1024*(nt%4)}"))
    return b

def epi_addr():
    o = [I("v_lshrrev_b32 v6, 5, v1")]
    o += [I("s_lshl_b32 s46, s46, 2"), I("s_mul_i32 s46, s46, 92160"), I(f"s_add_u32 s46, s46, {WS_ACT}"),
          I("s_lshr_b32 s50, s30, 1"), I("s_lshl_b32 s50, s50, 10"), I("s_and_b32 s49, s30, 1"), I("s_lshl_b32 s49, s49, 9"),
          I("s_add_u32 s50, s50, s49"), I("s_add_u32 s50, s50, s46"),
          I("s_lshr_b32 s51, s30, 4"), I("s_add_u32 s51, s51, 16"), I("s_lshl_b32 s51, s51, 10"),
          I("s_bfe_u32 s49, s30, 0x20002"), I("s_lshl_b32 s49, s49, 8"), I("s_add_u32 s51, s51, s49"),
          I("s_and_b32 s49, s30, 3"), I("s_lshl_b32 s49, s49, 2"), I("s_add_u32 s51, s51, s49"), I("s_add_u32 s51, s51, s46"),
          I("v_bfe_u32 v3, v1, 4, 1"), I("s_mov_b32 s49, 92160"), I("v_mul_lo_u32 v3, v3, s49"),
          I("v_and_b32 v4, 15, v1"), I("v_lshl_add_u32 v232, v4, 4, v3"), I("v_lshl_add_u32 v233, v6, 8, v232"),
          I(f"v_add_u32 v234, {2*92160}, v232"), I(f"v_add_u32 v235, {2*92160}, v233")]
    return o

MIDC = int(os.environ.get('MIDC', '5'))
def wf_mid(P):
    import re
    smap = {36: 12, 37: 13, 38: 14, 39: 15, 50: 24, 51: 25, 52: 26, 53: 27, 54: 28, 55: 29, 56: 96, 57: 97, 58: 98}
    vmap = {4: 238, 5: 239, 6: 240, 7: 241}
    def rm(t):
        t = re.sub(r"s\[(\d+):(\d+)\]", lambda m: f"s[{smap.get(int(m.group(1)), m.group(1))}:{smap.get(int(m.group(2)), m.group(2))}]", t)
        t = re.sub(r"\bs(\d+)\b", lambda m: f"s{smap.get(int(m.group(1)), m.group(1))}", t)
        t = re.sub(r"\bv(\d+)\b", lambda m: f"v{vmap.get(int(m.group(1)), m.group(1))}", t)
        return t
    slot = ((MIDC - 1) % 3) * SLOTB
    o = []
    for x in wf_loads():
        t = rm(x.text)
        if t.startswith("s_lshl_b32 s24, s32, 13"):
            o += [I(f"s_add_u32 s24, s43, {slot}"), I("s_mul_i32 s99, s32, 3072"), I(f"s_add_u32 s99, s99, {L_Q - 5120}")]; continue
        m = re.match(r"s_add_u32 m0, s24, (\d+)", t)
        if m and int(m.group(1)) >= 5120: t = f"s_add_u32 m0, s99, {m.group(1)}"
        o.append(I(t, x.tag))
    Pk = 100
    o += [I("v_lshrrev_b32 v238, 4, v1"), I("v_lshlrev_b32 v238, 11, v238"), I("v_bfe_u32 v239, v1, 2, 2"), I("v_lshl_add_u32 v238, v239, 8, v238"),
          I("v_and_b32 v239, 3, v1"), I("v_lshl_add_u32 v238, v239, 3, v238"),
          I("v_mov_b32 v240, s24"), I("v_mov_b32 v241, s99"),
          I("v_cmp_gt_u32 vcc, 48, v1"), I("v_cndmask_b32 v242, v241, v240, vcc"), I("v_add_u32 v242, v242, v238"),
          I("v_cndmask_b32 v243, v241, v240, s[44:45]"), I("v_add_u32 v243, v243, v238"),
          I("v_lshl_add_u32 v244, v239, 3, v242"), I("v_lshl_add_u32 v245, v239, 3, v243"), WAITVM("WFD")]
    for nt in range(5):
        for h in range(2):
            if nt < 4: o.append(I(f"ds_read_b64_tr_b16 v[{Pk+4*nt+2*h}:{Pk+4*nt+2*h+1}], v{244+h} offset:{1024*h + 64*(nt>>1) + 8*(nt&1)}"))
            else: o.append(I(f"ds_read_b64_tr_b16 v[{Pk+4*nt+2*h}:{Pk+4*nt+2*h+1}], v{242+h} offset:{1024*h + 128}"))
    for nt in range(5):
        if nt == 4: o.append(I("s_add_u32 s98, s98, 4096"))
        o.append(I(f"buffer_store_dwordx4 v[{Pk+4*nt}:{Pk+4*nt+3}], v{VD}, s[8:11], s98 offen offset:{1024*(nt%4)} sc1"))
    o += [I("s_lshr_b32 s46, s2, 4"), I("s_lshl_b32 s46, s46, 7"), I(f"s_add_u32 s46, s46, {WS_CNT + 2048}"), I(f"s_mov_b32 s47, {WS_CNT + 4096}"),
          I("v_mov_b32 v238, 0"), I("v_mov_b32 v239, 1"), I("v_mov_b32 v240, 0x100"), I("v_lshlrev_b32 v241, 7, v1"),
          I("s_waitcnt vmcnt(0)"), I("s_barrier"),
          RAW(f"    s_cmp_lg_u32 s32, 0\n    s_cbranch_scc1 {P}_wfd\n    s_mov_b64 exec, 1\n    buffer_atomic_add v239, v238, s[8:11], s46 offen sc0 sc1\n    s_waitcnt vmcnt(0)\n"
              f"    v_readfirstlane_b32 s48, v239\n    s_mov_b64 exec, -1\n    s_cmp_lg_u32 s48, 15\n    s_cbranch_scc1 {P}_wfd\n"
              f"    buffer_atomic_add v240, v241, s[8:11], s47 offen sc1\n{P}_wfd:")]
    return o

def role_a(part):
    FULL = (part == 1 and NC1 == 8)
    P = f"A{part}"
    c0 = 0 if part == 1 else NC1
    cend = NC1 if part == 1 else 8
    o = [I("s_setprio 2" if part == 1 else "s_setprio 3"),
         I("s_and_b32 s30, s2, 7"), I("s_lshl_b32 s30, s30, 2"), I("s_lshr_b32 s46, s2, 6"), I("s_add_u32 s30, s30, s46"),
         I("s_bfe_u32 s31, s2, 0x30003"),
         I(f"v_lshlrev_b32 v{VD}, 4, v1"), I(f"v_add_u32 v{VD4}, 4096, v{VD}"),
         I("s_lshr_b32 s46, s32, 1"), I("s_add_u32 s46, s46, 1"), I(f"s_mul_i32 s42, s46, {QPART}"),
         I("s_and_b32 s46, s32, 1"), I(f"s_mul_i32 s46, s46, {16*QROW}"), I("s_add_u32 s42, s42, s46"),
         I("s_mul_i32 s47, s30, 288"), I("v_mov_b32 v5, 9216"), I(f"v_mov_b32 v7, {QROW}")]
    for p in range(5):
        o += [I(f"v_add_u32 v2, {64*p}, v1"), I("v_mul_u32_u24 v3, 3277, v2"), I("v_lshrrev_b32 v3, 16, v3"),
              I("v_mul_u32_u24 v4, 20, v3"), I("v_sub_u32 v2, v2, v4"), I("v_cmp_gt_u32 vcc, 18, v2"),
              I("v_lshl_add_u32 v2, v2, 4, s47"),
              I(f"v_mad_u32_u24 v2, v3, v7, v2"), I(f"v_cndmask_b32 v{VG+p}, v5, v2, vcc")]
        if 0 < p < 4: o.append(I(f"v_subrev_u32 v{VG+p}, {1024*p}, v{VG+p}"))
    o += [
         I("s_mul_i32 s43, s32, 5120"),
         I("s_mov_b32 s40, s43"), I(f"s_add_u32 s41, s42, {CH*c0}")]
    o += [Ins(x.text, "KV0") for x in dma_chunk()]
    o += [I("s_lshl_b32 s53, s2, 2"), I("s_add_u32 s53, s53, s32"), I("s_mul_i32 s53, s53, 10240"), I(f"s_add_u32 s53, s53, {WS_ST}"),
          I("s_add_u32 s54, s53, 8192")]
    if part == 1:
        o += [I("s_lshl_b32 s46, s31, 2"), I("s_add_u32 s46, s46, s32"), I(f"s_mul_i32 s47, s46, {8*QROW}"),
              I("s_mul_i32 s33, s32, 3072"), I(f"s_add_u32 s33, s33, {L_Q}"), I("s_mov_b32 m0, s33")]
        for p in range(3): o.append(I(f"buffer_load_dwordx4 v{VG+p}, s[8:11], s47 offen offset:{1024*p} lds", tag="Q"))
    else:
        for i, r in enumerate(state_regs()):
            o.append(I(f"buffer_load_dwordx4 v[{r}:{r+3}], v{VD4 if 4 <= i < 8 else VD}, s[8:11], {'s54' if i >= 8 else 's53'} offen offset:{1024*(i%4)}"))
    TRI = (part == 1 and 'notri' not in EXP)
    tri = []
    for c in (1, 2): tri += [I(f"s_add_u32 s40, s43, {SLOTB*c}"), I(f"s_add_u32 s41, s42, {CH*(c0+c)}")] + dma_chunk()
    if TRI and 'trilate' not in EXP: o += tri; tri = []
    o += stamp(4)
    o += [I("v_bfe_u32 v2, v1, 4, 1"), I("v_lshlrev_b32 v2, 1, v2"),
          I("v_and_b32 v3, 1, v1"), I("v_add_u32 v3, v2, v3"), I("v_mul_u32_u24 v3, 320, v3"),
          I("v_bfe_u32 v4, v1, 1, 1"), I("v_lshl_add_u32 v3, v4, 3, v3"),
          I("v_bfe_u32 v5, v1, 2, 2"), I("v_lshlrev_b32 v5, 4, v5"),
          I("v_lshrrev_b32 v6, 5, v1"),
          I(f"v_add_u32 v{LKB}, v3, v5"), I(f"v_lshl_add_u32 v{LKA}, v6, 7, v{LKB}"), I(f"v_add_u32 v{LKB}, 256, v{LKB}"),
          I("v_mul_u32_u24 v7, 320, v6"), I("v_and_b32 v8, 31, v1"), I("v_lshl_add_u32 v7, v8, 4, v7"), I(f"v_add_u32 v{LVA}, 10240, v7"),
          I("v_cmp_gt_u32 s[44:45], 32, v1"),
          I("s_mov_b32 s56, 0xfffff"), I("s_mov_b32 s57, 0xfffff")]
    for b in range(2):
        o += [I(f"v_mov_b32 v{KF+8*b+6}, 0x3f80"), I(f"v_mov_b32 v{KF+8*b+7}, 0")]
    for r in range(16): o.append(I(f"v_mov_b32 v{VF+r}, 0"))
    nxt = [I(f"s_add_u32 s40, s43, {SLOTB}"), I(f"s_add_u32 s41, s42, {CH*(c0+1)}")] + dma_chunk()
    if TRI: nxt = tri
    if part == 1:
        o += [I("v_add_u32 v2, v2, v4"), I("v_mul_u32_u24 v2, 320, v2"), I("v_and_b32 v3, 1, v1"), I("v_lshl_add_u32 v2, v3, 3, v2"),
              I(f"v_add3_u32 v{T0}, v2, v5, s33"), I(f"v_lshl_add_u32 v{T0+1}, v6, 7, v{T0}")]
        o += [I("s_load_dwordx2 s[36:37], s[0:1], 16"), I("s_load_dwordx2 s[38:39], s[0:1], 56"),
              ] + ([I("v_and_b32 v228, 15, v1"), I("v_lshlrev_b32 v228, 6, v228"), I("v_lshrrev_b32 v229, 4, v1"), I("v_lshl_add_u32 v228, v229, 12, v228"),
              I("v_mov_b32 v229, 0x7f000000"), I("v_cndmask_b32 v228, v229, v228, s[44:45]"), I("v_lshlrev_b32 v227, 6, v1")] if 't64' in EXP else
              [I("v_and_b32 v228, 7, v1"), I("v_lshlrev_b32 v228, 7, v228"), I("v_lshrrev_b32 v229, 3, v1"), I("v_lshl_add_u32 v228, v229, 12, v228"),
              I("v_mov_b32 v229, 0x7f000000"), I("v_cmp_gt_u32 vcc, 16, v1"), I("v_cndmask_b32 v228, v229, v228, vcc"),
              I("v_lshlrev_b32 v227, 7, v1"), I("v_cndmask_b32 v227, v229, v227, s[44:45]")]) + [
              I("s_lshl_b32 s51, s2, 2"), I("s_add_u32 s51, s51, s32"), I("s_lshl_b32 s52, s51, 13"), I(f"s_sub_u32 s52, s52, {1024*(int(os.environ.get('TC', '1'))-1)}"),
              I("s_mov_b32 s16, s24"), I("s_mov_b32 s17, s25"), I(f"s_mov_b32 s18, {2048*4096}"), I("s_mov_b32 s19, 0x00020000"),
              I("s_sub_u32 s50, s51, 648"), I(f"s_mov_b32 s22, {576*1152}"), I("s_mov_b32 s23, 0x00020000"), I("s_waitcnt lgkmcnt(0)"),
              I("s_cmp_lt_u32 s51, 648"), I("s_cselect_b32 s20, s38, s36"), I("s_cselect_b32 s21, s39, s37"), I(f"s_cselect_b32 s22, {2304*1152}, s22"),
              I("s_cselect_b32 s50, s51, s50"), I("s_lshl_b32 s50, s50, 12")]
        for q in range(2): o += [I(f"v_mov_b32 v{QF+8*q+6}, 0"), I(f"v_mov_b32 v{QF+8*q+7}, 0")]
        for r in range(32): o.append(I(f"v_mov_b32 v{OO+r}, 0"))
        o += [I(f"v_mov_b32 v{VKA}, v{LKA}"), I(f"v_mov_b32 v{VKB}, v{LKB}"), WAITVM("Q")]
        for q in range(2):
            o += [I(f"ds_read_b64_tr_b16 v[{QF+8*q}:{QF+8*q+1}], v{T0+1} offset:{1280*q}"),
                  I(f"ds_read_b64_tr_b16 v[{QF+8*q+2}:{QF+8*q+3}], v{T0+1} offset:{1280*q+64}"),
                  I(f"ds_read_b64_tr_b16 v[{QF+8*q+4}:{QF+8*q+5}], v{T0} offset:{1280*q+256}")]
        o += [I("s_barrier")] + k_reads(0) + nxt
        for q in range(2):
            o += [I(f"v_cndmask_b32 v{QF+8*q+4}, 0, v{QF+8*q+4}, s[44:45]"), I(f"v_mov_b32 v{QF+8*q+5}, 0")]
        o += qk(0, 0) + qk(0, 1)
        o += max16(T0, S(0, 0), True) + max16(T0+1, S(0, 1), True) + xhalf_max(T0, T0+2) + xhalf_max(T0+1, T0+3)
        o += set_m(T0, 0, T0+4) + set_m(T0+1, 1, T0+8) + [I("s_mov_b32 s34, 0")]
    else:
        o += [I("s_lshl_b32 s46, s31, 2"), I("s_add_u32 s46, s46, s32"), I("s_lshl_b32 s47, s46, 8"), I(f"s_add_u32 s47, s47, {WS_G}"),
              I("v_lshlrev_b32 v3, 2, v8"),
              I("buffer_load_dword v230, v3, s[8:11], s47 offen"), I("buffer_load_dword v231, v3, s[8:11], s47 offen offset:128")]
        o += epi_addr()
        for q in range(2):
            for r in range(12, 16): o.append(I(f"v_mov_b32 v{OO+16*q+r}, 0"))
        o += [I("s_mov_b32 s34, 0"), WAITVM("KV0"), I("s_barrier")] + nxt + [I("s_waitcnt vmcnt(7)")]
    lo = c0 + (1 if TRI else 0)
    o += [I(f"s_mov_b32 s55, {lo}"), I(f"s_mov_b32 s58, {max(0, cend - 2 - lo)}")]
    if FULL and MERGE: o += [I(f"s_mov_b32 s33, {MIDC}")] + [I(f"v_mov_b32 v{r}, 0x7f000000") for r in range(232, 236)]
    o += [I(f"s_mov_b32 s35, {c0}"), I(f"s_add_u32 s41, s42, {CH*(c0+2)}"), I(f"s_setprio {PRIO_A[part]}"), I("s_nop 1"), RAW(f"{P}_main:")]
    a, st = finalize(o)
    txt = text_of(a) + "\n"
    o = [I(f"v_mov_b32 v{VKA}, v{LKA}"), I(f"v_mov_b32 v{VKB}, v{LKB}"), I(f"v_mov_b32 v{VVA}, v{LVA}")]
    o += k_reads(0) + k_reads(1) + [I("s_mov_b64 exec, s[56:57]")] + v_reads(0) + [I("s_mov_b64 exec, -1")]
    o += [I(f"v_add_u32 v{NKA}, {SLOTB}, v{LKA}"), I(f"v_add_u32 v{NKB}, {SLOTB}, v{LKB}"), I(f"v_add_u32 v{NVA}, {SLOTB}, v{LVA}"),
          I(f"s_mov_b32 s36, {2*SLOTB}")]
    for r in range(4): o += [I(f"v_mov_b32 v{PP+12+r}, 0"), I(f"v_mov_b32 v{VF+12+r}, 0")]
    o += stamp(2) + qk(0, 0) + qk(0, 1)
    o += [I("s_nop 7"), RAW(f"{P}_loop:")]
    a, st = finalize(o, st)
    txt += text_of(a) + "\n"
    body = []
    if STAMPS and 'cst' in EXP:
        body += [I(f"s_mov_b32 s{SB+2*(5+i)}, s{SB+2*(6+i)}") for i in range(7)] + stamp(12) + [I("s_waitcnt lgkmcnt(0)")]
    for kt in range(8):
        V, M, R = tile_body(kt)
        X = {0: [I("s_waitcnt lgkmcnt(0)"), R[0]], 1: [R[1]], 2: [R[2]],
             3: [I("s_mov_b64 exec, s[56:57]"), R[3], R[4], I("s_mov_b64 exec, -1")]}
        if 'novmask' in EXP: X[3] = [R[3], R[4]]
        if kt == 4:
            X[6] = [I("s_waitcnt vmcnt(0)")]
            X[7] = [I("s_barrier")]
        def gd(i, txt): return RAW(f"    s_cbranch_scc1 {P}_nd{i}\n    {txt}\n{P}_nd{i}:")
        if kt == 4:
            X[4] = [I("s_add_u32 s40, s43, s36")]
            X[5] = [I("s_add_u32 s59, s40, 4096")]
        if kt == 5:
            X[4] = [I("s_sub_u32 s37, s35, s55")]
            X[5] = [I("s_cmp_ge_u32 s37, s58"), I("s_mov_b32 m0, s40")]
            X[6] = [gd(0, f"buffer_load_dwordx4 v{VG+0}, s[8:11], s41 offen lds")]
            X[7] = [gd(1, f"buffer_load_dwordx4 v{VG+1}, s[8:11], s41 offen offset:1024 lds")]
        if kt == 6:
            X[4] = [gd(2, f"buffer_load_dwordx4 v{VG+2}, s[8:11], s41 offen offset:2048 lds")]
            X[5] = [gd(3, f"buffer_load_dwordx4 v{VG+3}, s[8:11], s41 offen offset:3072 lds")]
            X[6] = [I("s_mov_b32 m0, s59")]
            X[7] = [gd(4, f"buffer_load_dwordx4 v{VG+4}, s[8:11], s41 offen lds")]
        TK = int(os.environ.get('TK', '1')); TC = int(os.environ.get('TC', '1'))
        if kt == TK and part == 1 and 'notouch' not in EXP:
            X[4] = [I(f"s_sub_u32 s37, s35, {TC}")]
            X[5] = [I("s_cmp_ge_u32 s37, 3")]
            X[6] = [RAW(f"    s_cbranch_scc1 {P}_nt0\n    buffer_load_dword v229, v228, s[16:19], s52 offen\n{P}_nt0:")]
            X[7] = [I("s_add_u32 s52, s52, 1024")]
        if kt == 2 and part == 1 and 'notouch' not in EXP:
            X[5] = [I("s_cmp_lg_u32 s35, 3")]
            X[6] = [RAW(f"    s_cbranch_scc1 {P}_nt1\n    buffer_load_dword v229, v227, s[20:23], s50 offen\n{P}_nt1:")]
        if kt == 7:
            X[4] = [I(f"s_add_u32 s41, s41, {CH}"), I(f"v_mov_b32 v{VKA}, v{NKA}"), I(f"v_mov_b32 v{VKB}, v{NKB}"), I(f"v_mov_b32 v{VVA}, v{NVA}"),
                    I(f"v_add_u32 v{NKA}, s36, v{LKA}"), I(f"v_add_u32 v{NKB}, s36, v{LKB}"), I(f"v_add_u32 v{NVA}, s36, v{LVA}")]
            X[5] = [I(f"s_add_u32 s36, s36, {SLOTB}"), I(f"s_cmp_eq_u32 s36, {3*SLOTB}")]
            X[6] = [I("s_cselect_b32 s36, 0, s36"), I("s_add_u32 s35, s35, 1")]
            X[7] = [I("s_cmp_lt_u32 s35, s33" if (FULL and MERGE) else f"s_cmp_lt_u32 s35, {cend}")]
        for i in range(8):
            body += V[6*i:6*i+2] + [M[i]] + X.get(i, []) + V[6*i+2:6*i+6]
    body += [I(f"s_cbranch_scc1 {P}_loop")]
    a, st = finalize_loop(body, st)
    txt += text_of(a) + "\n"
    if FULL and MERGE:
        mid = [RAW(f"    s_cmp_eq_u32 s35, 8\n    s_cbranch_scc1 {P}_fin"),
              I("s_mov_b32 s33, 8"),
              I("s_lshl_b32 s46, s31, 2"), I("s_add_u32 s46, s46, s32"), I("s_lshl_b32 s47, s46, 8"), I(f"s_add_u32 s47, s47, {WS_G}"),
              I("v_and_b32 v3, 31, v1"), I("v_lshlrev_b32 v3, 2, v3"),
              I("buffer_load_dword v230, v3, s[8:11], s47 offen"), I("buffer_load_dword v231, v3, s[8:11], s47 offen offset:128")]
        mid += [I(x.text.replace("v6", "v236").replace("v4", "v237")) for x in epi_addr()]
        if 'wfb' not in EXP and 'wfk1' not in EXP: mid += wf_mid(P)
        mid += [I(f"s_branch {P}_loop"), RAW(f"{P}_fin:")]
        txt += text_of(finalize(mid)[0]) + "\n"
    o = [I("s_nop 0"), pv(7, 1, 1)] + stamp(3)
    if FULL and MERGE: FULL = False; part = 2
    if FULL:
        o += [I("s_lshl_b32 s46, s31, 2"), I("s_add_u32 s46, s46, s32")] + epi_addr()
    if part == 1 and not FULL:
        for i, r in enumerate(state_regs()):
            o.append(I(f"buffer_store_dwordx4 v[{r}:{r+3}], v{VD4 if 4 <= i < 8 else VD}, s[8:11], {'s54' if i >= 8 else 's53'} offen offset:{1024*(i%4)}"))
        o += [I("s_setprio 0")] + wf_loads() + wf_store()
        if 'nocp2' not in EXP: o += [RAW(code_prefetch("k34_out_kernel", 3072, 32, 1, 2, 46))]
        o.append(I("s_endpgm"))
        a, _ = finalize(o, st)
        return txt + text_of(a) + "\n"
    o += [I("s_setprio 3")]
    for q in range(2):
        O = OO + 16*q; t = T0 + 8 + 16*q
        o += [I(f"v_mov_b32 v{t}, v{O+10}"), I(f"v_mov_b32 v{t+1}, v{O+10}"),
              I(f"v_add_f32 v{T0+q}, abs(v{O}), abs(v{O+1})")]
        o.append(I(f"v_permlane32_swap_b32 v{t}, v{t+1}"))
        for r in range(2, 11): o.append(I(f"v_add_f32 v{T0+q}, v{T0+q}, abs(v{O+r})"))
        o += [I(f"v_rcp_f32 v{t}, v{t}")] + ([] if FULL else [I(f"v_mul_f32 v{t}, v{t}, v{230+q}")])
        for r in range(10): o.append(I(f"v_mul_f32 v{O+r}, v{O+r}, v{t}"))
        for r in range(5): o.append(I(f"v_cvt_pk_bf16_f32 v{t+4+r}, v{O+2*r}, v{O+2*r+1}"))
        o.append(I(f"buffer_store_dwordx4 v[{t+4}:{t+7}], v233, s[8:11], s{59+q} offen sc1" if False else f"buffer_store_dwordx4 v[{t+4}:{t+7}], v{233+2*q}, s[8:11], s50 offen sc1"))
        o += [I("s_mov_b64 exec, s[44:45]"), I(f"buffer_store_dword v{t+8}, v{232+2*q}, s[8:11], s51 offen" + ("" if FULL else " sc1")), I("s_mov_b64 exec, -1")]
    o += [I(f"v_add_f32 v{T0}, v{T0}, v{T0+1}"), I(f"v_mov_b32 v{T0+2}, {f32(2.0**100)}"),
          I(f"v_cmp_nlt_f32 vcc, v{T0}, v{T0+2}"), I("s_cmp_lg_u64 vcc, 0"), I("s_cselect_b32 s48, 1, 0"),
          I(f"v_mov_b32 v{T0+3}, s48"), I("s_lshl_b32 s49, s32, 2"), I("v_mov_b32 v4, s49"),
          I(f"ds_write_b32 v4, v{T0+3} offset:{L_MISC+256}"),
          I("s_lshl_b32 s46, s31, 7"), I(f"s_add_u32 s46, s46, {WS_CNT2}"), I("s_lshl_b32 s47, s31, 12"), I(f"s_add_u32 s47, s47, {WS_FLG2}"),
          I("v_mov_b32 v2, 0"), I("v_mov_b32 v3, 1"), I("v_mov_b32 v5, 1"), I("v_lshlrev_b32 v4, 7, v1"),
          I("s_waitcnt vmcnt(0) lgkmcnt(0)"), I("s_barrier"),
          I(f"ds_read_b128 v[{T0+4}:{T0+7}], v2 offset:{L_MISC+256}"),
          I(f"v_or3_b32 v{T0+4}, v{T0+4}, v{T0+5}, v{T0+6}"), I(f"v_or_b32 v{T0+4}, v{T0+4}, v{T0+7}"),
          I(f"v_readfirstlane_b32 s48, v{T0+4}"),
          I("s_andn2_b32 s48, s48, s34"), I("s_cmp_lg_u32 s48, 0"), I(f"s_cbranch_scc1 {P}_fallback")]
    if FULL:
        if 'wfb' not in EXP: o += [I("s_setprio 0")] + wf_loads() + wf_store()
        if 'nocp2' not in EXP: o += [RAW(code_prefetch("k4_out_kernel", 1024, 32, 1, 2, 46))]
    elif DIRECT:
        o += [RAW(f"    s_cmp_lg_u32 s32, 0\n    s_cbranch_scc1 {P}_done\n    s_mov_b32 exec_hi, 0\n    buffer_atomic_add v5, v4, s[8:11], s47 offen sc1\n{P}_done:")]
    else:
        o += [RAW(f"    s_cmp_lg_u32 s32, 0\n    s_cbranch_scc1 {P}_done\n    s_mov_b64 exec, 1\n    buffer_atomic_add v3, v2, s[8:11], s46 offen sc0 sc1\n    s_waitcnt vmcnt(0)\n"
              f"    v_readfirstlane_b32 s48, v3\n    s_cmp_lg_u32 s48, 31\n    s_cbranch_scc1 {P}_done\n    s_mov_b32 exec_lo, -1\n"
              f"    buffer_store_dword v5, v4, s[8:11], s47 offen sc1\n{P}_done:")]
    o += [I("s_endpgm")]
    a, _ = finalize(o, st)
    txt += text_of(a) + "\n"
    o = [RAW(f"{P}_fallback:"), I("s_waitcnt vmcnt(0) lgkmcnt(0)"), I("s_nop 15"),
         I("s_mov_b32 s18, 0"), I("s_mov_b32 s22, 0"), I("s_mov_b32 s34, 1"), I("s_mov_b32 s35, 0"), I("s_mov_b32 s41, s42"), I("s_mov_b32 s40, s43"),
         I(f"v_mov_b32 v{T0}, 0xff7fffff"), I(f"v_mov_b32 v{T0+1}, 0xff7fffff")]
    for q in range(2): o += [I(f"v_mov_b32 v{QF+8*q+5}, 0"), I(f"v_mov_b32 v{QF+8*q+6}, 0")]
    o += [RAW(f"{P}_fb_chunk:"), I("s_barrier")] + dma_chunk() + [I("s_waitcnt vmcnt(0)"), I("s_barrier"),
          I(f"v_mov_b32 v{VKA}, v{LKA}"), I(f"v_mov_b32 v{VKB}, v{LKB}"), I("s_mov_b32 s36, 0"), RAW(f"{P}_fb_tile:")]
    o += k_reads(0) + qk(0, 0) + qk(0, 1) + max16(T0, S(0, 0)) + max16(T0+1, S(0, 1))
    o += [I(f"v_add_u32 v{VKA}, 1280, v{VKA}"), I(f"v_add_u32 v{VKB}, 1280, v{VKB}"),
          I("s_add_u32 s36, s36, 1"), I("s_cmp_lt_u32 s36, 8"), I(f"s_cbranch_scc1 {P}_fb_tile"),
          I(f"s_add_u32 s41, s41, {CH}"), I("s_add_u32 s35, s35, 1"), I("s_cmp_lt_u32 s35, 8"), I(f"s_cbranch_scc1 {P}_fb_chunk")]
    o += xhalf_max(T0, T0+2) + xhalf_max(T0+1, T0+3) + set_m(T0, 0, T0+4) + set_m(T0+1, 1, T0+8)
    for r in range(32): o.append(I(f"v_mov_b32 v{OO+r}, 0"))
    o += [I("s_barrier"), I("s_mov_b32 s41, s42")] + dma_chunk()
    o += [I(f"s_add_u32 s40, s43, {SLOTB}"), I(f"s_add_u32 s41, s42, {CH}")] + dma_chunk()
    o += [I("s_mov_b32 s55, 0"), I("s_mov_b32 s58, 6"), I("s_mov_b32 s35, 0"), I(f"s_add_u32 s41, s42, {2*CH}"), I("s_waitcnt vmcnt(0)"), I("s_barrier"), I("s_nop 7"), I(f"s_branch {P}_main")]
    a, _ = finalize(o)
    txt += text_of(a) + "\n"
    return txt
```

```python
from common import *
import k2
from k2 import (S, k_reads, v_reads, qk, pv, softmax_half, dma_chunk, set_m, max16, xhalf_max, dpp_reduce,
                SLOTB, L_Q, L_MISC, QF, KF, VF, SS, PP, OO, VKA, VKB, VVA, NKA, NKB, NVA, LKA, LKB, LVA, VD, VD4, T0)
EXP = os.environ.get('EXP', '').split(',')
LDS_BYTES = 74240
PRIO_A = int(os.environ.get('PRIO_A', '2')); PRIO_B = int(os.environ.get('PRIO_B', '0'))

import attn
def role_a(): return attn.role_a(1)

ZG = 2432; ZSLOT = 4*ZG; ZBASE = 32768
ACC = 16
ZF = [88, 124]
WFr = [160, 176]
Z1P = 192
VA = 228
VZ = 232
RB = 233
RA = 235
VT = 236
TB = 238
VX1 = 244
VA1 = 248
RT1 = 251; RT8 = 252
VP = 253
LB_MISC = 71680
BURST = int(os.environ.get('BURST', '0'))
def accr(T, tt): return ACC + 16*(T >> 1) + 8*tt + 4*(T & 1) if T < 8 else ACC + 64 + 4*tt

def dma_rows(slot, vo, srdn, so):
    g = [[I(f"s_add_u32 m0, s40, {slot*16384}")]]
    for p in range(4): g.append([I(f"buffer_load_dwordx4 v{vo+p}, {srdn}, {so} offen offset:{1024*p} lds", tag=f"W{slot}")])
    g[-1].append(I(f"s_add_u32 {so}, {so}, 128"))
    return g
def gdma_w(slot): return dma_rows(slot, VA, "s[12:15]", "s42")
def pdma_x(slot): return dma_rows(slot, VX1, "s[36:39]", "s34")
def dma_img(slot, vos, srdn, so, step, fl):
    return [[I(f"s_add_u32 m0, s41, {slot*ZSLOT}")],
            [I(f"buffer_load_dwordx4 v{vos[0]}, {srdn}, {so} offen{fl} lds", tag=f"D{slot}")],
            [I(f"buffer_load_dwordx4 v{vos[1]}, {srdn}, {so} offen offset:1024{fl} lds", tag=f"D{slot}")],
            [I("s_mov_b64 exec, 0xffff"), I(f"buffer_load_dwordx4 v{vos[2]}, {srdn}, {so} offen offset:2048{fl} lds", tag=f"D{slot}"), I("s_mov_b64 exec, -1"),
             I(f"s_add_u32 {so}, {so}, {step}")]]
def gdma_z(slot): return dma_img(slot, [VZ]*3, "s[8:11]", "s43", 4*36864, " sc1")
def pdma_a(slot): return dma_img(slot, [VA1, VA1+1, VA1+2], "s[20:23]", "s49", 32*9216, "")
if 'p1lin' in EXP:
    def pdma_a(slot): return dma_img(slot, [VZ]*3, "s[20:23]", "s49", 9216, "")
def flat(g): return [x for l in g for x in l]
def areads(slot, st_, tr):
    z = ZF[st_]
    if not tr: return [I(f"ds_read_b128 v[{z+4*i}:{z+4*i+3}], v{RA if i < 8 else RT8} offset:{slot*ZSLOT + (512*(i>>1) + 128*(i&1) if i < 8 else 0)}") for i in range(9)]
    o = []
    for T in range(9):
        for h in range(2):
            if T < 8: o.append(I(f"ds_read_b64_tr_b16 v[{z+4*T+2*h}:{z+4*T+2*h+1}], v{RT1} offset:{slot*ZSLOT + 4608*h + 64*(T>>1) + 16*(T&1)}"))
            else: o.append(I(f"ds_read_b64_tr_b16 v[{z+4*T+2*h}:{z+4*T+2*h+1}], v{RT8} offset:{slot*ZSLOT + 4608*h}"))
    return o
def wreads(slot):
    w = WFr[slot]
    return [I(f"ds_read_b128 v[{w+8*ks+4*tt}:{w+8*ks+4*tt+3}], v{RB+ks} offset:{slot*16384 + 2048*tt}") for ks in range(2) for tt in range(2)]
def gmfmas(s, zero=False):
    z = ZF[s % 2]; w = WFr[(s >> 1) & 1] + 8*(s & 1)
    return [I(f"v_mfma_f32_16x16x32_bf16 v[{accr(T,tt)}:{accr(T,tt)+3}], v[{z+4*T}:{z+4*T+3}], v[{w+4*tt}:{w+4*tt+3}], " + ("0" if zero else f"v[{accr(T,tt)}:{accr(T,tt)+3}]"))
            for T in range(9) for tt in range(2)]
SYNC = int(os.environ.get('SYNC', '4'))
def gstage(s, dm, last=False, tr=False, zero=False, pre=()):
    ns = (s + 1) % 4
    mf = gmfmas(s, zero)
    if last: return mf
    tags = [f"D{ns}"] + ([f"W{(ns >> 1) & 1}"] if s & 1 else [])
    rd = areads(ns, ns % 2, tr)
    if 'halfz' in EXP: rd = rd[(s & 1)::2]
    if s & 1: rd = wreads((ns >> 1) & 1)[:2] + rd + wreads((ns >> 1) & 1)[2:]
    side = []
    rd = [[x] for x in rd]; dm = list(dm)
    while rd or dm:
        if dm: side.append(dm.pop(0))
        if rd: side.append(rd.pop(0))
        if rd and len(rd) > len(dm): side.append(rd.pop(0))
    o = mf[:SYNC] + [WAITDS()] + ([WAITVM(tags)] if 'novm' not in EXP else []) + list(pre) + ([I("s_barrier")] if 'nobar' not in EXP and not ('halfbar' in EXP and s & 1) else [])
    if 'nodma' in EXP: side = [g for g in side if not any(x.ldsdma for x in g)]
    if 'dmablk' in EXP:
        d = [g for g in side if not any(x.kind == 'ds' for x in g)]; side = [g for g in side if any(x.kind == 'ds' for x in g)]
        o += flat(d)
    if 'dmaend' in EXP:
        d = [g for g in side if not any(x.kind == 'ds' for x in g)]; side = [g for g in side if any(x.kind == 'ds' for x in g)]
        tailx = flat(d)
    else: tailx = []
    rest = mf[SYNC:]; n = len(rest); m = len(side); j = 0
    if BURST: o.append(I("s_setprio 3"))
    for i, x in enumerate(rest):
        o.append(x)
        if BURST and i == BURST - 1: o.append(I("s_setprio 0"))
        tgt = min(m, -(-(i + 1) * m // n))
        o += flat(side[j:tgt]); j = tgt
    return o + tailx

def ln_loads():
    R = 64
    o = [I("v_lshlrev_b32 v15, 4, v0"),
         I("s_and_b32 s59, s2, 7"), I("s_lshl_b32 s59, s59, 5"), I("s_lshr_b32 s46, s2, 3"), I("s_add_u32 s59, s59, s46"),
         I("s_mul_i32 s58, s59, 36864"), I(f"s_add_u32 s58, s58, {WS_Z}"), I("s_mov_b32 s46, s58")]
    for i in range(9):
        o.append(I(f"buffer_load_dwordx4 v[{R+4*i}:{R+4*i+3}], v15, s[8:11], s46 offen"))
        if i < 8: o.append(I("s_add_u32 s46, s46, 4096"))
    return o

def ln_compute():
    R = 64; F = 100; A = 16; B = 32
    o = []
    for i in range(9):
        for d in range(4):
            k = 4*i + d
            o += [I(f"v_lshlrev_b32 v{F+2*k}, 16, v{R+k}"), I(f"v_and_b32 v{F+2*k+1}, 0xffff0000, v{R+k}")]
        if i == 0:
            for j in range(8): o.append(I(f"v_mul_f32 v{A+8+j}, v{F+j}, v{F+j}"))
        else:
            for j in range(8): o.append(I(f"v_add_f32 v{A+j}, v{F+j if i == 1 else A+j}, v{F+8*i+j}"))
            for j in range(8): o.append(I(f"v_fmac_f32 v{A+8+j}, v{F+8*i+j}, v{F+8*i+j}"))
    o += [I("v_and_b32 v2, 1, v1"), I("v_cmp_eq_u32 s[50:51], 0, v2"), I("v_and_b32 v2, 2, v1"), I("v_cmp_eq_u32 s[52:53], 0, v2"),
          I("v_and_b32 v2, 4, v1"), I("v_cmp_eq_u32 s[54:55], 0, v2"), I("v_and_b32 v2, 8, v1"), I("v_cmp_eq_u32 s[56:57], 0, v2")]
    n = 16
    for step, (msk, dpp) in enumerate((("s[56:57]", "row_mirror"), ("s[54:55]", "row_half_mirror"), ("s[52:53]", "quad_perm:[2,3,0,1]"), ("s[50:51]", "quad_perm:[1,0,3,2]"))):
        h = n // 2
        for i in range(h): o.append(I(f"v_cndmask_b32 v{B+i}, v{A+i}, v{A+h+i}, {msk}"))
        for i in range(h): o.append(I(f"v_cndmask_b32 v{A+i}, v{A+h+i}, v{A+i}, {msk}"))
        for i in range(h): o.append(I(f"v_add_f32_dpp v{A+i}, v{B+i}, v{A+i} {dpp} row_mask:0xf bank_mask:0xf"))
        n = h
    o += [I(f"v_lshlrev_b32 v2, 2, v0"), I(f"v_add_u32 v2, {LB_MISC}, v2"), I(f"ds_write_b32 v2, v{A}"),
          I("v_and_b32 v3, 15, v1"), I("v_lshlrev_b32 v3, 2, v3"), I(f"v_add_u32 v3, {LB_MISC}, v3"),
          WAITDS(), I("s_barrier")]
    for r in range(8): o.append(I(f"ds_read2_b32 v[{B+2*r}:{B+2*r+1}], v3 offset0:{32*r} offset1:{32*r+16}"))
    for r in range(8): o.append(I(f"v_add_f32 v{B+r}, v{B+r}, v{B+8+r}"))
    for r in range(4): o.append(I(f"v_add_f32 v{B+r}, v{B+r}, v{B+4+r}"))
    o += [I(f"v_add_f32 v{B}, v{B}, v{B+2}"), I(f"v_add_f32 v{B+1}, v{B+1}, v{B+3}"), I(f"v_add_f32 v{B}, v{B}, v{B+1}"),
          I(f"v_mul_f32 v{B}, {f32(1.0/2304)}, v{B}"),
          I(f"v_mov_b32_dpp v{B+1}, v{B} row_ror:8 row_mask:0xf bank_mask:0xf"),
          I(f"v_fma_f32 v{B+1}, -v{B}, v{B}, v{B+1}"), I(f"v_max_f32 v{B+1}, 0, v{B+1}"), I(f"v_add_f32 v{B+1}, {f32(1e-5)}, v{B+1}"),
          I(f"v_rsq_f32 v{B+1}, v{B+1}"), I(f"v_mul_f32 v{B}, -v{B}, v{B+1}" if False else f"v_mul_f32_e64 v{B}, -v{B}, v{B+1}")]
    for j in range(8): o.append(I(f"v_readlane_b32 s{50+j}, v{B}, {j}"))
    for j in range(8): o.append(I(f"v_mov_b32 v{A+j}, s{50+j}"))
    for j in range(8): o.append(I(f"v_readlane_b32 s{50+j}, v{B+1}, {j}"))
    for i in range(9):
        for j in range(8): o.append(I(f"v_fma_f32 v{F+8*i+j}, v{F+8*i+j}, s{50+j}, v{A+j}"))
        for j in range(4): o.append(I(f"v_cvt_pk_bf16_f32 v{R+4*i+j}, v{F+8*i+2*j}, v{F+8*i+2*j+1}"))
        o.append(I(f"buffer_store_dwordx4 v[{R+4*i}:{R+4*i+3}], v15, s[8:11], s58 offen sc1", tag="LNST"))
        o.append(I("s_add_u32 s58, s58, 4096"))
    return o
def gate_loads():
    o = [I("s_load_dwordx2 s[36:37], s[0:1], 0"), I("s_load_dwordx2 s[20:21], s[0:1], 64"),
         I(f"s_mov_b32 s38, {2048*1152}"), I("s_mov_b32 s39, 0x00020000"), I("s_mov_b32 s22, 1152"), I("s_mov_b32 s23, 0x00020000"),
         I("v_and_b32 v191, 31, v0"), I("v_lshlrev_b32 v191, 4, v191"), I("v_lshrrev_b32 v190, 5, v0"), I("v_mul_u32_u24 v190, 1152, v190"), I("v_add_u32 v190, v190, v191"),
         I("v_mov_b32 v189, 0x7f000000"), I("v_cmp_gt_u32 vcc, 128, v191"), I("v_cndmask_b32 v189, v189, v190, vcc"),
         I("s_mul_i32 s46, s59, 9216"), I("s_waitcnt lgkmcnt(0)")]
    for i in range(3):
        o += [I(f"buffer_load_dwordx4 v[{192+4*i}:{195+4*i}], v{190 if i < 2 else 189}, s[36:39], s46 offen offset:{512*i}"),
              I(f"buffer_load_dwordx4 v[{204+4*i}:{207+4*i}], v191, s[20:23], 0 offen offset:{512*i}")]
    return o
def gate_compute():
    o = [I("v_mov_b32 v190, 0"), I("v_mov_b32 v191, 0")]
    for k in range(12):
        a, b = 192 + k, 204 + k
        o += [I(f"v_lshlrev_b32 v4, 16, v{a}"), I(f"v_lshlrev_b32 v5, 16, v{b}"), I(f"v_and_b32 v6, 0xffff0000, v{a}"), I(f"v_and_b32 v7, 0xffff0000, v{b}"),
              I("v_fmac_f32 v190, v4, v5"), I("v_fmac_f32 v191, v6, v7")]
    o.append(I("v_add_f32 v190, v190, v191"))
    for m in ("row_shr:1", "row_shr:2", "row_shr:4", "row_shr:8"): o.append(I(f"v_add_f32_dpp v190, v190, v190 {m} bound_ctrl:0"))
    o += [I("v_add_f32_dpp v190, v190, v190 row_bcast:15 row_mask:0xa"),
          I(f"v_mul_f32 v190, {f32(-LOG2E)}, v190"), I("v_exp_f32 v190, v190"), I("v_add_f32 v190, 1.0, v190"), I("v_rcp_f32 v190, v190"),
          I("v_lshrrev_b32 v4, 5, v0"), I("v_lshlrev_b32 v4, 2, v4"), I("s_lshl_b32 s46, s59, 5"), I(f"s_add_u32 s46, s46, {WS_G}"),
          I("s_mov_b32 exec_lo, 0x80000000"), I("s_mov_b32 exec_hi, 0x80000000"),
          I("buffer_store_dword v190, v4, s[8:11], s46 offen sc1", tag="LNST"), I("s_mov_b64 exec, -1")]
    return o

def role_b():
    LATE = 'lnearly' not in EXP
    o = [I("s_setprio 3" if not LATE else "s_setprio 1"), I("s_sub_u32 s2, s2, 256")] + ([] if LATE else ln_loads())
    o += [
          I("s_and_b32 s30, s2, 1"), I("s_lshl_b32 s30, s30, 3"), I("s_bfe_u32 s46, s2, 0x30003"), I("s_add_u32 s30, s30, s46"),
          I("s_bfe_u32 s31, s2, 0x20001"), I("s_lshl_b32 s31, s31, 2"), I("s_lshr_b32 s46, s2, 6"), I("s_add_u32 s31, s31, s46"),
          I("s_lshl_b32 s33, s30, 2"), I("s_add_u32 s33, s33, s32"),
          I("s_lshl_b32 s42, s33, 17"),
          I(f"v_lshlrev_b32 v{VZ}, 4, v1"),
          I("s_lshl_b32 s40, s32, 12"), I(f"s_mul_i32 s41, s32, {ZG}"), I(f"s_add_u32 s41, s41, {ZBASE}"), I("s_mul_i32 s44, s32, 36864"),
          I("v_lshrrev_b32 v7, 3, v1"),
          I("v_lshrrev_b32 v3, 4, v1"), I("v_and_b32 v4, 7, v1"), I("v_xor_b32 v4, v4, v3"), I("v_lshlrev_b32 v4, 4, v4"), I("v_xor_b32 v8, 64, v4")]
    o += srd(12, 24, 25, 2048*4096) + srd(16, 26, 27, 4096)
    o += [I("s_mul_i32 s48, s31, 2304"), I(f"s_add_u32 s48, s48, {WS_Z}"), I("s_add_u32 s43, s48, s44"),
          I("v_lshlrev_b32 v2, 12, v7"),
          I(f"v_add_u32 v{VA}, v2, v4"), I(f"v_add_u32 v{VA+1}, v2, v8"), I(f"v_add_u32 v{VA+1}, {32768-1024}, v{VA+1}"),
          I(f"v_add_u32 v{VA+2}, {65536-2048}, v{VA}"), I(f"v_add_u32 v{VA+3}, {65536-2048}, v{VA+1}"),
          I("v_and_b32 v2, 15, v1"), I("v_bfe_u32 v9, v1, 1, 3"), I("v_xor_b32 v4, v9, v3"), I("v_lshlrev_b32 v4, 4, v4"),
          I("v_lshl_add_u32 v4, v2, 7, v4"), I(f"v_add_u32 v{RB}, s40, v4"), I(f"v_xor_b32 v{RB+1}, 64, v{RB}"),
          I(f"v_mul_u32_u24 v4, {ZG}, v3"), I("v_lshl_add_u32 v4, v2, 4, v4"), I("s_and_b32 s46, s31, 1"),
          I("s_lshl_b32 s47, s46, 11"), I(f"s_sub_u32 s47, {ZBASE + 2048}, s47"), I(f"v_add_u32 v{RT8}, s47, v4"),
          I("v_and_b32 v9, 8, v1"), I("v_lshl_add_u32 v4, v9, 4, v4"), I("s_lshl_b32 s47, s46, 8"), I(f"s_add_u32 s47, s47, {ZBASE}"), I(f"v_add_u32 v{RA}, s47, v4"),
          I("v_lshlrev_b32 v10, 1, v2"), I("v_lshlrev_b32 v11, 2, v2"),
          I("s_lshr_b32 s44, s2, 4"), I("s_lshl_b32 s44, s44, 7"), I(f"s_add_u32 s44, s44, {WS_CNT}"), I("s_and_b32 s45, s2, 63"), I("s_lshl_b32 s45, s45, 7"), I(f"s_add_u32 s45, s45, {WS_CNT + 4096}"),
          I(f"v_lshlrev_b32 v{VP}, 7, v1"), I(f"v_mov_b32 v{VT}, 0"), I(f"v_mov_b32 v{VT+1}, 1"),
          I("s_mul_i32 s46, s33, 184320"), I(f"s_add_u32 s46, s46, {WS_ACT + 18*1024}"),
          I("s_mul_i32 s34, s31, 9"), I("s_add_u32 s34, s34, 1"), I("s_lshr_b32 s34, s34, 1"), I("s_lshl_b32 s34, s34, 10"), I("s_add_u32 s34, s34, s46"),
          I("s_lshr_b32 s49, s31, 1"), I("s_mul_i32 s49, s49, 9216"), I("s_add_u32 s49, s49, 4096"), I("s_and_b32 s47, s31, 1"), I("s_lshl_b32 s47, s47, 9"),
          I("s_add_u32 s49, s49, s47"), I("s_add_u32 s49, s49, s46"),
          I(f"v_add_u32 v{VX1}, 92160, v{VZ}"),
          I("v_and_b32 v4, 31, v1"), I("v_lshlrev_b32 v4, 4, v4"), I("v_lshrrev_b32 v9, 5, v1"), I(f"v_lshl_add_u32 v{VX1+1}, v9, 3, v4"),
          I(f"v_add_u32 v{VX1+2}, 92160, v{VX1+1}")]
    if LATE: o += ln_loads() + [I("s_setprio 3")]
    early = flat(gdma_w(0)) + flat(gdma_w(1))
    early += [I("s_lshl_b32 s46, s33, 6"),
          I(f"buffer_load_ushort v{TB}, v10, s[16:19], s46 offen"), I(f"buffer_load_ushort v{TB+1}, v10, s[16:19], s46 offen offset:32")]
    WFB = MERGE and 'wfb' in EXP
    def remap(items):
        out = []
        for x in items:
            if x.text is None: out.append(x); continue
            t = x.text
            if t == "s_barrier": out.append(I(f"s_add_u32 s28, s28, {ZBASE}")); continue
            t = t.replace("s58", "s29").replace("s50", "s28").replace(f"v{attn.VD},", f"v{VZ},")
            if "buffer_store" in t: out.append(I(t + " sc1", "LNST"))
            else: out.append(I(t, x.tag))
        return out
    if WFB: o += remap(attn.wf_loads())
    o += stamp(7)
    ln = ln_compute()
    if WFB: ln = ln + remap(attn.wf_store())
    cut = next(i for i, x in enumerate(ln) if x.mn == "s_barrier")
    WLATE = 'wlate' in EXP
    if WLATE:
        o += ln[:cut-1] + ln[cut-1:]
        etxt = text_of(finalize(early)[0])
        o += [RAW("    s_cmp_eq_u32 s32, 0\n    s_cbranch_scc1 KB_w0\n" + etxt + "\n    s_waitcnt vmcnt(10)\n    s_branch KB_w1\nKB_w0:\n    s_waitcnt vmcnt(0)\nKB_w1:"), I("s_waitcnt vmcnt(63)")]
    else: o += ln[:cut-1] + early + ln[cut-1:]
    o += stamp(2)
    o += [I("s_lshl_b32 s59, s33, 7"), I(f"s_add_u32 s59, s59, {WS_G}"),
          ] + ([] if WLATE else [WAITVM("LNST")]) + [I("s_barrier")] + stamp(6)
    o += [RAW("    s_cmp_lg_u32 s32, 0\n    s_cbranch_scc1 KB_pubd\n    s_mov_b64 exec, 1\n"
              f"    v_mov_b32 v{VP+1}, 1\n"
              f"    buffer_atomic_add v{VP+1}, v{VT}, s[8:11], s44 offen sc0 sc1\n    s_waitcnt vmcnt(0)\n"
              f"    v_readfirstlane_b32 s47, v{VP+1}\n    s_cmp_lg_u32 s47, 15\n    s_cbranch_scc1 KB_notlast\n"
              f"    s_mov_b64 exec, -1\n    s_mov_b32 s47, {WS_CNT + 4096}\n    buffer_atomic_add v{VT+1}, v{VP}, s[8:11], s47 offen sc1\n    s_mov_b64 exec, 1\n"
              f"KB_notlast:\n    s_mov_b64 exec, -1\nKB_pubd:")]
    o += [RAW("    s_cmp_lg_u32 s32, 0\n    s_cbranch_scc1 KB_polled\n    s_mov_b64 exec, 1\n    s_mov_b32 s47, 0\nKB_poll:\n"
              f"    buffer_load_dword v{VP+1}, v{VT}, s[8:11], s45 offen sc1\n    s_add_u32 s47, s47, 1\n    s_waitcnt vmcnt(0)\n"
              f"    v_and_b32 v{VP+1}, 0xff, v{VP+1}\n    v_cmp_ne_u32 vcc, 16, v{VP+1}\n    s_cmp_gt_u32 s47, 0x10000\n    s_cbranch_scc1 KB_pdone\n    s_cbranch_vccz KB_pdone\n    s_sleep 1\n    s_branch KB_poll\n"
              "KB_pdone:\n    s_mov_b64 exec, -1\n" + (etxt + "\n" if WLATE else "") + "KB_polled:"),
          I("s_barrier")] + stamp(3)
    for k in range(4): o += flat(gdma_z(k))
    o += [I(f"buffer_load_dword v{TB+2}, v11, s[8:11], s59 offen"), I(f"buffer_load_dword v{TB+3}, v11, s[8:11], s59 offen offset:64")]
    o += [WAITVM(["D0", "W0"]), I("s_barrier")] + wreads(0) + areads(0, 0, False)
    o += ([] if MERGE else [I("s_setprio 0")]) + [I("s_mov_b32 s35, 0")] + stamp(4)
    def dm2(k):
        s_ = k % 4
        return (gdma_w(s_ >> 1) if s_ % 2 == 0 else []) + gdma_z(s_)
    for k in range(4): o += gstage(k, dm2(k), zero=(k == 0))
    o += [RAW("KB_loop:")]
    a, st = finalize(o); txt = text_of(a) + "\n"
    body = []
    HI = os.environ.get('BHI', '')
    if HI:
        lo, hi = map(int, HI.split('-'))
        body += [RAW(f"    s_setprio 0\n    s_sub_u32 s46, s35, {lo}\n    s_cmp_ge_u32 s46, {hi-lo}\n    s_cbranch_scc1 KB_lo\n    s_setprio 3\nKB_lo:")]
    for k in range(4): body += gstage(k, dm2(k))
    body += [I("s_add_u32 s35, s35, 1"), I("s_cmp_lt_u32 s35, 14"), I("s_cbranch_scc1 KB_loop")]
    a, st = finalize_loop(body, st); txt += text_of(a) + "\n"
    z1 = []
    if MERGE and 'nocp3' not in EXP: txt += code_prefetch("KB_tail", 2560, 32, 1, 2, 50) + "KB_tail:\n"; st.vmq.append((set(), None))
    for c in range(8):
        j, tt = divmod(c, 2)
        z1.append([I(f"buffer_load_dwordx4 v[{Z1P+4*c}:{Z1P+4*c+3}], v{VZ if tt == 0 else VX1}, s[8:11], s34 offen offset:{1024*j}")])
    for tt in range(2): z1.append([I(f"buffer_load_dwordx2 v[{Z1P+32+2*tt}:{Z1P+33+2*tt}], v{VX1+1+tt}, s[8:11], s49 offen")])
    prep = [I(f"v_lshlrev_b32 v{TB}, 16, v{TB}"), I(f"v_lshlrev_b32 v{TB+1}, 16, v{TB+1}"),
          I(f"v_sub_f32 v{TB+2}, 1.0, v{TB+2}"), I(f"v_sub_f32 v{TB+3}, 1.0, v{TB+3}"),
          I(f"v_mul_f32 v{TB}, v{TB}, v{TB+2}"), I(f"v_mul_f32 v{TB+1}, v{TB+1}, v{TB+3}")]
    o = gstage(0, z1[:5]) + gstage(1, z1[5:]) + gstage(2, [[x] for x in prep])
    def quad(a_, z, sc, bi, t, dst):
        x = [I(f"v_lshlrev_b32 v{t}, 16, v{z}"), I(f"v_and_b32 v{t+1}, 0xffff0000, v{z}"),
             I(f"v_lshlrev_b32 v{t+2}, 16, v{z+1}"), I(f"v_and_b32 v{t+3}, 0xffff0000, v{z+1}")]
        for r in range(4): x.append(I(f"v_fma_f32 v{a_+r}, v{a_+r}, v{sc}, v{bi}"))
        for r in range(4): x.append(I(f"v_mul_f32 v{a_+r}, v{a_+r}, v{t+r}"))
        x += [I(f"v_cvt_pk_bf16_f32 v{dst}, v{a_}, v{a_+1}"), I(f"v_cvt_pk_bf16_f32 v{dst+1}, v{a_+2}, v{a_+3}")]
        return x
    D = ZF[0]
    ep = []
    for c in range(8):
        j, tt = divmod(c, 2)
        for q in range(2):
            g = 2*c + q
            ep += quad(ACC + 4*g, Z1P + 2*g, TB+2+tt, TB+tt, 2 + 4*q, D + 4*c + 2*q)
        ep.append(I(f"buffer_store_dwordx4 v[{D+4*c}:{D+4*c+3}], v{VZ if tt == 0 else VX1}, s[8:11], s34 offen offset:{1024*j}"))
    for tt in range(2):
        g = 16 + tt
        ep += quad(ACC + 4*g, Z1P + 2*g, TB+2+tt, TB+tt, 2 + 4*tt, D + 32 + 2*tt)
        ep.append(I(f"buffer_store_dwordx2 v[{D+32+2*tt}:{D+33+2*tt}], v{VX1+1+tt}, s[8:11], s49 offen" + (" sc1" if MERGE else "")))
    mf = gstage(3, [], last=True)
    o += [I("s_setprio 3")] + mf[:6]
    k = 0
    for m in mf[6:]:
        o += [m] + ep[k:k+2]; k += 2
    o += stamp(5) + ep[k:]
    if 'wfb' in EXP and not MERGE:
        o += [I("s_setprio 0"), I(f"v_mov_b32 v{attn.VD}, v{VZ}")] + attn.wf_loads() + attn.wf_store()
    a, st = finalize(o, st); txt += text_of(a) + "\n"
    if MERGE:
        import k34
        txt += "KC_start:\n" + k34.role_c(True, st)
    return txt

def build():
    o = [RAW("    s_cmp_ge_u32 s2, 512\n    s_cbranch_scc1 K23_exit"),
         I("s_load_dwordx2 s[4:5], s[0:1], 88"), I("s_load_dwordx4 s[24:27], s[0:1], 40"),
         I("v_and_b32 v1, 63, v0"), I("v_lshrrev_b32 v2, 6, v0"), I("s_nop 0"), I("v_readfirstlane_b32 s32, v2"),
         I("s_waitcnt lgkmcnt(0)")]
    o += srd(8, 4, 5, WS_USED)
    a, st = finalize(o)
    txt = text_of(a) + "\n    s_cmp_ge_u32 s2, 256\n    s_cbranch_scc1 K23_B\n"
    if 'noA' in EXP: txt += "    s_branch K23_exit\n"
    txt += role_a() + "K23_B:\n" + ("    s_branch K23_exit\n" if 'noB' in EXP else "") + role_b() + "K23_exit:\n"
    return kernel_text("k23_fused_kernel", txt, 256, sgpr=102, kidx=1)

def launch(): return ("k23_fused_kernel", 512, 256, LDS_BYTES, build())
```

```python
from common import *
from k2 import (S, k_reads, v_reads, qk, pv, softmax_half, set_m, max16, xhalf_max,
                SLOTB, L_Q, L_MISC, QF, KF, VF, SS, PP, OO, VKA, VKB, VVA, NKA, NKB, NVA, LKA, LKB, LVA, VD, VD4, T0)
EXP = os.environ.get('EXP', '').split(',')
DIRECT = 'direct' in EXP
NC1 = int(os.environ.get('NC1', '8'))
PRIO_A = [0, int(os.environ.get('PRIO_A1', '2')), int(os.environ.get('PRIO_A2', '2'))]

VG = 220
CH = 32 * QROW
def dma_chunk():
    o = [I("s_mov_b32 m0, s40")]
    for p in range(4): o.append(I(f"buffer_load_dwordx4 v{VG+p}, s[8:11], s41 offen offset:{1024*p} lds", tag="KV"))
    o += [I("s_add_u32 m0, s40, 4096"), I(f"buffer_load_dwordx4 v{VG+4}, s[8:11], s41 offen lds", tag="KV")]
    return o

def tile_body(kt):
    n1 = kt + 1; n2 = kt + 2
    V = softmax_half(kt, 0, 0) + softmax_half(kt, 0, 1) + softmax_half(kt, 1, 0) + softmax_half(kt, 1, 1)
    qa = qk(n1, 0); qb = qk(n1, 1)
    R = k_reads(n2 % 8, n2 >= 8) + v_reads(n1 % 8, n1 >= 8)
    M = [pv(kt - 1, 1, 1), qa[0], qa[1], pv(kt, 0, 0), qb[0], pv(kt, 0, 1), qb[1], pv(kt, 1, 0)]
    return V, M, R

def state_regs():
    return [QF + 4*i for i in range(4)] + [OO + 16*q + 4*i for q in range(2) for i in range(3)]

def wf_loads():
    b = [I("s_load_dwordx2 s[36:37], s[0:1], 16"), I("s_load_dwordx2 s[38:39], s[0:1], 56"),
         I("s_lshl_b32 s48, s2, 2"), I("s_add_u32 s48, s48, s32"), I("s_mov_b32 s23, 0x00020000"),
         I("s_mul_i32 s51, s48, 729"), I("s_lshr_b32 s51, s51, 16"),
         I("s_mul_i32 s52, s51, 90"), I("s_sub_u32 s52, s48, s52"),
         I("s_mul_i32 s51, s51, 144"),
         I("s_sub_u32 s53, s52, 18"), I("s_lshl_b32 s53, s53, 5"),
         I("s_mov_b32 s54, 8"), I("s_mov_b32 s55, 2"), I("s_mov_b32 s56, 16"), I("s_mov_b32 s57, 4"),
         I("s_sub_u32 s47, s52, 16"), I("s_mul_i32 s47, s47, 288"), I("s_add_u32 s47, s47, 16"),
         I(f"s_mov_b32 s22, {2304*1152}"), I("s_waitcnt lgkmcnt(0)"),
         I("s_cmp_lt_u32 s52, 18"),
         I("s_cselect_b32 s20, s36, s38"), I("s_cselect_b32 s21, s37, s39"), I(f"s_cselect_b32 s22, {576*1152}, s22"),
         I("s_cselect_b32 s53, s47, s53"), I("s_cselect_b32 s54, 36, s54"), I("s_cselect_b32 s55, 18, s55"),
         I("s_cselect_b32 s56, 144, s56"), I("s_cselect_b32 s57, 72, s57"),
         I("s_mul_i32 s47, s52, 36"),
         I("s_cmp_lt_u32 s52, 16"),
         I("s_cselect_b32 s53, s47, s53"), I("s_cselect_b32 s54, 8, s54"), I("s_cselect_b32 s55, 2, s55"),
         I("s_cselect_b32 s56, 18, s56"), I("s_cselect_b32 s57, 4, s57"),
         I("s_mulk_i32 s53, 1152"), I("s_mulk_i32 s54, 1152"), I("s_mulk_i32 s55, 1152"), I("s_mulk_i32 s56, 1152"), I("s_mulk_i32 s57, 1152"),
         I("s_add_u32 s53, s53, s51"),
         I("v_lshrrev_b32 v4, 5, v1"), I("v_mul_lo_u32 v4, v4, s55"), I("v_bfe_u32 v5, v1, 4, 1"), I("v_mul_u32_u24 v5, 1152, v5"),
         I("v_and_b32 v7, 15, v1"), I("v_cmp_lt_u32 vcc, 8, v7"), I("v_lshlrev_b32 v7, 4, v7"), I("v_add3_u32 v4, v4, v5, v7"),
         I("v_mov_b32 v5, 0x7f000000"), I("v_cndmask_b32 v6, v4, v5, vcc"),
         I("s_cmp_lt_u32 s48, 720"), I("s_cselect_b32 s22, s22, 0"),
         I("s_mul_i32 s58, s48, 5120"), I(f"s_add_u32 s58, s58, {WS_WF}"), I("s_cmp_lt_u32 s48, 720"), I("s_cselect_b32 s58, s58, 0x7f000000"),
         I("s_lshl_b32 s50, s32, 13"), I("s_barrier")]
    for p in range(8):
        b.append(I(f"s_add_u32 m0, s50, {1024*p}"))
        if p == 0: src = "s53"
        else:
            src = "s47"
            terms = (["s56"] if p & 4 else []) + (["s57"] if p & 2 else []) + (["s54"] if p & 1 else [])
            b.append(I(f"s_add_u32 s47, s53, {terms[0]}"))
            for t in terms[1:]: b.append(I(f"s_add_u32 s47, s47, {t}"))
        b.append(I(f"buffer_load_dwordx4 v6, s[20:23], {src} offen lds", tag="WFD"))
    return b
def wf_store():
    P = 100
    b = [I("v_lshrrev_b32 v4, 4, v1"), I("v_lshlrev_b32 v4, 11, v4"), I("v_bfe_u32 v5, v1, 2, 2"), I("v_lshl_add_u32 v4, v5, 8, v4"),
         I("v_and_b32 v5, 3, v1"), I("v_lshl_add_u32 v4, v5, 3, v4"), I("v_add_u32 v4, s50, v4"), I("v_lshl_add_u32 v7, v5, 3, v4"), WAITVM("WFD")]
    for nt in range(5):
        for h in range(2):
            if nt < 4: b.append(I(f"ds_read_b64_tr_b16 v[{P+4*nt+2*h}:{P+4*nt+2*h+1}], v7 offset:{1024*h + 64*(nt>>1) + 8*(nt&1)}"))
            else: b.append(I(f"ds_read_b64_tr_b16 v[{P+4*nt+2*h}:{P+4*nt+2*h+1}], v4 offset:{1024*h + 128}"))
    for nt in range(5):
        if nt == 4: b.append(I("s_add_u32 s58, s58, 4096"))
        b.append(I(f"buffer_store_dwordx4 v[{P+4*nt}:{P+4*nt+3}], v{VD}, s[8:11], s58 offen offset:{1024*(nt%4)}"))
    return b

def epi_addr():
    o = [I("v_lshrrev_b32 v6, 5, v1")]
    o += [I("s_lshl_b32 s46, s46, 2"), I("s_mul_i32 s46, s46, 92160"), I(f"s_add_u32 s46, s46, {WS_ACT}"),
          I("s_lshr_b32 s50, s30, 1"), I("s_lshl_b32 s50, s50, 10"), I("s_and_b32 s49, s30, 1"), I("s_lshl_b32 s49, s49, 9"),
          I("s_add_u32 s50, s50, s49"), I("s_add_u32 s50, s50, s46"),
          I("s_lshr_b32 s51, s30, 4"), I("s_add_u32 s51, s51, 16"), I("s_lshl_b32 s51, s51, 10"),
          I("s_bfe_u32 s49, s30, 0x20002"), I("s_lshl_b32 s49, s49, 8"), I("s_add_u32 s51, s51, s49"),
          I("s_and_b32 s49, s30, 3"), I("s_lshl_b32 s49, s49, 2"), I("s_add_u32 s51, s51, s49"), I("s_add_u32 s51, s51, s46"),
          I("v_bfe_u32 v3, v1, 4, 1"), I("s_mov_b32 s49, 92160"), I("v_mul_lo_u32 v3, v3, s49"),
          I("v_and_b32 v4, 15, v1"), I("v_lshl_add_u32 v232, v4, 4, v3"), I("v_lshl_add_u32 v233, v6, 8, v232"),
          I(f"v_add_u32 v234, {2*92160}, v232"), I(f"v_add_u32 v235, {2*92160}, v233")]
    return o

MIDC = int(os.environ.get('MIDC', '5'))
def wf_mid(P):
    import re
    smap = {36: 12, 37: 13, 38: 14, 39: 15, 50: 24, 51: 25, 52: 26, 53: 27, 54: 28, 55: 29, 56: 96, 57: 97, 58: 98}
    vmap = {4: 238, 5: 239, 6: 240, 7: 241}
    def rm(t):
        t = re.sub(r"s\[(\d+):(\d+)\]", lambda m: f"s[{smap.get(int(m.group(1)), m.group(1))}:{smap.get(int(m.group(2)), m.group(2))}]", t)
        t = re.sub(r"\bs(\d+)\b", lambda m: f"s{smap.get(int(m.group(1)), m.group(1))}", t)
        t = re.sub(r"\bv(\d+)\b", lambda m: f"v{vmap.get(int(m.group(1)), m.group(1))}", t)
        return t
    slot = ((MIDC - 1) % 3) * SLOTB
    o = []
    for x in wf_loads():
        t = rm(x.text)
        if t.startswith("s_lshl_b32 s24, s32, 13"):
            o += [I(f"s_add_u32 s24, s43, {slot}"), I("s_mul_i32 s99, s32, 3072"), I(f"s_add_u32 s99, s99, {L_Q - 5120}")]; continue
        m = re.match(r"s_add_u32 m0, s24, (\d+)", t)
        if m and int(m.group(1)) >= 5120: t = f"s_add_u32 m0, s99, {m.group(1)}"
        o.append(I(t, x.tag))
    Pk = 100
    o += [I("v_lshrrev_b32 v238, 4, v1"), I("v_lshlrev_b32 v238, 11, v238"), I("v_bfe_u32 v239, v1, 2, 2"), I("v_lshl_add_u32 v238, v239, 8, v238"),
          I("v_and_b32 v239, 3, v1"), I("v_lshl_add_u32 v238, v239, 3, v238"),
          I("v_mov_b32 v240, s24"), I("v_mov_b32 v241, s99"),
          I("v_cmp_gt_u32 vcc, 48, v1"), I("v_cndmask_b32 v242, v241, v240, vcc"), I("v_add_u32 v242, v242, v238"),
          I("v_cndmask_b32 v243, v241, v240, s[44:45]"), I("v_add_u32 v243, v243, v238"),
          I("v_lshl_add_u32 v244, v239, 3, v242"), I("v_lshl_add_u32 v245, v239, 3, v243"), WAITVM("WFD")]
    for nt in range(5):
        for h in range(2):
            if nt < 4: o.append(I(f"ds_read_b64_tr_b16 v[{Pk+4*nt+2*h}:{Pk+4*nt+2*h+1}], v{244+h} offset:{1024*h + 64*(nt>>1) + 8*(nt&1)}"))
            else: o.append(I(f"ds_read_b64_tr_b16 v[{Pk+4*nt+2*h}:{Pk+4*nt+2*h+1}], v{242+h} offset:{1024*h + 128}"))
    for nt in range(5):
        if nt == 4: o.append(I("s_add_u32 s98, s98, 4096"))
        o.append(I(f"buffer_store_dwordx4 v[{Pk+4*nt}:{Pk+4*nt+3}], v{VD}, s[8:11], s98 offen offset:{1024*(nt%4)} sc1"))
    o += [I("s_lshr_b32 s46, s2, 4"), I("s_lshl_b32 s46, s46, 7"), I(f"s_add_u32 s46, s46, {WS_CNT + 2048}"), I(f"s_mov_b32 s47, {WS_CNT + 4096}"),
          I("v_mov_b32 v238, 0"), I("v_mov_b32 v239, 1"), I("v_mov_b32 v240, 0x100"), I("v_lshlrev_b32 v241, 7, v1"),
          I("s_waitcnt vmcnt(0)"), I("s_barrier"),
          RAW(f"    s_cmp_lg_u32 s32, 0\n    s_cbranch_scc1 {P}_wfd\n    s_mov_b64 exec, 1\n    buffer_atomic_add v239, v238, s[8:11], s46 offen sc0 sc1\n    s_waitcnt vmcnt(0)\n"
              f"    v_readfirstlane_b32 s48, v239\n    s_mov_b64 exec, -1\n    s_cmp_lg_u32 s48, 15\n    s_cbranch_scc1 {P}_wfd\n"
              f"    buffer_atomic_add v240, v241, s[8:11], s47 offen sc1\n{P}_wfd:")]
    return o

def role_a(part):
    FULL = (part == 1 and NC1 == 8)
    P = f"A{part}"
    c0 = 0 if part == 1 else NC1
    cend = NC1 if part == 1 else 8
    o = [I("s_setprio 2" if part == 1 else "s_setprio 3"),
         I("s_and_b32 s30, s2, 7"), I("s_lshl_b32 s30, s30, 2"), I("s_lshr_b32 s46, s2, 6"), I("s_add_u32 s30, s30, s46"),
         I("s_bfe_u32 s31, s2, 0x30003"),
         I(f"v_lshlrev_b32 v{VD}, 4, v1"), I(f"v_add_u32 v{VD4}, 4096, v{VD}"),
         I("s_lshr_b32 s46, s32, 1"), I("s_add_u32 s46, s46, 1"), I(f"s_mul_i32 s42, s46, {QPART}"),
         I("s_and_b32 s46, s32, 1"), I(f"s_mul_i32 s46, s46, {16*QROW}"), I("s_add_u32 s42, s42, s46"),
         I("s_mul_i32 s47, s30, 288"), I("v_mov_b32 v5, 9216"), I(f"v_mov_b32 v7, {QROW}")]
    for p in range(5):
        o += [I(f"v_add_u32 v2, {64*p}, v1"), I("v_mul_u32_u24 v3, 3277, v2"), I("v_lshrrev_b32 v3, 16, v3"),
              I("v_mul_u32_u24 v4, 20, v3"), I("v_sub_u32 v2, v2, v4"), I("v_cmp_gt_u32 vcc, 18, v2"),
              I("v_lshl_add_u32 v2, v2, 4, s47"),
              I(f"v_mad_u32_u24 v2, v3, v7, v2"), I(f"v_cndmask_b32 v{VG+p}, v5, v2, vcc")]
        if 0 < p < 4: o.append(I(f"v_subrev_u32 v{VG+p}, {1024*p}, v{VG+p}"))
    o += [
         I("s_mul_i32 s43, s32, 5120"),
         I("s_mov_b32 s40, s43"), I(f"s_add_u32 s41, s42, {CH*c0}")]
    o += [Ins(x.text, "KV0") for x in dma_chunk()]
    o += [I("s_lshl_b32 s53, s2, 2"), I("s_add_u32 s53, s53, s32"), I("s_mul_i32 s53, s53, 10240"), I(f"s_add_u32 s53, s53, {WS_ST}"),
          I("s_add_u32 s54, s53, 8192")]
    if part == 1:
        o += [I("s_lshl_b32 s46, s31, 2"), I("s_add_u32 s46, s46, s32"), I(f"s_mul_i32 s47, s46, {8*QROW}"),
              I("s_mul_i32 s33, s32, 3072"), I(f"s_add_u32 s33, s33, {L_Q}"), I("s_mov_b32 m0, s33")]
        for p in range(3): o.append(I(f"buffer_load_dwordx4 v{VG+p}, s[8:11], s47 offen offset:{1024*p} lds", tag="Q"))
    else:
        for i, r in enumerate(state_regs()):
            o.append(I(f"buffer_load_dwordx4 v[{r}:{r+3}], v{VD4 if 4 <= i < 8 else VD}, s[8:11], {'s54' if i >= 8 else 's53'} offen offset:{1024*(i%4)}"))
    TRI = (part == 1 and 'notri' not in EXP)
    tri = []
    for c in (1, 2): tri += [I(f"s_add_u32 s40, s43, {SLOTB*c}"), I(f"s_add_u32 s41, s42, {CH*(c0+c)}")] + dma_chunk()
    if TRI and 'trilate' not in EXP: o += tri; tri = []
    o += stamp(4)
    o += [I("v_bfe_u32 v2, v1, 4, 1"), I("v_lshlrev_b32 v2, 1, v2"),
          I("v_and_b32 v3, 1, v1"), I("v_add_u32 v3, v2, v3"), I("v_mul_u32_u24 v3, 320, v3"),
          I("v_bfe_u32 v4, v1, 1, 1"), I("v_lshl_add_u32 v3, v4, 3, v3"),
          I("v_bfe_u32 v5, v1, 2, 2"), I("v_lshlrev_b32 v5, 4, v5"),
          I("v_lshrrev_b32 v6, 5, v1"),
          I(f"v_add_u32 v{LKB}, v3, v5"), I(f"v_lshl_add_u32 v{LKA}, v6, 7, v{LKB}"), I(f"v_add_u32 v{LKB}, 256, v{LKB}"),
          I("v_mul_u32_u24 v7, 320, v6"), I("v_and_b32 v8, 31, v1"), I("v_lshl_add_u32 v7, v8, 4, v7"), I(f"v_add_u32 v{LVA}, 10240, v7"),
          I("v_cmp_gt_u32 s[44:45], 32, v1"),
          I("s_mov_b32 s56, 0xfffff"), I("s_mov_b32 s57, 0xfffff")]
    OOR = 'oor' in EXP
    if OOR: o += [I("v_mov_b32 v7, 0x40000"), I(f"v_cndmask_b32 v{LVA}, v7, v{LVA}, s[56:57]")]
    for b in range(2):
        o += [I(f"v_mov_b32 v{KF+8*b+6}, 0x3f80"), I(f"v_mov_b32 v{KF+8*b+7}, 0")]
    for r in range(16): o.append(I(f"v_mov_b32 v{VF+r}, 0"))
    nxt = [I(f"s_add_u32 s40, s43, {SLOTB}"), I(f"s_add_u32 s41, s42, {CH*(c0+1)}")] + dma_chunk()
    if TRI: nxt = tri
    if part == 1:
        o += [I("v_add_u32 v2, v2, v4"), I("v_mul_u32_u24 v2, 320, v2"), I("v_and_b32 v3, 1, v1"), I("v_lshl_add_u32 v2, v3, 3, v2"),
              I(f"v_add3_u32 v{T0}, v2, v5, s33"), I(f"v_lshl_add_u32 v{T0+1}, v6, 7, v{T0}")]
        o += [I("s_load_dwordx2 s[36:37], s[0:1], 16"), I("s_load_dwordx2 s[38:39], s[0:1], 56"),
              ] + ([I("v_and_b32 v228, 15, v1"), I("v_lshlrev_b32 v228, 6, v228"), I("v_lshrrev_b32 v229, 4, v1"), I("v_lshl_add_u32 v228, v229, 12, v228"),
              I("v_mov_b32 v229, 0x7f000000"), I("v_cndmask_b32 v228, v229, v228, s[44:45]"), I("v_lshlrev_b32 v227, 6, v1")] if 't64' in EXP else
              [I("v_and_b32 v228, 7, v1"), I("v_lshlrev_b32 v228, 7, v228"), I("v_lshrrev_b32 v229, 3, v1"), I("v_lshl_add_u32 v228, v229, 12, v228"),
              I("v_mov_b32 v229, 0x7f000000"), I("v_cmp_gt_u32 vcc, 16, v1"), I("v_cndmask_b32 v228, v229, v228, vcc"),
              I("v_lshlrev_b32 v227, 7, v1"), I("v_cndmask_b32 v227, v229, v227, s[44:45]")]) + [
              I("s_lshl_b32 s51, s2, 2"), I("s_add_u32 s51, s51, s32"), I("s_lshl_b32 s52, s51, 13"), I(f"s_sub_u32 s52, s52, {1024*(int(os.environ.get('TC', '1'))-int(os.environ.get('TB0', '1')))}"),
              I("s_mov_b32 s16, s24"), I("s_mov_b32 s17, s25"), I(f"s_mov_b32 s18, {2048*4096}"), I("s_mov_b32 s19, 0x00020000"),
              I("s_sub_u32 s50, s51, 648"), I(f"s_mov_b32 s22, {576*1152}"), I("s_mov_b32 s23, 0x00020000"), I("s_waitcnt lgkmcnt(0)"),
              I("s_cmp_lt_u32 s51, 648"), I("s_cselect_b32 s20, s38, s36"), I("s_cselect_b32 s21, s39, s37"), I(f"s_cselect_b32 s22, {2304*1152}, s22"),
              I("s_cselect_b32 s50, s51, s50"), I("s_lshl_b32 s50, s50, 12")]
        for q in range(2): o += [I(f"v_mov_b32 v{QF+8*q+6}, 0"), I(f"v_mov_b32 v{QF+8*q+7}, 0")]
        for r in range(32): o.append(I(f"v_mov_b32 v{OO+r}, 0"))
        o += [I(f"v_mov_b32 v{VKA}, v{LKA}"), I(f"v_mov_b32 v{VKB}, v{LKB}"), WAITVM("Q")]
        for q in range(2):
            o += [I(f"ds_read_b64_tr_b16 v[{QF+8*q}:{QF+8*q+1}], v{T0+1} offset:{1280*q}"),
                  I(f"ds_read_b64_tr_b16 v[{QF+8*q+2}:{QF+8*q+3}], v{T0+1} offset:{1280*q+64}"),
                  I(f"ds_read_b64_tr_b16 v[{QF+8*q+4}:{QF+8*q+5}], v{T0} offset:{1280*q+256}")]
        o += [I("s_barrier")] + k_reads(0) + nxt
        for q in range(2):
            o += [I(f"v_cndmask_b32 v{QF+8*q+4}, 0, v{QF+8*q+4}, s[44:45]"), I(f"v_mov_b32 v{QF+8*q+5}, 0")]
        o += qk(0, 0) + qk(0, 1)
        o += max16(T0, S(0, 0), True) + max16(T0+1, S(0, 1), True) + xhalf_max(T0, T0+2) + xhalf_max(T0+1, T0+3)
        o += set_m(T0, 0, T0+4) + set_m(T0+1, 1, T0+8) + [I("s_mov_b32 s34, 0")]
    else:
        o += [I("s_lshl_b32 s46, s31, 2"), I("s_add_u32 s46, s46, s32"), I("s_lshl_b32 s47, s46, 8"), I(f"s_add_u32 s47, s47, {WS_G}"),
              I("v_lshlrev_b32 v3, 2, v8"),
              I("buffer_load_dword v230, v3, s[8:11], s47 offen"), I("buffer_load_dword v231, v3, s[8:11], s47 offen offset:128")]
        o += epi_addr()
        for q in range(2):
            for r in range(12, 16): o.append(I(f"v_mov_b32 v{OO+16*q+r}, 0"))
        o += [I("s_mov_b32 s34, 0"), WAITVM("KV0"), I("s_barrier")] + nxt + [I("s_waitcnt vmcnt(7)")]
    lo = c0 + (1 if TRI else 0)
    o += [I(f"s_mov_b32 s55, {lo}"), I(f"s_mov_b32 s58, {max(0, cend - 2 - lo)}")]
    if FULL and MERGE: o += [I(f"s_mov_b32 s33, {MIDC}")] + [I(f"v_mov_b32 v{r}, 0x7f000000") for r in range(232, 236)]
    o += [I(f"s_mov_b32 s35, {c0}"), I(f"s_add_u32 s41, s42, {CH*(c0+2)}"), I(f"s_setprio {PRIO_A[part]}"), I("s_nop 1"), RAW(f"{P}_main:")]
    a, st = finalize(o)
    txt = text_of(a) + "\n"
    o = [I(f"v_mov_b32 v{VKA}, v{LKA}"), I(f"v_mov_b32 v{VKB}, v{LKB}"), I(f"v_mov_b32 v{VVA}, v{LVA}")]
    o += k_reads(0) + k_reads(1) + [I("s_mov_b64 exec, s[56:57]")] + v_reads(0) + [I("s_mov_b64 exec, -1")]
    o += [I(f"v_add_u32 v{NKA}, {SLOTB}, v{LKA}"), I(f"v_add_u32 v{NKB}, {SLOTB}, v{LKB}"), I(f"v_add_u32 v{NVA}, {SLOTB}, v{LVA}"),
          I(f"s_mov_b32 s36, {2*SLOTB}")]
    for r in range(4): o += [I(f"v_mov_b32 v{PP+12+r}, 0"), I(f"v_mov_b32 v{VF+12+r}, 0")]
    o += stamp(2) + qk(0, 0) + qk(0, 1)
    o += [I("s_nop 7"), RAW(f"{P}_loop:")]
    a, st = finalize(o, st)
    txt += text_of(a) + "\n"
    body = []
    if STAMPS and 'cst' in EXP:
        body += [I(f"s_mov_b32 s{SB+2*(5+i)}, s{SB+2*(6+i)}") for i in range(7)] + stamp(12) + [I("s_waitcnt lgkmcnt(0)")]
    for kt in range(8):
        V, M, R = tile_body(kt)
        X = {0: [I("s_waitcnt lgkmcnt(0)"), R[0]], 1: [R[1]], 2: [R[2]],
             3: [I("s_mov_b64 exec, s[56:57]"), R[3], R[4], I("s_mov_b64 exec, -1")]}
        if 'novmask' in EXP: X[3] = [R[3], R[4]]
        if OOR: X = {0: [I("s_waitcnt lgkmcnt(0)"), R[0]], 1: [R[1]], 2: [R[2]], 3: [R[3]], 'x': R[4]}
        if kt == 4:
            X[6] = [I("s_waitcnt vmcnt(0)")]
            X[7] = [I("s_barrier")]
        def gd(i, txt): return RAW(f"    s_cbranch_scc1 {P}_nd{i}\n    {txt}\n{P}_nd{i}:")
        if kt == 4:
            X[4] = [I("s_add_u32 s40, s43, s36")]
            X[5] = [I("s_add_u32 s59, s40, 4096")]
        if kt == 5:
            X[4] = [I("s_sub_u32 s37, s35, s55")]
            X[5] = [I("s_cmp_ge_u32 s37, s58"), I("s_mov_b32 m0, s40")]
            X[6] = [gd(0, f"buffer_load_dwordx4 v{VG+0}, s[8:11], s41 offen lds")]
            X[7] = [gd(1, f"buffer_load_dwordx4 v{VG+1}, s[8:11], s41 offen offset:1024 lds")]
        if kt == 6:
            X[4] = [gd(2, f"buffer_load_dwordx4 v{VG+2}, s[8:11], s41 offen offset:2048 lds")]
            X[5] = [gd(3, f"buffer_load_dwordx4 v{VG+3}, s[8:11], s41 offen offset:3072 lds")]
            X[6] = [I("s_mov_b32 m0, s59")]
            X[7] = [gd(4, f"buffer_load_dwordx4 v{VG+4}, s[8:11], s41 offen lds")]
        TK = int(os.environ.get('TK', '1')); TC = int(os.environ.get('TC', '1'))
        if kt == TK and part == 1 and 'notouch' not in EXP:
            X[4] = [I(f"s_sub_u32 s37, s35, {TC}")]
            X[5] = [I(f"s_cmp_ge_u32 s37, {os.environ.get('TN', '3')}")]
            X[6] = [RAW(f"    s_cbranch_scc1 {P}_nt0\n    buffer_load_dword v229, v228, s[16:19], s52 offen\n{P}_nt0:")]
            X[7] = [I("s_add_u32 s52, s52, 1024")]
        if kt == 2 and part == 1 and 'notouch' not in EXP:
            X[5] = [I("s_cmp_lg_u32 s35, 3")]
            X[6] = [RAW(f"    s_cbranch_scc1 {P}_nt1\n    buffer_load_dword v229, v227, s[20:23], s50 offen\n{P}_nt1:")]
        if kt == 7:
            X[4] = [I(f"s_add_u32 s41, s41, {CH}"), I(f"v_mov_b32 v{VKA}, v{NKA}"), I(f"v_mov_b32 v{VKB}, v{NKB}"), I(f"v_mov_b32 v{VVA}, v{NVA}"),
                    I(f"v_add_u32 v{NKA}, s36, v{LKA}"), I(f"v_add_u32 v{NKB}, s36, v{LKB}"), I(f"v_add_u32 v{NVA}, s36, v{LVA}")]
            X[5] = [I(f"s_add_u32 s36, s36, {SLOTB}"), I(f"s_cmp_eq_u32 s36, {3*SLOTB}")]
            X[6] = [I("s_cselect_b32 s36, 0, s36"), I("s_add_u32 s35, s35, 1")]
            X[7] = [I("s_cmp_lt_u32 s35, s33" if (FULL and MERGE) else f"s_cmp_lt_u32 s35, {cend}")]
        if OOR: X[4] = [X.pop('x')] + X.get(4, [])
        for i in range(8):
            body += V[6*i:6*i+2] + [M[i]] + X.get(i, []) + V[6*i+2:6*i+6]
    body += [I(f"s_cbranch_scc1 {P}_loop")]
    a, st = finalize_loop(body, st)
    txt += text_of(a) + "\n"
    if FULL and MERGE:
        mid = [RAW(f"    s_cmp_eq_u32 s35, 8\n    s_cbranch_scc1 {P}_fin"),
              I("s_mov_b32 s33, 8"),
              I("s_lshl_b32 s46, s31, 2"), I("s_add_u32 s46, s46, s32"), I("s_lshl_b32 s47, s46, 8"), I(f"s_add_u32 s47, s47, {WS_G}"),
              I("v_and_b32 v3, 31, v1"), I("v_lshlrev_b32 v3, 2, v3"),
              I("buffer_load_dword v230, v3, s[8:11], s47 offen"), I("buffer_load_dword v231, v3, s[8:11], s47 offen offset:128")]
        mid += [I(x.text.replace("v6", "v236").replace("v4", "v237")) for x in epi_addr()]
        if 'wfb' not in EXP and 'wfk1' not in EXP: mid += wf_mid(P)
        mid += [I(f"s_branch {P}_loop"), RAW(f"{P}_fin:")]
        txt += text_of(finalize(mid)[0]) + "\n"
    o = [I("s_nop 0"), pv(7, 1, 1)] + stamp(3)
    if FULL and MERGE: FULL = False; part = 2
    if FULL:
        o += [I("s_lshl_b32 s46, s31, 2"), I("s_add_u32 s46, s46, s32")] + epi_addr()
    if part == 1 and not FULL:
        for i, r in enumerate(state_regs()):
            o.append(I(f"buffer_store_dwordx4 v[{r}:{r+3}], v{VD4 if 4 <= i < 8 else VD}, s[8:11], {'s54' if i >= 8 else 's53'} offen offset:{1024*(i%4)}"))
        o += [I("s_setprio 0")] + wf_loads() + wf_store()
        if 'nocp2' not in EXP: o += [RAW(code_prefetch("k34_out_kernel", 3072, 32, 1, 2, 46))]
        o.append(I("s_endpgm"))
        a, _ = finalize(o, st)
        return txt + text_of(a) + "\n"
    o += [I("s_setprio 3")]
    for q in range(2):
        O = OO + 16*q; t = T0 + 8 + 16*q
        o += [I(f"v_mov_b32 v{t}, v{O+10}"), I(f"v_mov_b32 v{t+1}, v{O+10}"),
              I(f"v_add_f32 v{T0+q}, abs(v{O}), abs(v{O+1})")]
        o.append(I(f"v_permlane32_swap_b32 v{t}, v{t+1}"))
        for r in range(2, 11): o.append(I(f"v_add_f32 v{T0+q}, v{T0+q}, abs(v{O+r})"))
        o += [I(f"v_rcp_f32 v{t}, v{t}")] + ([] if FULL else [I(f"v_mul_f32 v{t}, v{t}, v{230+q}")])
        for r in range(10): o.append(I(f"v_mul_f32 v{O+r}, v{O+r}, v{t}"))
        for r in range(5): o.append(I(f"v_cvt_pk_bf16_f32 v{t+4+r}, v{O+2*r}, v{O+2*r+1}"))
        o.append(I(f"buffer_store_dwordx4 v[{t+4}:{t+7}], v233, s[8:11], s{59+q} offen sc1" if False else f"buffer_store_dwordx4 v[{t+4}:{t+7}], v{233+2*q}, s[8:11], s50 offen sc1"))
        o += [I("s_mov_b64 exec, s[44:45]"), I(f"buffer_store_dword v{t+8}, v{232+2*q}, s[8:11], s51 offen" + ("" if FULL else " sc1")), I("s_mov_b64 exec, -1")]
    o += [I(f"v_add_f32 v{T0}, v{T0}, v{T0+1}"), I(f"v_mov_b32 v{T0+2}, {f32(2.0**100)}"),
          I(f"v_cmp_nlt_f32 vcc, v{T0}, v{T0+2}"), I("s_cmp_lg_u64 vcc, 0"), I("s_cselect_b32 s48, 1, 0"),
          I(f"v_mov_b32 v{T0+3}, s48"), I("s_lshl_b32 s49, s32, 2"), I("v_mov_b32 v4, s49"),
          I(f"ds_write_b32 v4, v{T0+3} offset:{L_MISC+256}"),
          I("s_lshl_b32 s46, s31, 7"), I(f"s_add_u32 s46, s46, {WS_CNT2}"), I("s_lshl_b32 s47, s31, 12"), I(f"s_add_u32 s47, s47, {WS_FLG2}"),
          I("v_mov_b32 v2, 0"), I("v_mov_b32 v3, 1"), I("v_mov_b32 v5, 1"), I("v_lshlrev_b32 v4, 7, v1"),
          I("s_waitcnt vmcnt(0) lgkmcnt(0)"), I("s_barrier"),
          I(f"ds_read_b128 v[{T0+4}:{T0+7}], v2 offset:{L_MISC+256}"),
          I(f"v_or3_b32 v{T0+4}, v{T0+4}, v{T0+5}, v{T0+6}"), I(f"v_or_b32 v{T0+4}, v{T0+4}, v{T0+7}"),
          I(f"v_readfirstlane_b32 s48, v{T0+4}"),
          I("s_andn2_b32 s48, s48, s34"), I("s_cmp_lg_u32 s48, 0"), I(f"s_cbranch_scc1 {P}_fallback")]
    if FULL:
        if 'wfb' not in EXP: o += [I("s_setprio 0")] + wf_loads() + wf_store()
        if 'nocp2' not in EXP: o += [RAW(code_prefetch("k4_out_kernel", 1024, 32, 1, 2, 46))]
    elif DIRECT:
        o += [RAW(f"    s_cmp_lg_u32 s32, 0\n    s_cbranch_scc1 {P}_done\n    s_mov_b32 exec_hi, 0\n    buffer_atomic_add v5, v4, s[8:11], s47 offen sc1\n{P}_done:")]
    else:
        o += [RAW(f"    s_cmp_lg_u32 s32, 0\n    s_cbranch_scc1 {P}_done\n    s_mov_b64 exec, 1\n    buffer_atomic_add v3, v2, s[8:11], s46 offen sc0 sc1\n    s_waitcnt vmcnt(0)\n"
              f"    v_readfirstlane_b32 s48, v3\n    s_cmp_lg_u32 s48, 31\n    s_cbranch_scc1 {P}_done\n    s_mov_b32 exec_lo, -1\n"
              f"    buffer_store_dword v5, v4, s[8:11], s47 offen sc1\n{P}_done:")]
    o += [I("s_endpgm")]
    a, _ = finalize(o, st)
    txt += text_of(a) + "\n"
    o = [RAW(f"{P}_fallback:"), I("s_waitcnt vmcnt(0) lgkmcnt(0)"), I("s_nop 15"),
         I("s_mov_b32 s18, 0"), I("s_mov_b32 s22, 0"), I("s_mov_b32 s34, 1"), I("s_mov_b32 s35, 0"), I("s_mov_b32 s41, s42"), I("s_mov_b32 s40, s43"),
         I(f"v_mov_b32 v{T0}, 0xff7fffff"), I(f"v_mov_b32 v{T0+1}, 0xff7fffff")]
    for q in range(2): o += [I(f"v_mov_b32 v{QF+8*q+5}, 0"), I(f"v_mov_b32 v{QF+8*q+6}, 0")]
    o += [RAW(f"{P}_fb_chunk:"), I("s_barrier")] + dma_chunk() + [I("s_waitcnt vmcnt(0)"), I("s_barrier"),
          I(f"v_mov_b32 v{VKA}, v{LKA}"), I(f"v_mov_b32 v{VKB}, v{LKB}"), I("s_mov_b32 s36, 0"), RAW(f"{P}_fb_tile:")]
    o += k_reads(0) + qk(0, 0) + qk(0, 1) + max16(T0, S(0, 0)) + max16(T0+1, S(0, 1))
    o += [I(f"v_add_u32 v{VKA}, 1280, v{VKA}"), I(f"v_add_u32 v{VKB}, 1280, v{VKB}"),
          I("s_add_u32 s36, s36, 1"), I("s_cmp_lt_u32 s36, 8"), I(f"s_cbranch_scc1 {P}_fb_tile"),
          I(f"s_add_u32 s41, s41, {CH}"), I("s_add_u32 s35, s35, 1"), I("s_cmp_lt_u32 s35, 8"), I(f"s_cbranch_scc1 {P}_fb_chunk")]
    o += xhalf_max(T0, T0+2) + xhalf_max(T0+1, T0+3) + set_m(T0, 0, T0+4) + set_m(T0+1, 1, T0+8)
    for r in range(32): o.append(I(f"v_mov_b32 v{OO+r}, 0"))
    o += [I("s_barrier"), I("s_mov_b32 s41, s42")] + dma_chunk()
    o += [I(f"s_add_u32 s40, s43, {SLOTB}"), I(f"s_add_u32 s41, s42, {CH}")] + dma_chunk()
    o += [I("s_mov_b32 s55, 0"), I("s_mov_b32 s58, 6"), I("s_mov_b32 s35, 0"), I(f"s_add_u32 s41, s42, {2*CH}"), I("s_waitcnt vmcnt(0)"), I("s_barrier"), I("s_nop 7"), I(f"s_branch {P}_main")]
    a, _ = finalize(o)
    txt += text_of(a) + "\n"
    return txt
```
